```python
import torch

def _softmax(x, axis=-1):
    return torch.softmax(x, dim=axis)
def _gelu(x):
    return torch.nn.functional.gelu(x, approximate="tanh")
def _silu(x):
    return torch.nn.functional.silu(x)
def _sigmoid(x):
    return torch.sigmoid(x)
def _layernorm(x, axis=-1, eps=1e-5):
    m = x.mean(dim=axis, keepdim=True)
    v = x.var(dim=axis, keepdim=True, unbiased=False)
    return (x - m) / torch.sqrt(v + eps)
def _scatter_add(tgt, idx, src, axis=0):
    return tgt.clone().index_add_(axis, idx, src)
def _segment_sum(src, seg, n):
    out = torch.zeros((n,) + src.shape[1:], dtype=src.dtype)
    return out.index_add_(0, seg, src)
def _pad(x, pw):
    flat = tuple(v for pair in reversed(pw) for v in pair)
    return torch.nn.functional.pad(x, flat)

kernel_name = 'standalone__modern_conv_block_convnext_v2__vision'

def setup_inputs():

    _w = (lambda a: (lambda t: t.to(torch.bfloat16) if t.is_floating_point() else t)(torch.as_tensor(a)))
    H = W = 512
    C = 96
    K = 3
    return {
        "x": _w((lambda *s: torch.randn(*s, dtype=torch.bfloat16) * 0.05)(1, H, W, C)),
        "dw": _w((lambda *s: torch.randn(*s, dtype=torch.bfloat16) * 0.05)(K, K, C)),
        "w1": _w((lambda *s: torch.randn(*s, dtype=torch.bfloat16) * 0.05)(C, 4 * C)),
        "w2": _w((lambda *s: torch.randn(*s, dtype=torch.bfloat16) * 0.05)(4 * C, C)),
        "grn_gamma": _w((lambda *s: torch.randn(*s, dtype=torch.bfloat16) * 0.05)(4 * C)),
        "grn_beta": _w((lambda *s: torch.randn(*s, dtype=torch.bfloat16) * 0.05)(4 * C)),
    }

def reference(x, dw, w1, w2, grn_gamma, grn_beta):
    B, H, W, C = x.shape
    K = dw.shape[0]
    pad = K // 2
    xp = _pad(x, ((0,0),(pad,pad),(pad,pad),(0,0)))
    out = torch.zeros_like(x)
    for i in range(K):
        for j in range(K):
            out = out + xp[:, i:i+H, j:j+W, :] * dw[i, j][None, None, None, :]
    h = _layernorm(out, axis=-1)
    h = torch.einsum('bhwc,ce->bhwe', h, w1)
    h = _gelu(h)
    gx = torch.sqrt((h * h).sum(axis=(1, 2), keepdims=True) + 1e-6)
    nx = gx / (gx.mean(axis=-1, keepdims=True) + 1e-6)
    h = grn_gamma * (h * nx) + grn_beta + h
    h = torch.einsum('bhwe,ec->bhwc', h, w2)
    return x + h
```

```python
class V:
    __slots__ = ("b", "n")

    def __init__(self, b, n=1):
        assert 0 <= b and b + n <= 256, (b, n)
        if n > 1:
            assert b % 2 == 0, ("unaligned tuple", b, n)
        self.b, self.n = b, n

    def __str__(self):
        return f"v{self.b}" if self.n == 1 else f"v[{self.b}:{self.b + self.n - 1}]"

    def regs(self):
        return range(self.b, self.b + self.n)

    def sub(self, off, n=1):
        assert off + n <= self.n
        return V(self.b + off, n)


class S:
    __slots__ = ("b", "n")

    def __init__(self, b, n=1):
        self.b, self.n = b, n

    def __str__(self):
        return f"s{self.b}" if self.n == 1 else f"s[{self.b}:{self.b + self.n - 1}]"

    def sub(self, off, n=1):
        return S(self.b + off, n)


TRANS = ("v_exp_f32", "v_rcp_f32", "v_rsq_f32", "v_sqrt_f32", "v_log_f32",
         "v_exp_f16", "v_rcp_f16", "v_exp_f16_sdwa", "v_rcp_f16_sdwa")
NEG = -10 ** 9


class Prog:
    def __init__(self):
        self.lines = []
        self.pos = 0
        self.w_valu = [NEG] * 256
        self.w_trans = [NEG] * 256
        self.w_mfma = [(NEG, None)] * 256
        self.c_read = [NEG] * 256
        self.st_read = [NEG] * 256
        self.p_lgkm = [None] * 256
        self.p_vm = [None] * 256
        self.lgkm_seq = 0
        self.lgkm_done = 0
        self.vm_seq = 0
        self.vm_done = 0
        self.sgpr_valu_w = {}
        self.m0_w = NEG
        self.stats = {}
        self.w_half = [NEG] * 256
        self.lgkm_hint = 0

    def raw(self, text, states=1):
        self.lines.append(text)
        self.pos += states
        k = text.split()[0]
        self.stats[k] = self.stats.get(k, 0) + 1

    def comment(self, text):
        self.lines.append("; " + text)

    def nop(self, n):
        while n > 0:
            k = min(n, 16)
            self.raw(f"s_nop {k - 1}", k)
            n -= k

    def _need(self, target):
        if target > self.pos:
            self.nop(target - self.pos)

    def wait(self, lgkm=None, vm=None):
        parts = []
        if vm is not None and vm > self.vm_done:
            n = min(self.vm_seq - vm, 63)
            parts.append(f"vmcnt({n})")
            self.vm_done = self.vm_seq - n
        if lgkm is not None and lgkm > self.lgkm_done:
            lgkm = max(lgkm, min(self.lgkm_hint, self.lgkm_seq))
            n = min(self.lgkm_seq - lgkm, 15)
            parts.append(f"lgkmcnt({n})")
            self.lgkm_done = self.lgkm_seq - n
        if parts:
            self.raw("s_waitcnt " + " ".join(parts))

    def wait_all(self, lgkm=True, vm=True):
        self.wait(self.lgkm_seq if lgkm else None, self.vm_seq if vm else None)

    def sync(self):
        self.raw("s_waitcnt vmcnt(0) lgkmcnt(0)")
        self.lgkm_done = self.lgkm_seq
        self.vm_done = self.vm_seq
        last = max(p for p, _ in self.w_mfma)
        self._need(max(last + 1 + 12, self.pos + 5))

    def _mem_deps(self, regs):
        lg = vm = None
        for r in regs:
            if self.p_lgkm[r] is not None:
                lg = max(lg or 0, self.p_lgkm[r])
            if self.p_vm[r] is not None:
                vm = max(vm or 0, self.p_vm[r])
        self.wait(lg, vm)

    @staticmethod
    def _vregs(ops):
        out = []
        for o in ops:
            if isinstance(o, V):
                out.extend(o.regs())
        return out

    def _sgpr_from_valu(self, ops, states):
        for o in ops:
            if isinstance(o, S):
                for r in range(o.b, o.b + o.n):
                    if r in self.sgpr_valu_w:
                        self._need(self.sgpr_valu_w[r] + 1 + states)
            elif o == "vcc" and "vcc" in self.sgpr_valu_w:
                self._need(self.sgpr_valu_w["vcc"] + 1 + states)

    def valu(self, op, dst, *src, mods="", rmw=False, extra_w=()):
        rd = self._vregs(src)
        wr = self._vregs([dst] + list(extra_w))
        if rmw:
            rd += wr
        self._mem_deps(rd + wr)
        trans = op in TRANS
        t = self.pos
        for r in rd + wr:
            t = max(t, self.w_mfma[r][0] + 1 + 12)
        for r in wr:
            t = max(t, self.c_read[r] + 1 + 7, self.st_read[r] + 1 + 2)
        if not trans:
            for r in rd:
                t = max(t, self.w_trans[r] + 1 + 1)
        for r in rd + wr:
            t = max(t, self.w_half[r] + 1 + 1)
        if "permlane" in op or "dpp" in op:
            for r in rd:
                t = max(t, self.w_valu[r] + 1 + 2)
        if "readfirstlane" in op or "readlane" in op:
            for r in rd:
                t = max(t, self.w_valu[r] + 1 + 1)
        self._need(t)
        self._sgpr_from_valu(src, 2)
        txt = f"{op} {dst}" + "".join(f", {s}" for s in src) + (" " + mods if mods else "")
        p = self.pos
        self.raw(txt)
        for r in wr:
            self.w_valu[r] = p
            if trans:
                self.w_trans[r] = p
            if "dst_sel:WORD" in mods:
                self.w_half[r] = p
        if isinstance(dst, S):
            for r in range(dst.b, dst.b + dst.n):
                self.sgpr_valu_w[r] = p
        elif dst == "vcc":
            self.sgpr_valu_w["vcc"] = p

    def swap32(self, a, b):
        self.valu("v_permlane32_swap_b32", a, b, rmw=True, extra_w=(b,))

    def swap16(self, a, b):
        self.valu("v_permlane16_swap_b32", a, b, rmw=True, extra_w=(b,))

    def mfma(self, d, a, b, c, ty="bf16"):
        rd_ab = self._vregs([a, b])
        rd_c = self._vregs([c])
        wr = list(d.regs())
        self._mem_deps(rd_ab + rd_c + wr)
        t = self.pos
        for r in rd_ab + rd_c:
            t = max(t, self.w_valu[r] + 1 + 2)
        for r in rd_ab:
            t = max(t, self.w_mfma[r][0] + 1 + 12)
        key = (d.b, d.n)
        if ty == '4x4':
            for r in rd_c:
                t = max(t, self.w_mfma[r][0] + 6 + 1 + 2)
        for r in rd_c:
            p, k = self.w_mfma[r]
            if k != (c.b, c.n):
                t = max(t, p + 1 + 10)
        for r in wr:
            p, k = self.w_mfma[r]
            if not (isinstance(c, V) and k == (c.b, c.n) == key):
                t = max(t, p + 1 + 10)
            t = max(t, self.st_read[r] + 1 + 2)
        self._need(t)
        p = self.pos
        short = 4 if d.n == 4 else 0
        if ty == '4x4':
            self.raw(f"v_mfma_f32_4x4x4_16b_f16 {d}, {a}, {b}, {c}")
            for r in wr:
                self.w_mfma[r] = (p - 6, key)
            for r in rd_c:
                self.c_read[r] = p - 6
            return
        name = ("v_mfma_f32_16x16x16_" if a.n == 2 else "v_mfma_f32_16x16x32_" if d.n == 4 else "v_mfma_f32_32x32x16_") + ty
        self.raw(f"{name} {d}, {a}, {b}, {c}")
        for r in wr:
            self.w_mfma[r] = (p - short, key)
        for r in rd_c:
            self.c_read[r] = p - short

    def _mem_issue(self, rd, wr):
        self._mem_deps(rd + wr)
        t = self.pos
        for r in rd + wr:
            t = max(t, self.w_mfma[r][0] + 1 + 12)
        for r in rd:
            t = max(t, self.w_trans[r] + 1 + 1)
        for r in wr:
            t = max(t, self.c_read[r] + 1 + 7, self.st_read[r] + 1 + 1)
        self._need(t)

    def ds_read(self, op, dst, addr, off=0):
        assert 0 <= off < 65536, off
        self._mem_issue([addr.b], list(dst.regs()))
        self.raw(f"{op} {dst}, {addr}" + (f" offset:{off}" if off else ""))
        self.lgkm_seq += 1
        for r in dst.regs():
            self.p_lgkm[r] = self.lgkm_seq
        return self.lgkm_seq

    def ds_write(self, op, addr, data, off=0):
        assert 0 <= off < 65536, off
        self._mem_issue([addr.b] + list(data.regs()), [])
        p = self.pos
        self.raw(f"{op} {addr}, {data}" + (f" offset:{off}" if off else ""))
        for r in data.regs():
            self.st_read[r] = p
        self.lgkm_seq += 1
        return self.lgkm_seq

    def _vm_text(self, op, data, voff, srd, soff, off, flags):
        assert 0 <= off < 4096, off
        self._sgpr_from_valu([srd, soff], 5)
        t = op + " " + (f"{data}, " if data is not None else "") + f"{voff}, {srd}, {soff} offen"
        if off:
            t += f" offset:{off}"
        if flags:
            t += " " + flags
        return t

    def buf_load(self, op, dst, voff, srd, soff=0, off=0, flags=""):
        self._mem_issue([voff.b], list(dst.regs()))
        self.raw(self._vm_text(op, dst, voff, srd, soff, off, flags))
        self.vm_seq += 1
        for r in dst.regs():
            self.p_vm[r] = self.vm_seq
        return self.vm_seq

    def buf_store(self, op, data, voff, srd, soff=0, off=0, flags="", ret=False):
        self._mem_issue([voff.b] + list(data.regs()), [])
        txt = self._vm_text(op, data, voff, srd, soff, off, flags)
        p = self.pos
        self.raw(txt)
        self.vm_seq += 1
        for r in data.regs():
            self.st_read[r] = p
            if ret:
                self.p_vm[r] = self.vm_seq
        return self.vm_seq

    def dma(self, voff, srd, soff=0, off=0, flags=""):
        self._mem_issue([voff.b], [])
        self._need(self.m0_w + 1 + 1)
        self.raw(self._vm_text("buffer_load_dwordx4", None, voff, srd, soff, off, (flags + " lds").strip()))
        self.vm_seq += 1
        return self.vm_seq

    def salu(self, op, *ops):
        self._sgpr_from_valu(ops, 2)
        p = self.pos
        self.raw(f"{op} " + ", ".join(str(o) for o in ops))
        if ops and ops[0] == "m0":
            self.m0_w = p

    def label(self, name):
        self.sync()
        self.lines.append(f"{name}:")

    def branch(self, op, name):
        self.sync_soft()
        self.raw(f"{op} {name}")

    def sync_soft(self):
        self.raw("s_waitcnt vmcnt(0) lgkmcnt(0)")
        self.lgkm_done = self.lgkm_seq
        self.vm_done = self.vm_seq
        last = max(p for p, _ in self.w_mfma)
        self._need(max(last + 1 + 12, self.pos + 5))

    def cond_begin(self):
        self._cond = (self.vm_seq, self.vm_done, self.lgkm_seq, self.lgkm_done)
        self._cond_pos = self.pos

    def cond_end(self):
        vs, vd, ls, ld = self._cond
        for arr, lim in ((self.p_vm, vs), (self.p_lgkm, ls)):
            for r in range(256):
                if arr[r] is not None and arr[r] > lim:
                    arr[r] = lim
        self.vm_done = min(vd, vs - 1) if self.vm_seq > vs else vd
        self.lgkm_done = min(ld, ls - 1) if self.lgkm_seq > ls else ld
        self.vm_seq, self.lgkm_seq = vs, ls
        shift = self.pos - self._cond_pos
        for arr in (self.w_valu, self.w_trans, self.w_half, self.c_read, self.st_read):
            for r in range(256):
                if arr[r] < self._cond_pos:
                    arr[r] += shift
        for r in range(256):
            if self.w_mfma[r][0] < self._cond_pos:
                self.w_mfma[r] = (self.w_mfma[r][0] + shift, self.w_mfma[r][1])
        for k, v in self.sgpr_valu_w.items():
            if v < self._cond_pos:
                self.sgpr_valu_w[k] = v + shift
        if self.m0_w < self._cond_pos:
            self.m0_w += shift
        return vs

    def barrier(self):
        self.raw("s_barrier")

    def text(self):
        return "\n".join(self.lines) + "\n"
```

```python
import heapq

from asmgen import *
import asmgen

COST = {'mfma4': 4, 'valu': 4, 'trans': 8, 'mfma32': 8, 'mfma16': 8, 'lds': 3, 'vmem': 2, 'misc': 1}
LAT = {'mfma4': 56, 'valu': 8, 'trans': 20, 'mfma32': 110, 'mfma16': 80, 'misc': 0}


class Op:
    __slots__ = ('fn', 'kind', 't', 'seq', 'succ', 'npred', 'ready', 'cost', 'lat', 'svc', 'key', 'done', 'pk', 'mode')


def regset(ops):
    out = []
    for o in ops:
        if isinstance(o, V):
            out.extend(o.regs())
        elif isinstance(o, str) and o.startswith('@'):
            out.append(o)
    return out


class Sched:
    def __init__(self, p, opt):
        self.p, self.o = p, opt
        self.ops = []
        self.lastw = {}
        self.readers = {}
        self.mode = opt.get('dsm', 1)

    def add(self, t, kind, fn, rd=(), wr=(), cost=None, lat=None, svc=0, key=None, chain=None):
        op = Op()
        op.fn, op.kind, op.t, op.seq = fn, kind, t, len(self.ops)
        op.succ, op.npred, op.ready, op.done = {}, 0, 0, False
        op.cost = COST[kind] if cost is None else cost
        op.lat = LAT.get(kind, 0) if lat is None else lat
        op.svc, op.key, op.pk, op.mode = svc, key, False, self.mode
        rd, wr = regset(rd), regset(wr)
        preds = {}
        for r in rd + wr:
            w = self.lastw.get(r)
            if w is not None:
                full = not (chain is not None and w.key == chain)
                preds[w] = preds.get(w, False) or full
        for r in wr:
            for q in self.readers.get(r, ()):
                preds.setdefault(q, False)
        preds.pop(op, None)
        for q, full in preds.items():
            q.succ[op] = full
            op.npred += 1
            if q.t > op.t:
                op.t = q.t
        for r in rd:
            self.readers.setdefault(r, []).append(op)
        for r in wr:
            self.lastw[r] = op
            self.readers[r] = []
        self.ops.append(op)
        return op

    def valu(self, t, name, dst, *src, mods="", rmw=False, extra_w=(), rd=(), wr=()):
        kind = 'trans' if name in asmgen.TRANS else 'valu'
        w = [dst] + list(extra_w)
        op = self.add(t, kind, lambda: self.p.valu(name, dst, *src, mods=mods, rmw=rmw, extra_w=extra_w),
                      list(src) + (w if rmw else []) + list(rd), w + list(wr))
        if name.startswith(('v_pk_', 'v_fma_mix')):
            op.lat = 12
        return op

    def swap(self, t, n, a, b):
        return self.valu(t, f"v_permlane{n}_swap_b32", a, b, rmw=True, extra_w=(b,))

    def mfma(self, t, d, a, b, c, ty='bf16', rd=(), wr=()):
        key = (d.b, d.n)
        if ty == '4x4':
            return self.add(t, 'mfma4', lambda: self.p.mfma(d, a, b, c, ty), [a, b, c], [d], key=key, chain=key)
        return self.add(t, 'mfma16' if d.n == 4 else 'mfma32', lambda: self.p.mfma(d, a, b, c, ty), [a, b, c, ty] + list(rd), [d] + list(wr),
                        key=key, chain=key if isinstance(c, V) and (c.b, c.n) == key else None)

    def ds_read(self, t, name, dst, addr, off=0, svc=None, rd=()):
        if svc is None:
            svc = {'ds_read_b128': 4, 'ds_read_b64': 2, 'ds_read_b32': 2, 'ds_read_b64_tr_b16': 2}.get(name, 6.75)
        return self.add(t, 'lds', lambda: self.p.ds_read(name, dst, addr, off), [addr] + list(rd), [dst], svc=svc)

    def ds_write(self, t, name, addr, data, off=0, rd=(), wr=()):
        return self.add(t, 'lds', lambda: self.p.ds_write(name, addr, data, off), [addr, data] + list(rd), wr,
                        svc=13 if name.endswith('128') else 4)

    def vmem(self, t, fn, rd=(), wr=(), lat=3000):
        return self.add(t, 'vmem', fn, rd, wr, lat=lat)

    def misc(self, t, fn, rd=(), wr=(), cost=1, lat=0):
        return self.add(t, 'misc', fn, rd, wr, cost=cost, lat=lat)

    def run(self, share=2.0, window=None, pace=None, tag=''):
        p, o = self.p, self.o
        window = o.get('win', 0.5) if window is None else window
        pace = o.get('pace', 56) if pace is None else pace
        base = o.get('ldslat', 128)
        margin = o.get('wmargin', 60)
        order = sorted(self.ops, key=lambda x: (x.t, x.seq))
        head = 0
        cand = [(x.t, x.seq, x) for x in self.ops if x.npred == 0]
        cand.sort()
        now = 0.0
        mf_next = m4_next = 0.0
        lds_free = 0.0
        fly = []
        stall = 0.0
        left = len(self.ops)
        marks = []
        last, held = None, 0
        clock = -1e9
        while left:
            while order[head].done:
                head += 1
            hor = order[head].t + window
            live = sum(1 for c, _ in fly if c > now)
            pick, nxt, alt = None, 1e18, None
            for k, (t, _, x) in enumerate(cand):
                if t > hor:
                    break
                if x.kind in ('misc', 'vmem') and t > max(clock, order[head].t):
                    continue
                r = x.ready
                if x.kind in ('mfma32', 'mfma16'):
                    r = max(r, mf_next)
                elif x.kind == 'mfma4':
                    r = max(r, m4_next)
                elif x.kind == 'lds' and live >= 14:
                    r = max(r, min(c for c, _ in fly if c > now))
                if r <= now:
                    if x.kind == 'lds' and x.mode and (last in ('valu', 'trans')) == (x.mode == 1) and held < 6:
                        if alt is None:
                            alt = k
                        continue
                    pick = k
                    break
                nxt = min(nxt, r)
            if pick is None:
                pick = alt
            held = held + 1 if (alt is not None and pick != alt) else 0
            if pick is None:
                stall += nxt - now
                now = nxt
                continue
            x = cand.pop(pick)[2]
            done = [s for c, s in fly if c <= now - margin]
            p.lgkm_hint = max(done) if done else 0
            s0 = p.lgkm_seq
            x.fn()
            p.lgkm_hint = 0
            x.done = True
            last = x.kind
            left -= 1
            fin = now + x.lat
            if x.kind in ('mfma32', 'mfma16'):
                clock = max(clock, x.t)
            if x.kind == 'lds':
                lds_free = max(lds_free, now) + x.svc * 4 * share * o.get('lsf', 0.85)
                fin = lds_free + base
                fly = [f for f in fly if f[1] > p.lgkm_done] + [(fin, p.lgkm_seq)]
            elif p.lgkm_seq != s0:
                fly = []
            elif x.kind == 'mfma32':
                mf_next = now + pace
                m4_next = now + o.get('m4d', 48)
            elif x.kind == 'mfma16':
                mf_next = now + pace / 2
            elif x.kind == 'mfma4':
                m4_next = now + 24
            now += x.cost * share
            if not marks or int(x.t) > marks[-1][0]:
                marks.append((int(x.t), int(now)))
            for y, full in x.succ.items():
                y.ready = max(y.ready, fin if full else now)
                y.npred -= 1
                if y.npred == 0:
                    lo, hi = 0, len(cand)
                    key = (y.t, y.seq)
                    while lo < hi:
                        mid = (lo + hi) // 2
                        if cand[mid][:2] < key:
                            lo = mid + 1
                        else:
                            hi = mid
                    cand.insert(lo, (y.t, y.seq, y))
        if o.get('show'):
            print(f'{tag}: model {int(now)} cycles, stalls {int(stall)}, ops {len(self.ops)}')
            print('   ', [b - a for (_, a), (_, b) in zip(marks, marks[1:])])
        self.ops, self.lastw, self.readers = [], {}, {}
```

```python
import math
import struct
import sys

from asmgen import *
from sched import Sched

NAME = 'standalone__modern_conv_block_convnext_v2__vision_kernel'


def f2u(x):
    return struct.unpack('<I', struct.pack('<f', x))[0]


def h2u(x):
    return struct.unpack('<H', struct.pack('<e', x))[0]


C2 = -2 * math.sqrt(2 / math.pi) * math.log2(math.e)
C1 = C2 * 0.044715
GA = -(abs(C1) ** (1.0 / 3.0))
GK = C2 / GA

HOLE = (0x1F00, 0x3F00)
W1F = 16384
R2 = W1F + 73728
RS = 6592
DIAG = R2 + 10 * RS
CNT = HOLE[0] + 192
C_PUB, C_W1A, C_W1B, C_F = 4, 8, 12, 16
SCO = 3072
TABO = 7168
LDS_BYTES = 163840
WS_P = 0
WS_TOT = 96 * 256 * 16
WS_STAMP = 1 << 20
WS_LN = 4 << 20
WS_BYTES = 80 << 20
OOB_V = 0x80000000
OOB_S = 0x40000000
X_BYTES = 512 * 512 * 96 * 2
ROWB = 512 * 192
LO = "dst_sel:WORD_0 dst_unused:UNUSED_PRESERVE src0_sel:WORD_0"
HI = "dst_sel:WORD_1 dst_unused:UNUSED_PRESERVE src0_sel:WORD_1"

sX, sOUT, sW1, sW2, sDW, sGA, sBE, sWS, sDBG = [S(4 + 4 * i, 4) for i in range(9)]
sWAVE, sX0, sY0, sT0, sT1, sT2, sT3 = [S(40 + i) for i in range(7)]
sK, sM = S(48), S(49)
sID = [S(50 + 2 * i, 2) for i in range(8)]
sIX = [S(88, 2), S(90, 2)]
sYB, sXM = S(66), S(67)
sTILE = [S(68 + i) for i in range(4)]
sPRIV = S(72)
sSTAMP = S(73)
sEX = S(74, 2)
sCNT = S(76)
sROLE = S(77)
sRET = S(78, 2)
sLNB, sSL, sW2B, sFC = S(80), S(81), S(82), S(83)
sLD = S(80, 16)
sTM = S(96, 2)
sRT = S(98, 2)


class Gen:
    def __init__(self, opt):
        self.o = opt
        self.p = Prog()
        self.nstamp = 0
        self.rc = {}

    def stamp(self, tb):
        if not self.o.get('stamps'):
            return
        p = self.p
        t = V(tb, 4)
        p.raw(f"s_memtime {sTM}")
        p.raw(f"s_memrealtime {sRT}")
        p.raw("s_waitcnt lgkmcnt(0)")
        p.lgkm_done = p.lgkm_seq
        for i in range(4):
            p.valu("v_mov_b32", t.sub(i), S(sTM.b + i))
        p.salu("s_sub_u32", sT0, sSTAMP, W1F)
        p.raw("s_mov_b64 exec, 1")
        p.buf_store("buffer_store_dwordx4", t, self.vA[0], sWS, sT0, 16 * self.nstamp)
        p.raw("s_mov_b64 exec, -1")
        p.nop(2)
        self.nstamp += 1

    def fine(self, s, times, tag):
        if self.o.get('fine') != tag:
            return
        p = self.p

        def one(k):
            if k:
                p.raw(f"v_writelane_b32 v249, s{84 + 2 * ((k - 1) % 2)}, {k - 1}")
            p.raw(f"s_memtime s[{84 + 2 * (k % 2)}:{85 + 2 * (k % 2)}]")
        for k, t in enumerate(times):
            s.misc(t, lambda k=k: one(k), wr=['@fine'])
        self.nfine = len(times)

    def mark(self):
        if self.o.get('fine') != 'su':
            return
        k = self.nfine = getattr(self, 'nfine', -1) + 1
        self.p.raw("s_memtime s[100:101]")
        self.p.raw("s_waitcnt lgkmcnt(0)")
        self.p.raw(f"v_writelane_b32 v249, s100, {k}")

    def fine_flush(self, tag):
        if self.o.get('fine') != tag:
            return
        p, k = self.p, self.nfine
        p.raw(f"s_memtime s[{84 + 2 * (k % 2)}:{85 + 2 * (k % 2)}]")
        p.raw("s_waitcnt lgkmcnt(0)")
        for i in (k - 1, k):
            p.raw(f"v_writelane_b32 v249, s{84 + 2 * (i % 2)}, {i}")
        p.salu("s_lshl_b32", sT0, S(2), 3)
        p.salu("s_add_u32", sT0, sT0, sWAVE)
        p.salu("s_lshl_b32", sT0, sT0, 10)
        p.salu("s_add_u32", sT0, sT0, (2 << 20) - W1F)
        p.buf_store("buffer_store_dword", V(249), self.vA[0], sWS, sT0)

    def frag(self, idx):
        return self.vA[idx >> 6], (idx & 63) * 1024

    def ring(self, rg):
        k = self.rc.get(id(rg), 0)
        self.rc[id(rg)] = k + 1
        return rg[k % len(rg)]

    def srd(self, d, ptr, nbytes):
        p = self.p
        p.salu("s_mov_b32", d.sub(0), ptr.sub(0))
        p.salu("s_and_b32", d.sub(1), ptr.sub(1), 0xFFFF)
        p.salu("s_mov_b32", d.sub(2), nbytes)
        p.salu("s_mov_b32", d.sub(3), 0x20000)

    def lane_sum64(self, v, t):
        p = self.p
        for r in (8, 4, 2, 1):
            p.valu("v_add_f32_dpp", v, v, v, mods=f"row_ror:{r} row_mask:0xf bank_mask:0xf")
        p.valu("v_mov_b32", t, v)
        p.swap16(v, t)
        p.valu("v_add_f32", v, v, t)
        p.valu("v_mov_b32", t, v)
        p.swap32(v, t)
        p.valu("v_add_f32", v, v, t)

    def lane(self, dst):
        self.p.valu("v_bfe_u32", dst, self.vA[0], 4, 6)

    def call_if(self, older, names, tag):
        p = self.p
        p.salu("s_cmp_lt_u32" if older else "s_cmp_ge_u32", sWAVE, 4)
        p.raw(f"s_cbranch_scc0 {tag}")
        p.cond_begin()
        for n in names:
            p.raw(n if n.startswith("s_") else f"s_call_b64 {sRET}, {n}")
        p.cond_end()
        p.lines.append(f"{tag}:")

    def alloc(self):
        self.LN = [V(24 * t, 24) for t in range(4)]
        self.CA = [V(0, 48), V(48, 48), V(48, 48), V(96, 48)]
        self.Y1 = [V(96 + 16 * i, 16) for i in range(self.o.get('ny', 5))]
        self.ring1 = [V(176 + 4 * i, 4) for i in range(4)]
        self.ringA = [V(192 + 4 * i, 4) for i in range(5)]
        self.ringB = [V(144 + 4 * i, 4) for i in range(8)]
        self.vB = [V(212 + i) for i in range(4)]
        self.ls = [[V(240, 2), V(242, 2), V(244, 2)], [V(216, 2), V(218, 2), V(220, 2)]]
        self.tq = V(222, 2)
        self.SQ = [V(224 + i) for i in range(12)]
        self.vX, self.vC = [V(236), V(237)], [V(238), V(239)]
        self.vB0, self.vCnt, self.vS = V(246), V(247), V(248)
        self.vA = [V(250), V(251), V(252)]
        self.vG, self.vBias, self.vI = V(253), V(254), V(255)
        self.Y = [V(120 + 16 * i, 16) for i in range(3)]
        self.ringW = [V(168 + 4 * i, 4) for i in range(6)]
        hexs = lambda k, d: [int(c, 16) for c in str(self.o.get(k, d)) if c != 'n']
        self.keep = hexs('keep', '456789ab')
        self.sp = {0: hexs('sp0', 'n'), 1: hexs('sp1', 'n'), 2: [], 3: []}
        self.spi = {(ti, j): 6 + 2 * n for n, (ti, j) in enumerate((ti, j) for ti in (0, 1) for j in self.sp[ti])}
        fifo = [0, 8, 16, 96, 104, 112, 192, 200, 208, 216, 224, 232]
        kb = [0, 8, 16, 192, 200, 208, 96, 104][:len(self.keep)]
        assert self.keep[6:] == [10, 11][8 - len(self.keep):] or len(self.keep) <= 6
        self.todo = [j for j in range(12) if j not in self.keep]
        col = dict(zip(kb, self.keep))
        col.update(zip([b for b in fifo if b not in kb], self.todo))
        self.fifo = [(col[b], V(b, 8)) for b in fifo]
        self.blk3 = {j: b for j, b in self.fifo}

    def signal(self, off, dyn=False):
        p = self.p
        a, b = self.tq.sub(0), self.tq.sub(1)
        p.valu("v_mov_b32", b, 1)
        if dyn:
            p.valu("v_add_u32", a, sFC, self.vCnt)
        p.wait_all(vm=False)
        p.raw("s_mov_b64 exec, 1")
        p.ds_write("ds_add_u32", a if dyn else self.vCnt, b, off)
        p.raw("s_mov_b64 exec, -1")

    def await_(self, off, n, dyn=False, tq=None):
        p = self.p
        tq = tq or self.tq
        a, b = tq.sub(0), tq.sub(1)
        k = self.nawait = getattr(self, 'nawait', 0) + 1
        if dyn:
            p.valu("v_add_u32", a, sFC, self.vCnt)
        p.valu("v_mov_b32", b, 0)
        p.raw(f"s_branch Law{k}")
        p.lines.append(f"Lax{k}:")
        p.raw("s_sleep 2")
        p.lines.append(f"Law{k}:")
        p.raw(f"ds_read_b32 {b}, {a if dyn else self.vCnt} offset:{off}")
        p.raw(f"s_sub_u32 {sCNT}, {sCNT}, 1")
        p.raw(f"s_cselect_b32 {sT1}, {n}, 0")
        p.raw(f"s_cselect_b32 {sCNT}, 0, {sCNT}")
        p.raw("s_waitcnt lgkmcnt(0)")
        p.raw(f"v_readfirstlane_b32 {sT0}, {b}")
        p.raw("s_nop 1")
        p.raw(f"s_max_u32 {sT0}, {sT0}, {sT1}")
        p.raw(f"s_cmp_lt_u32 {sT0}, {n}")
        p.raw(f"s_cbranch_scc1 Lax{k}")
        p.lgkm_seq += 1
        p.lgkm_done = p.lgkm_seq

    def row0_dma(self, R, k=0):
        p = self.p
        p.salu("s_add_u32", "m0", sXM, R * RS + ((R >> 1) & 3) * 16 + 896 * k)
        so = sYB
        if R == 0:
            p.salu("s_sub_u32", sT2, sYB, ROWB)
            p.salu("s_cmp_eq_u32", sY0, 0)
            p.salu("s_cselect_b32", sT2, OOB_S, sT2)
            so = sT2
        elif R > 1:
            p.salu("s_add_u32", sYB, sYB, ROWB)
        p.dma(self.vX[k], sX, so, flags='nt' if self.o.get('nt0', 0) else '')

    def row_dma(self, R):
        p = self.p
        p.salu("s_add_u32", sSL, sSL, RS)
        p.salu("s_cmp_eq_u32", sSL, 10 * RS)
        p.salu("s_cselect_b32", sSL, 0, sSL)
        p.salu("s_add_u32", sT0, sSL, sXM)
        p.salu("s_add_u32", "m0", sT0, ((R >> 1) & 3) * 16)
        p.salu("s_add_u32", sYB, sYB, ROWB)
        p.dma(self.vX[0], sX, sYB)
        p.salu("s_add_u32", "m0", sT0, ((R >> 1) & 3) * 16 + 896)
        self.x_tok = p.dma(self.vX[1], sX, sYB)

    def skip_round(self):
        p = self.p
        p.salu("s_add_u32", sYB, sYB, 8 * ROWB)
        p.salu("s_sub_u32", sSL, sSL, 2 * RS)

    def touch_rows(self, a, b):
        p = self.p
        self.lane(b)
        p.valu("v_and_b32", a, 15, b)
        p.valu("v_lshlrev_b32", a, 7, a)
        p.valu("v_lshrrev_b32", b, 4, b)
        p.valu("v_mul_u32_u24", b, ROWB, b)
        p.salu("s_sub_u32", sT0, sXM, R2 + 192 - ROWB)
        p.salu("s_mul_i32", sT1, sX0, 192)
        p.salu("s_add_u32", sT0, sT0, sT1)
        p.valu("v_add3_u32", a, a, b, sT0)
        p.salu("s_mov_b32", "m0", LDS_BYTES)
        p.salu("s_add_u32", sT1, sYB, 4 * ROWB)
        for so in (sYB, sT1):
            p.raw(f"buffer_load_dword {a}, {sX}, {so} offen lds")
            p.vm_seq += 1

    def conv_addr(self):
        p = self.p
        a = self.tq.sub(0)
        p.salu("s_add_u32", sT0, sSL, RS)
        for k in range(4):
            p.valu("v_add_u32", self.vB[k], sT0, self.vB0)
            if k:
                p.valu("v_add_u32", self.vB[k], k * RS, self.vB[k])
            if k >= 2:
                p.valu("v_add_u32", a, 16, self.vB[k])
                p.valu("v_bfi_b32", self.vB[k], 48, a, self.vB[k])
            p.valu("v_subrev_u32", a, 10 * RS, self.vB[k])
            p.valu("v_min_u32", self.vB[k], self.vB[k], a)
            p.valu("v_add_u32", self.vB[k], R2, self.vB[k])

    def w1_dma(self, u):
        p = self.p
        p.salu("s_and_b32", sT0, sWAVE, 3)
        p.salu("s_add_u32", sT0, sT0, 4 * u)
        p.salu("s_mul_i32", sT1, sT0, 43)
        p.salu("s_lshr_b32", sT1, sT1, 8)
        p.salu("s_lshl_b32", sT3, sT0, 10)
        p.salu("s_add_u32", "m0", sT3, W1F)
        p.salu("s_mul_i32", sT3, sT1, 6)
        p.salu("s_sub_u32", sT0, sT0, sT3)
        p.salu("s_mul_i32", sT0, sT0, 12288)
        p.salu("s_lshl_b32", sT1, sT1, 6)
        p.salu("s_add_u32", sT0, sT0, sT1)
        return p.dma(self.vW1g, sW1, sT0)

    def tr_addr(self, dst, lane, t0, hshift):
        p = self.p
        p.valu("v_lshrrev_b32", t0, 5, lane)
        p.valu("v_lshlrev_b32", dst, hshift, t0)
        p.valu("v_bfe_u32", t0, lane, 2, 2)
        p.valu("v_lshl_add_u32", dst, t0, 6, dst)
        p.valu("v_bfe_u32", t0, lane, 4, 1)
        p.valu("v_lshl_add_u32", dst, t0, 5, dst)
        p.valu("v_and_b32", t0, 1, lane)
        p.valu("v_lshl_add_u32", dst, t0, 4, dst)
        p.valu("v_bfe_u32", t0, lane, 1, 1)
        p.valu("v_lshl_add_u32", dst, t0, 3, dst)

    def prologue(self):
        p, o = self.p, self.o
        p.salu("s_cmp_ge_u32", S(2), 256)
        p.raw("s_cbranch_scc1 Lend")
        p.raw(f"s_load_dwordx16 {sLD}, s[0:1], 0")
        p.raw(f"s_load_dwordx2 {sTM}, s[0:1], 64")
        if o.get('stamps'):
            p.raw("s_memtime s[68:69]")
            p.raw("s_memrealtime s[70:71]")
        self.mark()
        tid, lane = V(119), V(118)
        t = [V(120 + i) for i in range(48)]
        p.valu("v_mov_b32", tid, V(0))
        p.valu("v_and_b32", lane, 63, V(0))
        p.valu("v_lshrrev_b32", t[0], 6, V(0))
        p.valu("v_readfirstlane_b32", sWAVE, t[0])
        p.raw(f"s_getpc_b64 {sEX}")
        p.lines.append("Lpc:")
        p.salu("s_lshr_b32", sT0, S(2), 3)
        p.salu("s_and_b32", sT0, sT0, 15)
        p.salu("s_lshl_b32", sT0, sT0, 13)
        p.valu("v_lshrrev_b32", t[2], 3, V(0))
        p.valu("v_lshl_add_u32", t[2], t[2], 7, sT0)
        p.valu("v_min_u32", t[2], "Lend-Lpc", t[2])
        if o.get('pf', 1):
            p.raw(f"global_load_dword v112, {t[2]}, {sEX}")
            p.vm_seq += 1
        p.salu("s_and_b32", sT0, S(2), 7)
        p.salu("s_lshr_b32", sT1, S(2), 3)
        p.salu("s_and_b32", sX0, sT0, 3)
        p.salu("s_lshl_b32", sX0, sX0, 2)
        p.salu("s_and_b32", sT2, sT1, 3)
        p.salu("s_add_u32", sX0, sX0, sT2)
        p.salu("s_lshr_b32", sY0, sT0, 2)
        p.salu("s_lshl_b32", sY0, sY0, 3)
        p.salu("s_lshr_b32", sT2, sT1, 2)
        p.salu("s_add_u32", sY0, sY0, sT2)
        p.salu("s_lshl_b32", sX0, sX0, 5)
        p.salu("s_lshl_b32", sY0, sY0, 5)
        p.salu("s_and_b32", sT0, sWAVE, 3)
        p.salu("s_mul_i32", sT0, sT0, 1536)
        p.salu("s_add_u32", sXM, sT0, R2)
        p.salu("s_mul_i32", sT1, sX0, 192)
        p.salu("s_add_u32", sT0, sT0, sT1)
        p.salu("s_sub_u32", sT0, sT0, 192)
        p.valu("v_lshl_add_u32", t[1], lane, 4, sT0)
        p.valu("v_add_u32", t[3], 896, t[1])
        p.valu("v_mov_b32", t[2], OOB_V)
        p.salu("s_mov_b32", sT1, ROWB)
        p.valu("v_cmp_gt_u32", "vcc", sT1, t[1])
        p.valu("v_cndmask_b32", self.vX[0], t[2], t[1], "vcc")
        p.valu("v_cmp_gt_u32", "vcc", sT1, t[3])
        p.valu("v_cndmask_b32", self.vX[1], t[2], t[3], "vcc")
        p.salu("s_mul_i32", sYB, sY0, ROWB)
        dv, di = V(126, 2), t[8]
        p.valu("v_min_u32", di, 215, tid)
        p.valu("v_lshlrev_b32", t[10], 3, di)
        p.valu("v_lshlrev_b32", self.vA[0], 4, lane)
        p.raw("s_waitcnt lgkmcnt(0)")
        self.srd(sX, sLD.sub(0, 2), X_BYTES)
        self.mark()
        p.salu("s_cmp_ge_u32", sWAVE, 4)
        p.raw("s_cbranch_scc1 Lrowb")
        p.cond_begin()
        self.srd(sDW, sLD.sub(2, 2), 1728)
        p.buf_load("buffer_load_dwordx2", dv, t[10], sDW)
        for R in range(10):
            self.row0_dma(R)
        p.raw("s_branch Lsetup")
        p.cond_end()
        p.lines.append("Lrowb:")
        p.cond_begin()
        for R in range(10):
            self.row0_dma(R, 1)
        self.mark()
        self.srd(sW1, sLD.sub(4, 2), 73728)
        p.valu("v_lshrrev_b32", self.vW1g, 2, lane)
        p.valu("v_mul_u32_u24", self.vW1g, 768, self.vW1g)
        p.valu("v_and_b32", t[5], 3, lane)
        p.valu("v_lshl_add_u32", self.vW1g, t[5], 4, self.vW1g)
        tp = o.get('tp', 6)
        for u in range(6):
            self.w1_dma(u)
        if tp == 6:
            self.touch_rows(t[20], t[21])
        self.mark()
        p.raw(f"s_waitcnt vmcnt({8 if tp == 6 else 6})")
        self.mark()
        p.barrier()
        p.raw("s_setprio %d" % o.get('bp', 0))
        for u in range(6, 18):
            self.w1_dma(u)
            if u + 1 == tp:
                self.touch_rows(t[20], t[21])
        p.cond_end()
        p.lines.append("Lsetup:")
        self.mark()
        self.srd(sW2, sLD.sub(6, 2), 73728)
        self.srd(sGA, sLD.sub(8, 2), 768)
        self.srd(sBE, sLD.sub(10, 2), 768)
        self.srd(sOUT, sLD.sub(12, 2), X_BYTES)
        self.srd(sDBG, sLD.sub(14, 2), 256)
        self.srd(sWS, sTM, WS_BYTES)
        for i in range(3):
            p.valu("v_lshlrev_b32", self.vA[i], 4, lane)
            p.valu("v_add_u32", self.vA[i], W1F + 65536 * i, self.vA[i])
        p.salu("s_lshl_b32", sSTAMP, S(2), 3)
        p.salu("s_add_u32", sSTAMP, sSTAMP, sWAVE)
        p.salu("s_lshl_b32", sLNB, sSTAMP, 10)
        p.salu("s_add_u32", sLNB, sLNB, WS_LN - W1F)
        p.salu("s_mul_i32", sSTAMP, sSTAMP, 16 * o.get('stamps', 1))
        p.salu("s_add_u32", sSTAMP, sSTAMP, WS_STAMP)
        if o.get('stamps'):
            for i in range(4):
                p.valu("v_mov_b32", V(188 + i), S(68 + i))
            p.salu("s_sub_u32", sT0, sSTAMP, W1F)
            p.raw("s_mov_b64 exec, 1")
            p.buf_store("buffer_store_dwordx4", V(188, 4), self.vA[0], sWS, sT0, 0)
            p.raw("s_mov_b64 exec, -1")
            self.nstamp += 1
        p.salu("s_mov_b32", sK, h2u(GK) * 0x10001)
        p.salu("s_mov_b32", sM, 0xFFF8FFF8)
        m, g = t[11], t[12]
        p.valu("v_and_b32", m, 15, lane)
        p.valu("v_lshrrev_b32", g, 4, lane)
        p.valu("v_and_b32", t[13], 3, m)
        p.valu("v_mul_u32_u24", t[14], 2 * RS + 16, t[13])
        p.valu("v_lshrrev_b32", t[13], 2, m)
        p.valu("v_lshl_add_u32", t[13], t[13], 1, g)
        p.valu("v_mul_u32_u24", t[13], 192, t[13])
        p.salu("s_sub_u32", sT0, sXM, R2)
        p.valu("v_add3_u32", self.vB0, t[13], t[14], sT0)
        p.valu("v_bfe_u32", t[13], m, 2, 1)
        p.valu("v_sub_u32", t[13], g, t[13])
        p.valu("v_lshrrev_b32", t[14], 3, m)
        p.valu("v_and_b32", t[15], 3, m)
        p.valu("v_lshl_add_u32", t[15], t[14], 2, t[15])
        p.valu("v_lshlrev_b32", t[16], 6, t[13])
        p.valu("v_lshl_add_u32", t[16], t[15], 3, t[16])
        p.valu("v_add_u32", t[16], DIAG + 8, t[16])
        p.valu("v_mov_b32", t[17], DIAG)
        p.valu("v_cmp_gt_u32", "vcc", 3, t[13])
        p.valu("v_cndmask_b32", t[16], t[17], t[16], "vcc")
        p.valu("v_cmp_eq_u32", "vcc", 0, t[14])
        p.valu("v_cndmask_b32", self.vC[0], t[17], t[16], "vcc")
        p.valu("v_cndmask_b32", self.vC[1], t[16], t[17], "vcc")
        p.valu("v_lshrrev_b32", t[13], 2, m)
        p.valu("v_bfe_u32", t[15], m, 1, 1)
        p.valu("v_cmp_eq_u32", "vcc", t[13], g)
        p.valu("v_cndmask_b32", t[15], 8, t[15], "vcc")
        for i in range(2):
            p.valu("v_cmp_eq_u32", sIX[i], i, t[15])
        p.valu("v_lshlrev_b32", self.vBias, 5, g)
        p.valu("v_add_u32", self.vBias, HOLE[0], self.vBias)
        p.valu("v_lshlrev_b32", self.vG, 4, g)
        n, h = t[11], t[12]
        p.valu("v_and_b32", n, 31, lane)
        p.valu("v_lshrrev_b32", h, 5, lane)
        p.valu("v_bfe_u32", t[13], n, 2, 1)
        p.valu("v_bfe_u32", t[14], n, 3, 1)
        p.valu("v_bfe_u32", t[15], n, 1, 1)
        p.valu("v_lshrrev_b32", t[16], 4, n)
        p.valu("v_lshl_add_u32", t[15], t[16], 1, t[15])
        p.valu("v_lshl_add_u32", t[15], t[14], 2, t[15])
        p.valu("v_cmp_eq_u32", "vcc", t[13], h)
        p.valu("v_cndmask_b32", t[15], 8, t[15], "vcc")
        for i in range(8):
            p.valu("v_cmp_eq_u32", sID[i], i, t[15])
        p.valu("v_and_b32", t[16], 1, n)
        p.valu("v_lshlrev_b32", t[16], 4, t[16])
        p.valu("v_mov_b32", self.vI, 0x3F80)
        p.valu("v_lshlrev_b32", self.vI, t[16], self.vI)
        p.valu("v_and_b32", t[17], 19, n)
        p.valu("v_lshl_add_u32", t[17], t[13], 3, t[17])
        p.valu("v_lshl_add_u32", t[17], t[14], 2, t[17])
        p.valu("v_lshlrev_b32", t[17], 2, t[17])
        p.valu("v_lshl_add_u32", t[17], h, 7, t[17])
        p.salu("s_mul_i32", sW2B, sWAVE, 9216)
        p.salu("s_add_u32", sPRIV, sW2B, R2)
        p.valu("v_add_u32", self.vS, sPRIV, t[17])
        p.valu("v_and_b32", t[13], 3, lane)
        p.valu("v_mul_u32_u24", t[14], 2 * ROWB, t[13])
        p.valu("v_bfe_u32", t[13], lane, 2, 2)
        p.valu("v_mul_u32_u24", t[13], 384, t[13])
        p.valu("v_add3_u32", self.vG, self.vG, t[13], t[14])
        p.salu("s_mul_i32", sT3, sX0, 192)
        p.salu("s_add_u32", sT3, sT3, sXM)
        p.salu("s_sub_u32", sT3, sT3, R2)
        p.salu("s_and_b32", sFC, sWAVE, 4)
        p.salu("s_lshl_b32", sT1, sFC, 1)
        p.salu("s_add_u32", sT1, sT1, sY0)
        for ti in range(4):
            p.salu("s_add_u32", sT0, sT1, 16 * (ti >> 1) + (ti & 1))
            p.salu("s_mul_i32", sT0, sT0, ROWB)
            p.salu("s_add_u32", sTILE[ti], sT0, sT3)
        p.salu("s_mov_b32", sSL, 9 * RS)
        p.salu("s_mov_b32", sCNT, 200000)
        p.valu("v_mov_b32", self.vCnt, CNT)
        self.tr_addr(self.vW1r, lane, t[28], 8)
        p.salu("s_and_b32", sT0, sWAVE, 3)
        p.salu("s_lshl_b32", sT0, sT0, 10)
        p.valu("v_add_u32", self.vW1w, sT0, self.vA[0])
        p.salu("s_add_u32", sT0, sT0, W1F)
        p.valu("v_add_u32", self.vW1r, sT0, self.vW1r)
        for r in self.SQ:
            p.valu("v_mov_b32", r, 0)
        self.mark()
        p.salu("s_cmp_ge_u32", sWAVE, 4)
        p.raw("s_cbranch_scc1 Lwa")
        p.cond_begin()
        ch = [V(64 + 2 * k, 2) for k in range(5)]
        for r in (ch[0].sub(1), ch[1].sub(1), ch[2].sub(0), ch[3].sub(0), ch[4].sub(0), ch[4].sub(1)):
            p.valu("v_mov_b32", r, 0)
        p.valu("v_min_u32", t[20], 35, tid)
        p.valu("v_mul_u32_u24", t[20], 200, t[20])
        p.valu("v_add_u32", t[20], DIAG, t[20])
        p.valu("v_and_b32", t[21], 3, tid)
        p.valu("v_lshl_add_u32", t[21], t[21], 3, self.vCnt)
        p.valu("v_cmp_gt_u32", "vcc", 64, tid)
        p.valu("v_cndmask_b32", t[20], t[21], t[20], "vcc")
        p.ds_write("ds_write_b64", t[20], ch[4])
        p.valu("v_lshrrev_b32", t[20], 1, di)
        p.valu("v_mul_u32_u24", t[21], 57, t[20])
        p.valu("v_lshrrev_b32", t[21], 11, t[21])
        p.valu("v_mul_u32_u24", t[22], 171, t[20])
        p.valu("v_lshrrev_b32", t[22], 11, t[22])
        p.valu("v_mul_u32_u24", t[20], 200, t[20])
        p.valu("v_mul_u32_u24", t[22], 2400 - 64, t[22])
        p.valu("v_mul_u32_u24", t[21], 2400 - 192, t[21])
        p.valu("v_sub_u32", t[20], t[20], t[22])
        p.valu("v_add_u32", t[20], t[20], t[21])
        p.valu("v_and_b32", t[21], 1, di)
        p.valu("v_lshl_add_u32", t[20], t[21], 5, t[20])
        p.valu("v_add_u32", t[20], DIAG + 8, t[20])
        self.gelu_table()
        p.raw("s_waitcnt vmcnt(10)")
        for r in dv.regs():
            p.p_vm[r] = None
        for k in range(4):
            p.valu("v_and_b32", ch[k].sub(k >> 1), (0xFFFF, 0xFFFF0000)[k & 1], dv.sub(k >> 1))
            p.ds_write("ds_write_b64", t[20], ch[k], 8 * k)
        self.mark()
        p.raw("s_waitcnt vmcnt(0) lgkmcnt(0)")
        self.mark()
        p.barrier()
        p.cond_end()
        p.lines.append("Lwa:")
        p.vm_done, p.lgkm_done = p.vm_seq, p.lgkm_seq
        self.mark()
        self.stamp(188)
        self.stamp(188)

    def gelu_table(self):
        p = self.p
        tid, t = V(119), [V(120 + i) for i in range(4)]
        y = [V(i) for i in range(32)]
        e = [V(32 + i) for i in range(32)]
        p.valu("v_and_b32", t[0], 255, tid)
        p.valu("v_lshlrev_b32", t[1], 8, t[0])
        for i in range(32):
            p.valu("v_add_u32", y[i], 8 * i + 4, t[1])
            p.valu("v_cvt_f32_f16", y[i], y[i])
        for i in range(32):
            p.valu("v_fmaak_f32", e[i], y[i], y[i], hex(f2u(GK)))
            p.valu("v_mul_f32", e[i], y[i], e[i])
        for i in range(32):
            p.valu("v_exp_f32", e[i], e[i])
        for i in range(32):
            p.valu("v_add_f32", e[i], "1.0", e[i])
        for i in range(32):
            p.valu("v_rcp_f32", e[i], e[i])
        for i in range(32):
            p.valu("v_mul_f32", y[i], y[i], e[i])
        for i in range(16):
            p.valu("v_cvt_pk_f16_f32", e[i], y[2 * i], y[2 * i + 1])
        p.valu("v_lshlrev_b32", t[1], 6, t[0])
        p.valu("v_bfe_u32", t[0], t[0], 2, 5)
        p.valu("v_cmp_ne_u32", "vcc", 31, t[0])
        p.raw(f"s_and_saveexec_b64 {sEX}, vcc")
        for i in range(4):
            p.ds_write("ds_write_b128", t[1], V(32 + 4 * i, 4), 16 * i)
        p.raw(f"s_mov_b64 exec, {sEX}")

    def sentinels(self):
        p = self.p
        t = [V(100 + i) for i in range(6)]
        sv = V(108, 4)
        p.salu("s_cmp_lg_u32", sWAVE, 7)
        p.raw("s_cbranch_scc1 Lnosent")
        p.cond_begin()
        lane = t[4]
        self.lane(lane)
        for i in range(4):
            p.valu("v_mov_b32", sv.sub(i), -1)
        p.valu("v_lshlrev_b32", t[0], 12, lane)
        p.valu("v_add_u32", t[1], 64 * 4096, t[0])
        p.valu("v_cmp_gt_u32", "vcc", 32, lane)
        p.valu("v_mov_b32", t[5], OOB_V)
        p.valu("v_cndmask_b32", t[1], t[5], t[1], "vcc")
        p.salu("s_lshl_b32", sT0, S(2), 4)
        p.raw(f"buffer_store_dwordx4 {sv}, {t[0]}, {sWS}, {sT0} offen sc1")
        p.raw(f"buffer_store_dwordx4 {sv}, {t[1]}, {sWS}, {sT0} offen sc1")
        p.salu("s_add_u32", sT0, sT0, WS_TOT)
        p.salu("s_cmp_lt_u32", S(2), 96)
        p.salu("s_cselect_b32", sT0, sT0, OOB_S)
        p.valu("v_lshlrev_b32", t[3], 11, lane)
        p.raw("s_mov_b64 exec, 0xff")
        p.raw(f"buffer_store_dwordx4 {sv}, {t[3]}, {sWS}, {sT0} offen sc1")
        p.raw("s_mov_b64 exec, -1")
        p.nop(2)
        p.cond_end()
        p.lines.append("Lnosent:")

    def init_counter(self):
        p = self.p
        p.salu("s_cmp_lg_u32", sWAVE, 7)
        p.raw("s_cbranch_scc1 Lnoinit")
        p.cond_begin()
        p.raw("s_waitcnt vmcnt(0)")
        p.raw(f"v_mov_b32 {self.tq.sub(0)}, 1")
        p.raw(f"v_mov_b32 {self.tq.sub(1)}, 0")
        p.raw("s_mov_b64 exec, 1")
        p.raw(f"buffer_atomic_add {self.tq.sub(0)}, {self.tq.sub(1)}, {sDBG}, 0 offen")
        p.raw("s_mov_b64 exec, -1")
        p.nop(2)
        p.cond_end()
        p.lines.append("Lnoinit:")

    def stats(self, s, t, ti, cb):
        acc = self.CA[ti].sub(4 * cb, 4)
        s2, q2 = self.ls[ti & 1][:2]
        if self.o.get('lnpk', 1):
            for k in range(2):
                c2 = acc.sub(2 * k, 2)
                if cb == 0 and k == 0:
                    last = [self.CA[ti | 1].sub(44, 4)]
                    s.valu(t, "v_pk_mul_f32", q2, c2, c2, rd=last)
                    s.valu(t, "v_pk_add_f32", s2, c2, acc.sub(2, 2), rd=last)
                else:
                    s.valu(t, "v_pk_fma_f32", q2, c2, c2, q2)
                    if cb:
                        s.valu(t, "v_pk_add_f32", s2, s2, c2)
            return
        for k in range(4):
            c, sa, qa = acc.sub(k), s2.sub(k & 1), q2.sub(k & 1)
            if cb == 0 and k < 2:
                s.valu(t, "v_mul_f32", qa, c, c)
                s.valu(t, "v_add_f32", sa, c, acc.sub(k + 2))
            else:
                s.valu(t, "v_fmac_f32", qa, c, c, rmw=True)
                if cb:
                    s.valu(t, "v_add_f32", sa, sa, c)

    def conv(self, s, blk, t0, t1, rd=(), wr=()):
        dt = (t1 - t0) / 72
        mode, s.mode = s.mode, self.o.get('dsc', 1)
        late = self.o.get('late', 1)
        for cb in range(12):
            t = t0 + 6 * cb * dt
            F = []
            for k in range(4):
                F.append(self.ring(self.ringB))
                s.ds_read(t + (k - 7) * dt, "ds_read_b128", F[k], self.vB[k], cb * 16, rd=rd)
            for dy in range(3):
                a = self.ring(self.ringA)
                for k in range(2):
                    s.ds_read(t + (2 * dy - 7) * dt, "ds_read_b64", a.sub(2 * k, 2), self.vC[k], (dy * 12 + cb) * 200)
                for par in range(2):
                    acc = self.CA[2 * blk + par].sub(4 * cb, 4)
                    s.mfma(t + (2 * dy + par) * dt, acc, a, F[dy + par], acc if dy else 0, rd=wr)
            if not late:
                for par in range(2):
                    self.stats(s, t + (9 + 3 * par) * dt, 2 * blk + par, cb)
        s.mode = mode
        if late:
            for cb in range(12):
                for par in range(2):
                    self.stats(s, t1 + 0.01, 2 * blk + par, cb)

    def ln(self, s, ti, t0, t1):
        C, D, ls, pk = self.CA[ti], self.LN[ti], self.ls[ti & 1], self.o.get('lnpk', 1)
        a, a1, q, q1, rs, off = [ls[i // 2].sub(i % 2) for i in range(6)]
        ts = t0 - (t1 - t0) * (ti & 1)
        s.valu(ts, "v_add_f32", a, a, a1)
        s.valu(ts, "v_add_f32", q, q, q1)
        s.swap(ts, 32, a, q)
        s.valu(ts, "v_add_f32", a, a, q)
        s.valu(ts, "v_mul_f32", a, f2u(1.0 / 96), a)
        s.valu(ts, "v_mov_b32", q, a)
        s.swap(ts, 32, a, q)
        s.valu(ts, "v_fma_f32", q, f"-{a}", a, q, rd=[a])
        s.valu(ts, "v_max_f32", q, 0, q)
        s.valu(ts, "v_add_f32", q, f2u(1e-5), q)
        s.valu(ts, "v_rsq_f32", q, q)
        s.valu(ts, "v_mul_f32", rs, f2u(GA), q)
        s.valu(ts, "v_mul_f32", off, a, rs)
        for i in range(24):
            t = t0 + (t1 - t0) * i / 24
            if pk:
                s.valu(t, "v_pk_fma_f32", C.sub(2 * i, 2), C.sub(2 * i, 2), ls[2], ls[2],
                       mods="op_sel:[0,0,1] op_sel_hi:[1,0,1] neg_lo:[0,0,1] neg_hi:[0,0,1]")
            else:
                for k in range(2):
                    s.valu(t, "v_fma_f32", C.sub(2 * i + k), C.sub(2 * i + k), rs, f"-{off}", rd=[off])
            s.valu(t, "v_cvt_pk_bf16_f32", D.sub(i), C.sub(2 * i), C.sub(2 * i + 1))

    def gemm1(self, s, t0, j, ln, y, pixel_lane, ringW, span=1.0, rd=()):
        for s6 in range(6):
            t = t0 + span * s6 / 6
            w = self.ring(ringW)
            a, off = self.frag(j * 6 + s6)
            s.ds_read(t - self.o.get('lead', 0.8), "ds_read_b128", w, a, off, rd=rd)
            b = ln.sub(4 * s6, 4)
            if pixel_lane:
                s.mfma(t, y, w, b, y if s6 else 0)
            else:
                s.mfma(t, y, b, w, y if s6 else 0)

    def gelu32(self, s, t0, y, nl, blk, acc=None, idk=None):
        self.gelu(s, t0, y, nl, dst=[blk.sub(i) for i in (0, 1, 4, 5, 2, 3, 6, 7)])
        t = t0 + self.o.get('fin', 0.9) + self.o.get('lw', 0.55)
        if acc is not None:
            for q in range(2):
                s.mfma(t + 0.1 * q, y, blk.sub(4 * q, 4), idk.sub(4 * q, 4), y if q else 0, 'f16')
            for i in range(16):
                s.valu(t + 0.35 + 0.02 * i, "v_fmac_f32", acc, y.sub(i), y.sub(i), rmw=True)
            t += 0.15
        for i in range(4):
            s.swap(t, 16, blk.sub(i), blk.sub(4 + i))
        return t

    def gelu(self, s, t0, y, nl, acc=None, dst=None):
        o = self.o
        lw, fin = o.get('lw', 0.55), o.get('fin', 0.9)
        mixlo, mixhi = "op_sel_hi:[1,1,0]", "op_sel:[1,1,0] op_sel_hi:[1,1,0]"
        for i in range(nl):
            a0, a1 = y.sub(2 * i), y.sub(2 * i + 1)
            t = t0 + lw * i / nl
            s.valu(t, "v_cvt_pkrtz_f16_f32", a1, a0, a1)
            s.valu(t, "v_and_b32", a1, sM, a1)
            s.valu(t, "v_bfe_u32", a0, a1, 2, 14)
            s.valu(t, "v_lshrrev_b32", a1, 18, a1)
            s.ds_read(t, "ds_read_u16", a0, a0)
            s.ds_read(t, "ds_read_u16" if dst is None else "ds_read_u16_d16_hi", a1, a1)
        nt = 8 - nl
        w = [4, 4, 4, 8, 8, 4, 8, 8, 4] + ([4, 4] if dst is None else [])
        cum = [sum(w[:k]) / sum(w) for k in range(len(w) + 1)]
        for k in range(len(w)):
            for i in range(nl, 8):
                u, e = y.sub(2 * i), y.sub(2 * i + 1)
                t = t0 + cum[k] + (cum[k + 1] - cum[k]) * (i - nl) / nt
                if k == 0:
                    s.valu(t, "v_cvt_pk_f16_f32", u, u, e)
                elif k == 1:
                    s.valu(t, "v_pk_fma_f16", e, u, u, sK)
                elif k == 2:
                    s.valu(t, "v_pk_mul_f16", e, u, e)
                elif k in (3, 4):
                    s.valu(t, "v_exp_f16_sdwa", e, e, mods=(LO, HI)[k - 3])
                elif k == 5:
                    s.valu(t, "v_pk_add_f16", e, e, "1.0", mods="op_sel_hi:[1,0]")
                elif k in (6, 7):
                    s.valu(t, "v_rcp_f16_sdwa", e, e, mods=(LO, HI)[k - 6])
                elif k == 8:
                    s.valu(t, "v_pk_mul_f16", u if dst is None else dst[i], u, e)
                else:
                    s.valu(t, "v_fma_mix_f32", acc, u, u, acc, mods=(mixlo, mixhi)[k - 9])
        for i in range(nl):
            a0, a1 = y.sub(2 * i), y.sub(2 * i + 1)
            t = t0 + fin + lw * i / nl
            if dst is None:
                for a in (a0, a1):
                    s.valu(t, "v_fma_mix_f32", acc, a, a, acc, mods=mixlo)
            else:
                s.valu(t, "v_or_b32", dst[i], a0, a1)

    def pattern(self, key, default):
        return [int(c) for c in str(self.o.get(key, default))]

    def ws_frag(self, f, fn):
        p = self.p
        if f == 0:
            return fn(sLNB)
        p.salu("s_add_u32", sT3, sLNB, f * self.o.get('fst', 1 << 21))
        return fn(sT3)

    def prio_steps(self, s, t0, t1, key='pp'):
        n = 4 * max(1, round((t1 - t0) / self.o.get(key, self.o.get('pp', 2.0))))
        for k in range(n):
            s.misc(t0 + (t1 - t0) * k / n, lambda k=k: self.p.raw(f"s_setprio {3 - k % 4}"), rd=['@bar'] if k == 0 else [], wr=['@prio'])

    def w1_transform(self, us, fr):
        p = self.p
        a, b = V(113), V(114)
        p.valu("v_add_u32", a, 65536, self.vW1r)
        p.valu("v_add_u32", b, 65536, self.vW1w)
        for k, u in enumerate(us):
            for i in range(2):
                p.ds_read("ds_read_b64_tr_b16", fr[k].sub(2 * i, 2), self.vW1r if u < 16 else a, (u % 16) * 4096 + i * 512)
        for k, u in enumerate(us):
            p.ds_write("ds_write_b128", self.vW1w if u < 16 else b, fr[k], (u % 16) * 4096)

    def code_pf(self, s, times):
        p = self.p

        def one():
            k = self.ncpf = getattr(self, 'ncpf', 0) + 1
            p.raw(f"s_getpc_b64 {sEX}")
            p.lines.append(f"Lcq{k}:")
            p.salu("s_lshl_b32", sT0, sWAVE, 10)
            p.salu("s_add_u32", sT0, sT0, self.o.get('cpd', 6144))
            p.salu("s_min_u32", sT0, sT0, f"Lend-Lcq{k}-1024")
            p.salu("s_add_u32", sEX.sub(0), sEX.sub(0), sT0)
            p.salu("s_addc_u32", sEX.sub(1), sEX.sub(1), 0)
            p.salu("s_sub_u32", sEX.sub(0), sEX.sub(0), W1F)
            p.salu("s_subb_u32", sEX.sub(1), sEX.sub(1), 0)
            p.salu("s_mov_b32", "m0", LDS_BYTES)
            p.nop(1)
            p.raw(f"global_load_lds_dword {self.vA[0]}, {sEX}")
            p.vm_seq += 1
        if self.o.get('cpf', 1):
            for t in times:
                s.misc(t, one)

    def setprio(self, s, t, lv):
        s.misc(t, lambda: self.p.raw(f"s_setprio {lv}"), wr=['@prio'])

    def phase1(self):
        p, o = self.p, self.o
        p.salu("s_cmp_lt_u32", sWAVE, 4)
        p.raw("s_cbranch_scc1 Lsu1")
        p.cond_begin()
        p.raw("s_waitcnt vmcnt(%d)" % (14 if o.get('tp', 6) <= 18 else 12))
        self.mark()
        self.w1_transform(range(6), [V(4 * u, 4) for u in range(6)])
        self.signal(C_W1A)
        self.mark()
        self.await_(C_F, 4)
        self.mark()
        for R in range(2, 10):
            self.row_dma(R)
        self.mark()
        p.raw("s_waitcnt vmcnt(16)")
        self.mark()
        self.w1_transform(range(6, 18), [V(4 * u, 4) for u in range(12)])
        self.signal(C_W1B)
        self.mark()
        p.cond_end()
        self.sentinels()
        p.raw("s_setprio 3")
        p.raw("s_waitcnt vmcnt(0)")
        self.mark()
        p.lines.append("Lsu1:")
        p.vm_done, p.lgkm_done = p.vm_seq, p.lgkm_seq
        self.stamp(188)
        s = Sched(p, o)
        nl = self.pattern('nl1', '65')
        L, cl = o.get('cl', 4.0), o.get('cc', 2.6)
        Y, ny = self.Y1, len(self.Y1)
        u = [V(240 + i) for i in range(4)]
        tq2 = V(238, 2)
        tmp = [V(48, 8), V(56, 8)]
        m0, m1 = o.get('m0', 0.0), o.get('m1', 2.0)

        def w2_addr():
            self.lane(u[1])
            p.valu("v_lshrrev_b32", self.vX[0], 2, u[1])
            p.valu("v_mul_u32_u24", self.vX[0], 192, self.vX[0])
            p.valu("v_and_b32", u[1], 3, u[1])
            p.valu("v_lshl_add_u32", self.vX[0], u[1], 4, self.vX[0])

        for blk in range(2):
            t0 = blk * (24 + L + o.get('cd', 0.7))
            s.misc(t0 - 0.5, self.conv_addr, rd=[self.vB0, '@dma'], wr=self.vB + [self.tq], cost=90)
            if blk:
                s.misc(t0 - 0.3, lambda: p.wait(vm=self.x_tok), rd=['@dma'], wr=['@rows'])
            self.conv(s, blk, t0, t0 + cl, rd=['@rows'], wr=['@cdone'])
            s.misc(t0 + cl, lambda blk=blk: self.signal(C_F + 8 * blk, True), wr=['@cdone', self.tq], cost=8)
            h = (L - cl) / 2
            self.ln(s, 2 * blk, t0 + cl + 0.02, t0 + cl + h)
            self.ln(s, 2 * blk + 1, t0 + cl + h, t0 + L)
            t0 += L
            if blk == 0:
                s.misc(t0 - 1.0, lambda: self.await_(C_W1A, 4), wr=['@w1', self.tq], cost=40)
                if o.get('stamps'):
                    s.misc(t0, lambda: self.stamp(192), wr=[V(192, 4)])
            if blk:
                Y = [Y[1], Y[2], Y[0], Y[3], Y[4]]
            idk = V((64, 216)[blk], 8)
            if self.keep if blk else self.spi:
                for m in range(8):
                    s.valu(t0, "v_cndmask_b32", idk.sub(m), 0, self.vI, sID[m])
                    s.valu(t0, "v_and_b32", idk.sub(m), 0x3C003C00, idk.sub(m))
            for j in range(12):
                t = t0 + 2 * j
                e = 24 * blk + 2 * j
                held = [(2 * blk + par, j) in self.spi or (blk and par and j in self.keep) for par in range(2)]
                if blk == 0 and j == 4:
                    s.misc(t - 1.2, lambda: self.await_(C_W1B, 4), wr=['@w1', self.tq], cost=40)
                for s6 in range(6):
                    tt = t + m0 + (m1 - m0) * s6 / 6
                    w = self.ring(self.ring1)
                    s.ds_read(tt - o.get('lead', 0.8), "ds_read_b128", w, *self.frag(j * 6 + s6), rd=['@w1'])
                    for par in range(2):
                        y = Y[(e + par + 4) % ny]
                        ab = (self.LN[2 * blk + par].sub(4 * s6, 4), w)
                        s.mfma(tt + par * (m1 - m0) / 12, y, *(ab[::-1] if held[par] else ab), y if s6 else 0)
                for par in range(2):
                    tg, y, n = t + m1 + par + o.get('g0', 0.1), Y[(e + par + 4) % ny], nl[(e + par) % len(nl)]
                    if not held[par]:
                        self.gelu(s, tg, y, n, acc=self.SQ[j])
                        continue
                    bl = self.blk3[j] if blk else self.ring(tmp)
                    te = self.gelu32(s, tg, y, n, bl, self.SQ[j], idk)
                    for q in range(0 if blk else 2):
                        s.vmem(te + 0.2 + 0.4 * q, lambda q=q, bl=bl, f=self.spi[par, j]: self.ws_frag(f + q, lambda so: p.buf_store(
                            "buffer_store_dwordx4", bl.sub(4 * q, 4), self.vA[0], sWS, so, flags=o.get('ssf', ''))), rd=[bl.sub(4 * q, 4)], lat=0)
                if blk == 0 and j == 2:
                    for k in range(6):
                        s.vmem(t + 0.7 * k, lambda k=k: self.ws_frag(k, lambda so: p.buf_store(
                            "buffer_store_dwordx4", self.LN[0].sub(4 * k, 4), self.vA[0], sWS, so, flags=o.get('ssf', ''))), rd=[self.LN[0].sub(4 * k, 4)], lat=0)
                if blk == 0 and j == 5:
                    s.misc(t, self.init_counter, wr=[self.tq])
                    s.misc(t + 1, lambda: (self.skip_round(), self.touch_rows(self.tq.sub(0), self.tq.sub(1))), wr=[self.tq, '@dma'], cost=24)
                if blk == 0 and j == 9:
                    d0 = t0 + o.get('d0', 19.0)
                    s.misc(d0, lambda: self.await_(C_F + 4, 4, True), wr=[self.tq, '@dma'], cost=40)
                    for R in range(2, 10):
                        s.vmem(d0 + o.get('dspan', 2.5) * (R - 2) / 8, lambda R=R: self.row_dma(R), rd=self.vX, wr=['@dma'], lat=0)
                if blk == 1 and j == 8:
                    d0 = t0 + o.get('w0', 16.0)
                    s.misc(d0, lambda: (self.await_(C_F + 12, 4, tq=tq2), w2_addr()), rd=[self.vA[0]], wr=[self.vX[0], u[1], tq2], cost=60)
                    for k in range(7):
                        s.vmem(d0 + 0.3 + 0.5 * k, lambda k=k: self.w2_fetch(k, self.vX[0]), rd=[self.vX[0]], lat=0)
                if blk == 1 and j == 3 and o.get('nt0', 0):
                    s.misc(t, lambda: self.touch_x(u[2], u[3]), wr=u[2:], cost=24)
        end = 48 + 2 * L + m1 + o.get('cd', 0.7)
        if o.get('lp', 0):
            steps = ((2, L), (3, 24 + L + o.get('cd', 0.7) + cl * o.get('lq', 1.0)), (1, 24 + 2 * L + o.get('cd', 0.7)), (0, end - o.get('q0', 5.0)))
        else:
            self.setprio(s, L + o.get('la', 7), 3)
            steps = zip((2, 1, 0), (24 + 2 * L + o.get('cd', 0.7), end - o.get('q1', 10.0), end - o.get('q0', 3.5)))
        for lv, tt in steps:
            self.setprio(s, tt, lv)
        self.code_pf(s, [6, 16, 26, 30, 38, 48, 56])
        self.fine(s, range(0, 58), 'p1')
        s.run(tag='phase 1')
        self.fine_flush('p1')
        if o.get('fine') == 'su':
            self.nfine += 2
            self.fine_flush('su')
        p.raw("s_setprio 3")
        for j in range(0, 12, 2):
            p.swap32(self.SQ[j], self.SQ[j + 1])
            p.valu("v_add_f32", self.SQ[j], self.SQ[j], self.SQ[j + 1])
            p.ds_write("ds_write_b32", self.vS, self.SQ[j], TABO + j * 128)
        t = [V(184 + i) for i in range(8)]
        p.valu("v_mov_b32", t[1], 1)
        p.wait_all(vm=False)
        p.raw("s_mov_b64 exec, 1")
        p.raw(f"ds_add_rtn_u32 {t[2]}, {self.vCnt}, {t[1]}")
        p.raw("s_mov_b64 exec, -1")
        p.raw("s_waitcnt lgkmcnt(0)")
        p.valu("v_readfirstlane_b32", sT0, t[2])
        p.salu("s_cmp_lg_u32", sT0, 7)
        p.raw("s_cbranch_scc1 Lnopub")
        p.cond_begin()
        pv = [V(120 + 8 * w, 8) for w in range(8)]
        self.lane(t[3])
        p.valu("v_min_u32", t[3], 47, t[3])
        p.valu("v_lshlrev_b32", t[4], 5, t[3])
        p.valu("v_add_u32", t[4], R2 + TABO, t[4])
        for w in range(8):
            for k in range(2):
                p.ds_read("ds_read_b128", pv[w].sub(4 * k, 4), t[4], 9216 * w + 16 * k)
        p.valu("v_lshlrev_b32", t[6], 13, t[3])
        p.valu("v_add_u32", t[7], 4096, t[6])
        for st in (1, 2, 4):
            for w in range(0, 8, 2 * st):
                for i in range(8):
                    p.valu("v_add_f32", pv[w].sub(i), pv[w].sub(i), pv[w + st].sub(i))
        for i in range(8):
            p.valu("v_min_u32", pv[1].sub(i), -2, pv[0].sub(i))
        p.salu("s_lshl_b32", sT0, S(2), 4)
        p.buf_store("buffer_store_dwordx4", pv[1].sub(0, 4), t[6], sWS, sT0, flags="sc1")
        p.buf_store("buffer_store_dwordx4", pv[1].sub(4, 4), t[7], sWS, sT0, flags="sc1")
        p.ds_write("ds_write_b32", self.vCnt, t[1], C_PUB)
        p.raw("s_waitcnt lgkmcnt(0)")
        p.nop(2)
        p.cond_end()
        p.lines.append("Lnopub:")
        self.stamp(112)

    def w2_fetch(self, f, addr):
        p = self.p
        k, T = divmod(f, 3)
        p.salu("s_add_u32", "m0", sPRIV, f * 1024)
        p.salu("s_add_u32", sT0, sW2B, k * 3072 + T * 64)
        self.w2_tok = p.dma(addr, sW2, sT0)

    def touch_x(self, a, b):
        p = self.p
        self.lane(b)
        p.valu("v_and_b32", a, 15, b)
        p.valu("v_min_u32", a, 11, a)
        p.valu("v_lshlrev_b32", a, 7, a)
        p.valu("v_lshrrev_b32", b, 4, b)
        p.valu("v_mul_u32_u24", b, 2 * ROWB, b)
        p.valu("v_add_u32", a, a, b)
        p.salu("s_mov_b32", "m0", LDS_BYTES)
        p.salu("s_cmp_lt_u32", sWAVE, 4)
        p.raw("s_cbranch_scc0 Lnotouch")
        p.cond_begin()
        for ti in range(2):
            p.raw(f"buffer_load_dword {a}, {sX}, {sTILE[ti]} offen lds")
            p.vm_seq += 1
        p.cond_end()
        p.lines.append("Lnotouch:")

    def poll_regs(self):
        rv = [V(152 + 4 * i, 4) for i in range(4)]
        tv = [V(152 + i) for i in range(6)]
        gv = [V(158 + i) for i in range(6)]
        t = [V(240 + i) for i in range(7)]
        return rv, tv, gv, t

    def poll_loads(self, p, reducer):
        rv, tv, gv, t = self.poll_regs()
        if reducer:
            p.salu("s_lshl_b32", sT1, S(2), 12)
            for i in range(4):
                p.buf_load("buffer_load_dwordx4", rv[i], t[5], sWS, sT1, 1024 * i, flags="sc1")
        else:
            p.salu("s_and_b32", sT1, S(2), 7)
            p.salu("s_lshl_b32", sT1, sT1, 11)
            p.salu("s_add_u32", sT1, sT1, WS_TOT)
            for i in range(6):
                p.buf_load("buffer_load_dword", tv[i], t[0], sWS, sT1, 256 * i, flags="sc1")

    def gamma_loads(self, p):
        rv, tv, gv, t = self.poll_regs()
        p.valu("v_lshrrev_b32", t[1], 1, t[0])
        for i in range(6):
            p.buf_load("buffer_load_ushort", gv[i], t[1], sGA, 0, 128 * i)

    def poll_routine(self):
        main, self.p = self.p, Prog()
        p = self.p
        rv, tv, gv, t = self.poll_regs()
        ret = f"s_setpc_b64 {sRET}"
        p.lines.append("Lpoll:")
        p.raw("s_waitcnt vmcnt(0)")
        p.salu("s_cmp_eq_u32", sROLE, 2)
        p.raw("s_cbranch_scc1 LpollC")
        allr = [rv[i].sub(k) for i in range(4) for k in range(4)]
        p.valu("v_max_u32", t[1], allr[0], allr[1])
        for i in range(2, 16, 2):
            p.valu("v_max3_u32", t[1], t[1], allr[i], allr[i + 1])
        p.valu("v_cmp_eq_u32", "vcc", -1, t[1])
        p.nop(5)
        p.raw("s_cbranch_vccz LpollR")
        self.poll_loads(p, True)
        p.raw(ret)
        self.p = p2 = Prog()
        p2.lines.append("LpollR:")
        for k in range(4):
            p2.valu("v_add_f32", rv[0].sub(k), rv[0].sub(k), rv[1].sub(k))
            p2.valu("v_add_f32", rv[3].sub(k), rv[2].sub(k), rv[3].sub(k))
            p2.valu("v_add_f32", rv[3].sub(k), rv[0].sub(k), rv[3].sub(k))
        for k in range(4):
            self.lane_sum64(rv[3].sub(k), t[1])
            p2.valu("v_min_u32", rv[3].sub(k), -2, rv[3].sub(k))
        p2.salu("s_lshl_b32", sT1, S(2), 4)
        p2.salu("s_add_u32", sT1, sT1, WS_TOT)
        p2.valu("v_lshlrev_b32", t[1], 9, t[0])
        p2.raw("s_mov_b64 exec, 0xff")
        p2.buf_store("buffer_store_dwordx4", rv[3], t[1], sWS, sT1, flags="sc1")
        p2.raw("s_mov_b64 exec, -1")
        p2.salu("s_mov_b32", sROLE, 2)
        self.poll_loads(p2, False)
        self.gamma_loads(p2)
        p2.raw(ret)
        self.p = p3 = Prog()
        p3.lines.append("LpollC:")
        p3.valu("v_max3_u32", t[1], tv[0], tv[1], tv[2])
        p3.valu("v_max3_u32", t[1], t[1], tv[3], tv[4])
        p3.valu("v_max_u32", t[1], t[1], tv[5])
        p3.valu("v_cmp_eq_u32", "vcc", -1, t[1])
        p3.nop(5)
        p3.raw("s_cbranch_vccz LpollS")
        self.poll_loads(p3, False)
        p3.raw(ret)
        self.p = p4 = Prog()
        p4.lines.append("LpollS:")
        p4.salu("s_mov_b32", sT0, f2u(1.0 / (GA * GA)))
        p4.valu("v_mov_b32", t[2], f2u(1e-6))
        for i in range(6):
            p4.valu("v_fma_f32", tv[i], tv[i], sT0, t[2])
            p4.valu("v_sqrt_f32", tv[i], tv[i])
            p4.valu("v_lshlrev_b32", gv[i], 16, gv[i])
        p4.valu("v_add_f32", t[3], tv[0], tv[1])
        for i in range(2, 6):
            p4.valu("v_add_f32", t[3], t[3], tv[i])
        self.lane_sum64(t[3], t[1])
        p4.salu("s_mov_b32", sT0, f2u(1.0 / 384))
        p4.valu("v_fma_f32", t[3], t[3], sT0, t[2])
        p4.valu("v_rcp_f32", t[3], t[3])
        for i in range(6):
            p4.valu("v_mul_f32", tv[i], tv[i], t[3])
            p4.valu("v_fma_f32", tv[i], tv[i], gv[i], "1.0")
            p4.valu("v_mul_f32", tv[i], f2u(1.0 / GA), tv[i])
        p4.salu("s_mov_b32", sROLE, 0)
        p4.nop(2)
        p4.raw(ret)
        self.p = main
        for q in (p, p2, p3, p4):
            main.lines += q.lines

    def poll_point(self, k):
        p = self.p
        p.salu("s_cmp_eq_u32", sROLE, 0)
        p.raw(f"s_cbranch_scc1 Lpp{k}")
        p.cond_begin()
        p.raw(f"s_call_b64 {sRET}, Lpoll")
        p.cond_end()
        p.lines.append(f"Lpp{k}:")

    def spin_guard(self, exit_label):
        p = self.p
        p.salu("s_cmp_eq_u32", sCNT, 0)
        p.salu("s_cbranch_scc1", exit_label)
        p.salu("s_sub_u32", sCNT, sCNT, 1)

    def gap(self):
        p, o = self.p, self.o
        rv, tv, gv, t = self.poll_regs()
        p.salu("s_mov_b32", sCNT, 200000)
        p.salu("s_mov_b32", sROLE, 0)
        p.valu("v_mov_b32", t[6], self.vX[0])
        self.tq = V(248, 2)
        p.salu("s_cmp_lg_u32", sWAVE, 0)
        p.raw("s_cbranch_scc1 Lnorole")
        p.cond_begin()
        p.valu("v_subrev_u32", t[5], W1F, self.vA[0])
        p.valu("v_lshrrev_b32", t[0], 2, t[5])
        p.valu("v_mov_b32", t[2], 0)
        p.label("Lpi")
        p.buf_load("buffer_load_dword", t[3], t[2], sDBG, flags="sc1")
        p.valu("v_readfirstlane_b32", sT0, t[3])
        self.spin_guard("Lpix")
        p.salu("s_cmp_lt_u32", sT0, 256)
        p.branch("s_cbranch_scc1", "Lpi")
        p.label("Lpix")
        for i in range(16):
            p.valu("v_mov_b32", V(152 + i), -1)
        p.salu("s_cmp_lt_u32", S(2), 96)
        p.salu("s_cselect_b32", sROLE, 1, 2)
        p.raw("s_cbranch_scc1 Lred")
        self.gamma_loads(p)
        p.raw("s_branch Lnorole")
        p.lines.append("Lred:")
        if o.get('rspin', 0):
            self.spin_guard("Lnorole")
            p.raw(f"s_call_b64 {sRET}, Lpoll")
            p.salu("s_cmp_eq_u32", sROLE, 1)
            p.raw("s_cbranch_scc1 Lred")
        p.cond_end()
        p.lines.append("Lnorole:")
        for r in range(152, 168):
            p.p_vm[r] = None
        s = Sched(p, o)
        nl = self.pattern('nlg', '5')
        Y = self.Y[:2]
        span = o.get('gspan', 0.45)
        NG = len(self.todo)
        gb = min(o.get('gb', 2), NG - 1)
        for n, j in enumerate(self.todo):
            self.gemm1(s, n, j, self.LN[3], Y[n % 2], True, self.ringW, span=span)
            self.gelu32(s, n + span + 0.15, Y[n % 2], nl[n % len(nl)], self.blk3[j])
            s.misc(n + 0.5, lambda n=n: self.poll_point(n), wr=['@poll'])
            if n == gb:
                s.misc(gb, lambda: self.await_(C_PUB, 1), wr=['@tab'], cost=40)
                for k in (7, 8):
                    s.vmem(gb, lambda k=k: self.w2_fetch(k, t[6]), rd=['@tab'], lat=0)
        if o.get('g1s', 1):
            for ti in (2, 1):
                self.ln16(s, 0.0, self.LN[ti])
        self.setprio(s, -1.0, 0)
        self.prio_steps(s, o.get('gp', 2.0), NG + 1.3)
        bf = [V(72 + 2 * k, 2) for k in range(3)]
        g8 = t[4]
        p.valu("v_bfe_u32", g8, self.vA[0], 8, 2)
        p.valu("v_lshlrev_b32", g8, 3, g8)

        def beta_loads():
            p.salu("s_mul_i32", sT0, sWAVE, 96)
            for k in range(3):
                p.buf_load("buffer_load_dwordx2", bf[k], g8, sBE, sT0, k * 32)
        s.vmem(NG, beta_loads, wr=bf)
        self.code_pf(s, [1, NG - 1])
        self.fine(s, range(0, NG + 1), 'gap')
        s.run(tag='gap')
        self.fine_flush('gap')
        self.stamp(168)
        p.raw("s_setprio 2")
        fr = [V(120 + 4 * u, 4) for u in range(8)] + [V(84, 4)]
        u = [V(88 + i) for i in range(8)]
        lane, vWR = u[4], [u[1], u[6], u[7]]
        self.lane(lane)
        p.valu("v_lshl_add_u32", u[0], lane, 4, sPRIV)
        p.wait(vm=self.w2_tok)
        for k in range(9):
            for y in range(2):
                p.ds_read("ds_read_b64_tr_b16", fr[k].sub(2 * y, 2), u[0], k * 1024 + y * 8)
        for k in range(3):
            p.salu("s_mul_i32", sT0, sWAVE, 3)
            p.salu("s_add_u32", sT0, sT0, k)
            p.salu("s_and_b32", sT1, sT0, 1)
            p.salu("s_mul_i32", sT1, sT1, 3072 - 8)
            p.salu("s_mul_i32", sT0, sT0, 3072)
            p.salu("s_sub_u32", sT0, sT0, sT1)
            p.salu("s_add_u32", sT0, sT0, R2)
            p.valu("v_lshl_add_u32", vWR[k], lane, 4, sT0)
        p.valu("v_lshl_add_u32", u[3], g8, 2, sPRIV)
        self.poll_point(20)
        p.wait_all(vm=False)
        bacc = [V(168 + 4 * i, 4) for i in range(6)]
        for k in range(3):
            for T in range(3):
                for y in range(2):
                    d = bacc[2 * T + y]
                    p.mfma(d, fr[k * 3 + T].sub(2 * y, 2), bf[k], d if k else 0)
        for f in fr:
            for i in range(4):
                w = V(78 + 2 * (i % 2), 2)
                p.valu("v_lshlrev_b32", w.sub(0), 16, f.sub(i))
                p.valu("v_and_b32", w.sub(1), 0xFFFF0000, f.sub(i))
                p.valu("v_cvt_pk_f16_f32", f.sub(i), w.sub(0), w.sub(1))
        self.poll_point(21)
        p.salu("s_mov_b32", "exec_lo", 0x00010001)
        p.salu("s_mov_b32", "exec_hi", 0x00010001)
        for i in range(6):
            p.ds_write("ds_write_b128", u[3], bacc[i], SCO + 128 + (i >> 1) * 128 + (i & 1) * 16)
        p.raw("s_mov_b64 exec, -1")
        self.vH = [V(248), V(249) if not o.get('fine') else V(247)]
        p.valu("v_and_b32", V(78), 3, lane)
        p.valu("v_bfe_u32", V(79), lane, 2, 1)
        p.valu("v_lshl_add_u32", V(78), V(79), 3, V(78))
        p.valu("v_bfe_u32", V(79), lane, 3, 1)
        p.valu("v_lshl_add_u32", V(78), V(79), 2, V(78))
        p.valu("v_bfe_u32", V(79), lane, 4, 1)
        p.valu("v_lshl_add_u32", V(78), V(79), 6, V(78))
        p.valu("v_lshrrev_b32", V(79), 5, lane)
        p.valu("v_lshl_add_u32", V(78), V(79), 5, V(78))
        p.valu("v_lshlrev_b32", V(78), 4, V(78))
        for i in range(2):
            p.valu("v_add_u32", self.vH[i], W1F + 36 * 1024 * i, V(78))
        p.valu("v_min_u32", u[3], 11, lane)
        p.salu("s_mul_i32", sT0, sWAVE, 12)
        p.valu("v_add_u32", u[3], sT0, u[3])
        p.valu("v_cmp_gt_u32", "vcc", 64, u[3])
        p.valu("v_lshlrev_b32", u[3], 2, u[3])
        p.valu("v_add_u32", u[0], R2 + SCO + 128, u[3])
        p.valu("v_add_u32", u[5], HOLE[1], u[3])
        p.valu("v_add_u32", u[3], HOLE[0] - 256, u[3])
        p.valu("v_cndmask_b32", u[3], u[3], u[5], "vcc")
        p.valu("v_add_u32", u[2], sPRIV, g8)
        p.wait_all(vm=False)
        p.barrier()
        bs = [V(168 + i) for i in range(8)]
        for k in range(8):
            p.ds_read("ds_read_b32", bs[k], u[0], 9216 * k)
        for k in range(1, 8):
            p.valu("v_add_f32", bs[0], bs[0], bs[k])
        p.ds_write("ds_write_b32", u[3], bs[0])
        p.salu("s_cmp_lg_u32", sWAVE, 0)
        p.raw("s_cbranch_scc1 Lspinx")
        p.cond_begin()
        for i in range(6):
            a = V(176 + i)
            p.valu("v_add_u32", a, 64 * i, lane)
            p.valu("v_mul_u32_u24", u[5], 1366, a)
            p.valu("v_lshrrev_b32", u[5], 16, u[5])
            p.valu("v_mul_u32_u24", u[5], 9216 - 96, u[5])
            p.valu("v_lshl_add_u32", a, a, 1, u[5])
            p.valu("v_add_u32", a, R2 + SCO, a)
        p.lines.append("Lspin:")
        p.salu("s_cmp_eq_u32", sROLE, 0)
        p.raw("s_cbranch_scc1 Lspiny")
        self.spin_guard("Lspiny")
        p.raw(f"s_call_b64 {sRET}, Lpoll")
        p.raw("s_branch Lspin")
        p.lines.append("Lspiny:")
        for i in range(6):
            p.valu("v_cvt_f16_f32", tv[i], tv[i])
            p.ds_write("ds_write_b16", V(176 + i), tv[i])
        p.raw("s_waitcnt lgkmcnt(0)")
        p.cond_end()
        p.lines.append("Lspinx:")
        p.wait_all(vm=False)
        self.stamp(168)
        p.barrier()
        self.stamp(168)
        sc = [V(168 + 2 * k, 2) for k in range(3)]
        for k in range(3):
            p.ds_read("ds_read_b64", sc[k], u[2], SCO + 32 * k)
        p.wait_all(vm=False)
        for k in range(3):
            for T in range(3):
                f = fr[k * 3 + T]
                for i in range(4):
                    p.valu("v_pk_mul_f16", f.sub(i), f.sub(i), sc[k].sub(i & 1))
                for y in range(2):
                    p.ds_write("ds_write_b64", vWR[k], f.sub(2 * y, 2), (3 * y + T) * 1024)
        p.wait_all(vm=False)
        p.barrier()
        self.stamp(168)

    def ln16(self, s, t, ln):
        for u in range(3):
            for i in range(4):
                s.swap(t, 16, ln.sub(8 * u + i), ln.sub(8 * u + 4 + i))

    def piece(self, k):
        return divmod(k, 3) if self.o.get('lo', 1) else (k % 2, k // 2)

    def load_x1(self, dst, ti, k):
        r, T = self.piece(k)
        self.p.buf_load("buffer_load_dwordx4", dst, self.vG, sX, sTILE[ti], 64 * T + 192 * r, flags=self.o.get('xlf', ''))

    def store1(self, src, ti, k):
        r, T = self.piece(k)
        self.p.buf_store("buffer_store_dwordx4", src, self.vG, sOUT, sTILE[ti], 64 * T + 192 * r, flags=self.o.get('osf', 'sc1'))

    def phase2(self):
        p, o = self.p, self.o
        s = Sched(p, o)
        ACC = [V(72, 16), V(152, 16), V(136, 16)]
        ring = self.ringW
        nl = self.pattern('nl2', '5')
        g1s = o.get('g1s', 1)
        ents = [(3, j, None) for j, _ in self.fifo]
        seq = []
        for ti in (2, 1, 0):
            rec = [j for j in range(12) if j not in self.sp[ti]]
            pos = {int((n + 0.5) * 11 / len(self.sp[ti])): j for n, j in enumerate(self.sp[ti])}
            for n in range(12):
                if n in pos:
                    ents.append((ti, pos[n], None))
                else:
                    ents.append((ti, rec[0], len(seq)))
                    seq.append((ti, rec.pop(0), len(ents) - 1))
        NE = len(seq)
        entry = {q: b for q, (_, b) in enumerate(self.fifo)}
        b0 = o.get('b0', 8)
        bt = o.get('bt', 2.6)
        tend = NE + o.get('lag', 1.6)
        g2 = o.get('g2', 1.15)

        lb = {q: e + tend - (NE - 1) for q, (_, _, e) in enumerate(ents) if e is not None}
        tt = [bt * q / b0 for q in range(b0 + 1)]
        while len(tt) < 48:
            q0 = len(tt) - 1
            sl, q1 = max(((lb[q] - tt[q0]) / (q - q0), q) for q in lb if q > q0)
            tt += [tt[q0] + sl * (q - q0) for q in range(q0 + 1, q1 + 1)]
        tt.append(tt[-1] + 0.6)
        tq = tt.__getitem__
        Ys = [V(120, 16), V(0, 16), V(96, 16)]
        pool = []
        xs = [V(88, 8)] + ([] if o.get('fine') else [V(240, 8)])
        idf = V(16, 8)
        events = []
        for q in range(48):
            for k in range(7):
                events.append((tq(q) + (tq(q + 1) - tq(q)) * min(k, 5.9) / 6, 2, q, k))
        for e in range(NE):
            for k in range(6):
                events.append((e + k / 6, 0, e, k))
            events.append((e + g2 + 0.9, 1, e, 0))
        xq = [int(c, 16) for c in str(o.get('xq', '89a'))]
        want = [(tq(12 * n + j) - o.get('xlead', 5.0), 'x', 12 * n + j) for n in range(4) for j in xq]
        want += [(tq(q) - o.get('slead', 4.0), 's', q) for q in range(12, 48) if ents[q][2] is None]
        want.sort()
        xbuf = {}
        events.sort()
        lns = {2: self.LN[2], 1: self.LN[1], 0: self.LN[2]}
        first = {ti: min(e for e, x in enumerate(seq) if x[0] == ti) for ti in (2, 1, 0)}
        busy = set(r for _, v in self.fifo for r in v.regs())

        def bias(T, t):
            for i in range(4):
                s.ds_read(t, "ds_read_b128", ACC[T].sub(4 * i, 4), self.vBias, (0x2000 + 128 * T if T < 2 else 0) + (i & 1) * 16)

        def wread(t, addr, off):
            w = self.ring(ring)
            s.ds_read(t - o.get('lead', 0.8), "ds_read_b128", w, addr, off)
            return w

        def reload(f, dst):
            return lambda: self.ws_frag(f, lambda so: p.buf_load("buffer_load_dwordx4", dst, self.vA[0], sWS, so, flags=o.get('rlf', '')))

        for T in range(3):
            bias(T, -1.0)
        back = []
        for t, kind, i, k in events:
            while back and back[0][0] <= t:
                pool.append(back.pop(0)[1])
            while want and want[0][0] <= t and (xs or len(pool) > o.get('xres', 1)):
                _, what, q = want.pop(0)
                x = (xs or pool).pop(0)
                (xbuf if what == 'x' else entry)[q] = x
                if o.get('show'):
                    print(f'{what} load for {q} at {t:.1f}, use at {tq(q + (what == "x")):.1f}', end='; ')
                for r in range(2):
                    d = x.sub(4 * r, 4)
                    fn = (lambda d=d, r=r, q=q: self.load_x1(d, ents[q][0], 2 * xq.index(q % 12) + r)) if what == 'x' else \
                        reload(self.spi[ents[q][:2]] + r, d)
                    s.vmem(t + o.get('xg', 0.0) * r, fn, wr=[d], lat=o.get('xlat', 2000))
            if kind == 0:
                e = i
                ti, j, _ = seq[e]
                y = Ys[e % 3]
                if k == 0:
                    assert not busy & set(y.regs()), e
                    busy |= set(y.regs())
                if e == first[0] and k == 0:
                    pool += [self.LN[1].sub(8 * f, 8) for f in range(3)]
                    for f in range(6):
                        d = self.LN[2].sub(4 * f, 4)
                        s.vmem(first[1] + o.get('rl0', 0.5) + o.get('rl', 0.7) * f, reload(f, d), wr=[d])
                    if g1s:
                        self.ln16(s, t - 1.0, self.LN[2])
                if g1s:
                    z, u = divmod(k, 3)
                    w = wread(t, self.vH[j // 6], ((j % 6) * 6 + 2 * u) * 1024 + 256 * z)
                    for v in range(2):
                        d = y.sub(8 * v + 4 * z, 4)
                        s.mfma(t + v / 12, d, w, lns[ti].sub(8 * u + 4 * v, 4), d if u else 0)
                else:
                    s.mfma(t, y, wread(t, *self.frag(j * 6 + k)), lns[ti].sub(4 * k, 4), y if k else 0)
                continue
            if kind == 1:
                e = i
                bl = entry[seq[e][2]] = pool.pop(0)
                if g1s:
                    self.gelu(s, e + g2, Ys[e % 3], nl[e % len(nl)], dst=[bl.sub(m) for m in range(8)])
                else:
                    self.gelu32(s, e + g2, Ys[e % 3], nl[e % len(nl)], bl)
                busy -= set(Ys[e % 3].regs())
                continue
            q = i
            ti, j, _ = ents[q]
            n = q % 12
            if k < 6:
                T, y = divmod(k, 2)
                w = wread(t, *self.frag(72 + (2 * j + y) * 3 + T))
                for v in range(2):
                    d = ACC[T].sub(8 * v + 4 * y, 4)
                    s.mfma(t + v * (tq(q + 1) - tq(q)) / 12, d, w, entry[q].sub(4 * v, 4), d, 'f16')
                continue
            busy -= set(entry[q].regs())
            if q not in (0, 1, 2, 3, 4):
                pool.append(entry[q])
            if n in xq:
                T = xq.index(n)
                x = xbuf[q]
                pool.append(x)
                if T == 0:
                    for m in range(6):
                        if m in (2, 3):
                            s.valu(t - 0.5, "v_cndmask_b32", idf.sub(m), 0, self.vI, sIX[m - 2])
                        else:
                            s.valu(t - 0.5, "v_mov_b32", idf.sub(m), 0)
                for m in range(2):
                    v, T1 = self.piece(2 * T + m)
                    for y in range(2):
                        d = ACC[T1].sub(8 * v + 4 * y, 4)
                        s.mfma(t, d, idf.sub(2 - 2 * y, 4), x.sub(4 * m, 4), d)
            if n == 11:
                sg, sp = (o.get('sg', 1.6), o.get('sp', 0.0)) if ti else (0.0, 0.0)
                st = [pool.pop(0), pool.pop(0), idf]
                for T in range(3):
                    tt = t + 0.05 * T - 0.3
                    for m in range(6):
                        v, T1 = self.piece(m)
                        if T1 == T:
                            for i in range(4):
                                s.valu(tt, "v_cvt_pk_bf16_f32", st[m // 2].sub(4 * (m % 2) + i), ACC[T].sub(8 * v + 2 * i), ACC[T].sub(8 * v + 2 * i + 1))
                    if ti:
                        bias(T, tt)
                for m in range(6):
                    d = st[m // 2].sub(4 * (m % 2), 4)
                    s.vmem(t + 0.1 + sg * (m // 2) + sp * (m % 2), lambda d=d, m=m, ti=ti: self.store1(d, ti, m), rd=[d], lat=0)
                back += [(t + 0.1 + sg * m + sp, st[m]) for m in range(2)]
        self.prio_steps(s, 0.0, tend + 1, 'pp2')
        self.code_pf(s, range(1, NE - 10, 7))
        self.fine(s, range(0, NE + 2), 'p2')
        s.run(pace=o.get('pace2', 48), tag='phase 2')
        self.fine_flush('p2')
        self.stamp(168)

    def build(self):
        self.alloc()
        self.vW1g, self.vW1r, self.vW1w = V(115), V(116), V(117)
        self.prologue()
        self.phase1()
        self.gap()
        self.phase2()
        self.p.raw("s_endpgm")
        self.poll_routine()
        self.p.lines.append("Lend:")
        self.p.raw("s_endpgm")
        return self.p


HEADER = open('standalone__modern_conv_block_convnext_v2__vision.s.ref').read().split('; Override launch')[0]


def wrap(p):
    return f"""{HEADER}; Generated by gen/gen4.py (hand-written generator; see gen/asmgen.py, gen/sched.py)
; @launch grid=(256,1,1) block=(512,1,1) lds={LDS_BYTES}
.amdgcn_target "amdgcn-amd-amdhsa--gfx950"
.text
.globl {NAME}
.p2align 8
.type {NAME},@function
{NAME}:
{p.text()}
.section .rodata,"a"
.p2align 6
.amdhsa_kernel {NAME}
  .amdhsa_next_free_vgpr 256
  .amdhsa_next_free_sgpr 102
  .amdhsa_accum_offset 256
  .amdhsa_group_segment_fixed_size 0
  .amdhsa_kernarg_size 72
  .amdhsa_user_sgpr_count 2
  .amdhsa_user_sgpr_kernarg_segment_ptr 1
  .amdhsa_system_sgpr_workgroup_id_x 1
.end_amdhsa_kernel
"""


def parse(args):
    opt = {}
    for a in args:
        k, v = a.split('=')
        if k.startswith(('nl', 'keep', 'sp0', 'sp1', 'xq')):
            opt[k] = v
            continue
        try:
            opt[k] = int(v)
        except ValueError:
            try:
                opt[k] = float(v)
            except ValueError:
                opt[k] = v
    return opt


if __name__ == '__main__':
    out = sys.argv[1]
    opt = parse(sys.argv[2:])
    g = Gen(opt)
    p = g.build()
    from align import align_dp
    al = align_dp(p.lines)
    open(out, 'w').write(wrap(p))
    print(out, 'align', al, 'instructions', sum(p.stats.values()), 'stamps', g.nstamp,
          {k: v for k, v in p.stats.items() if k in ('s_nop', 's_waitcnt', 'ds_read_b128', 'ds_read_u16')})
```

```python
class V:
    __slots__ = ("b", "n")

    def __init__(self, b, n=1):
        assert 0 <= b and b + n <= 256, (b, n)
        if n > 1:
            assert b % 2 == 0, ("unaligned tuple", b, n)
        self.b, self.n = b, n

    def __str__(self):
        return f"v{self.b}" if self.n == 1 else f"v[{self.b}:{self.b + self.n - 1}]"

    def regs(self):
        return range(self.b, self.b + self.n)

    def sub(self, off, n=1):
        assert off + n <= self.n
        return V(self.b + off, n)


class S:
    __slots__ = ("b", "n")

    def __init__(self, b, n=1):
        self.b, self.n = b, n

    def __str__(self):
        return f"s{self.b}" if self.n == 1 else f"s[{self.b}:{self.b + self.n - 1}]"

    def sub(self, off, n=1):
        return S(self.b + off, n)


TRANS = ("v_exp_f32", "v_rcp_f32", "v_rsq_f32", "v_sqrt_f32", "v_log_f32",
         "v_exp_f16", "v_rcp_f16", "v_exp_f16_sdwa", "v_rcp_f16_sdwa")
NEG = -10 ** 9
MAX_LGKM = 15


class Prog:
    def __init__(self):
        self.lines = []
        self.pos = 0
        self.w_valu = [NEG] * 256
        self.w_trans = [NEG] * 256
        self.w_mfma = [(NEG, None)] * 256
        self.c_read = [NEG] * 256
        self.st_read = [NEG] * 256
        self.p_lgkm = [None] * 256
        self.p_vm = [None] * 256
        self.lgkm_seq = 0
        self.lgkm_done = 0
        self.vm_seq = 0
        self.vm_done = 0
        self.sgpr_valu_w = {}
        self.m0_w = NEG
        self.stats = {}
        self.ab_read = [NEG] * 256
        self.rawpad = self.warpad = 0
        self.w_half = [NEG] * 256
        self.lgkm_hint = 0

    def raw(self, text, states=1):
        if text.startswith(("s_mov_b64 exec", "s_mov_b32 exec", "s_and_saveexec")) and not text.endswith("exec, -1"):
            self._need(max(p for p, _ in self.w_mfma) + 1 + 14)
        self.lines.append(text)
        self.pos += states
        k = text.split()[0]
        self.stats[k] = self.stats.get(k, 0) + 1

    def comment(self, text):
        self.lines.append("; " + text)

    def nop(self, n):
        while n > 0:
            k = min(n, 16)
            self.raw(f"s_nop {k - 1}", k)
            n -= k

    def _need(self, target):
        if target > self.pos:
            self.nop(target - self.pos)

    def wait(self, lgkm=None, vm=None):
        parts = []
        if vm is not None and vm > self.vm_done:
            n = min(self.vm_seq - vm, 63)
            parts.append(f"vmcnt({n})")
            self.vm_done = self.vm_seq - n
        if lgkm is not None and lgkm > self.lgkm_done:
            lgkm = max(lgkm, min(self.lgkm_hint, self.lgkm_seq))
            n = min(self.lgkm_seq - lgkm, 15)
            parts.append(f"lgkmcnt({n})")
            self.lgkm_done = self.lgkm_seq - n
        if parts:
            self.raw("s_waitcnt " + " ".join(parts))

    def wait_all(self, lgkm=True, vm=True):
        self.wait(self.lgkm_seq if lgkm else None, self.vm_seq if vm else None)

    def sync(self):
        self.raw("s_waitcnt vmcnt(0) lgkmcnt(0)")
        self.lgkm_done = self.lgkm_seq
        self.vm_done = self.vm_seq
        last = max(p for p, _ in self.w_mfma)
        self._need(max(last + 1 + 12, self.pos + 5))

    def _mem_deps(self, regs):
        lg = vm = None
        for r in regs:
            if self.p_lgkm[r] is not None:
                lg = max(lg or 0, self.p_lgkm[r])
            if self.p_vm[r] is not None:
                vm = max(vm or 0, self.p_vm[r])
        self.wait(lg, vm)

    @staticmethod
    def _vregs(ops):
        out = []
        for o in ops:
            if isinstance(o, V):
                out.extend(o.regs())
        return out

    def _sgpr_from_valu(self, ops, states):
        for o in ops:
            if isinstance(o, S):
                for r in range(o.b, o.b + o.n):
                    if r in self.sgpr_valu_w:
                        self._need(self.sgpr_valu_w[r] + 1 + states)
            elif o == "vcc" and "vcc" in self.sgpr_valu_w:
                self._need(self.sgpr_valu_w["vcc"] + 1 + states)

    def valu(self, op, dst, *src, mods="", rmw=False, extra_w=()):
        rd = self._vregs(src)
        wr = self._vregs([dst] + list(extra_w))
        if rmw:
            rd += wr
        self._mem_deps(rd + wr)
        trans = op in TRANS
        t = self.pos
        for r in rd + wr:
            t = max(t, self.w_mfma[r][0] + 1 + 12)
        for r in wr:
            t = max(t, self.c_read[r] + 1 + 7, self.st_read[r] + 1 + 2)
        if not trans:
            for r in rd:
                t = max(t, self.w_trans[r] + 1 + 1)
        for r in rd + wr:
            t = max(t, self.w_half[r] + 1 + 1)
        if "permlane" in op or "dpp" in op:
            for r in rd:
                t = max(t, self.w_valu[r] + 1 + 2)
        if "readfirstlane" in op or "readlane" in op:
            for r in rd:
                t = max(t, self.w_valu[r] + 1 + 1)
        self._need(t)
        self._sgpr_from_valu(src, 2)
        txt = f"{op} {dst}" + "".join(f", {s}" for s in src) + (" " + mods if mods else "")
        p = self.pos
        self.raw(txt)
        for r in wr:
            self.w_valu[r] = p
            if trans:
                self.w_trans[r] = p
            if "dst_sel:WORD" in mods or op.startswith(("v_pk_", "v_fma_mix", "v_dot")):
                self.w_half[r] = p
        if isinstance(dst, S):
            for r in range(dst.b, dst.b + dst.n):
                self.sgpr_valu_w[r] = p
        elif dst == "vcc":
            self.sgpr_valu_w["vcc"] = p

    def swap32(self, a, b):
        self.valu("v_permlane32_swap_b32", a, b, rmw=True, extra_w=(b,))

    def swap16(self, a, b):
        self.valu("v_permlane16_swap_b32", a, b, rmw=True, extra_w=(b,))

    def mfma(self, d, a, b, c, ty="bf16"):
        rd_ab = self._vregs([a, b])
        rd_c = self._vregs([c])
        wr = list(d.regs())
        n0 = len(self.lines)
        self._mem_deps(rd_ab + rd_c + wr)
        if len(self.lines) > n0 and self.rawpad:
            self.nop(self.rawpad)
        t = self.pos
        for r in rd_ab + rd_c:
            t = max(t, self.w_valu[r] + 1 + 2)
        for r in rd_ab:
            t = max(t, self.w_mfma[r][0] + 1 + 12)
        key = (d.b, d.n)
        if ty == '4x4':
            for r in rd_c:
                t = max(t, self.w_mfma[r][0] + 6 + 1 + 2)
        for r in rd_c:
            p, k = self.w_mfma[r]
            if k != (c.b, c.n):
                t = max(t, p + 1 + 10)
        for r in wr:
            p, k = self.w_mfma[r]
            if not (isinstance(c, V) and k == (c.b, c.n) == key):
                t = max(t, p + 1 + 10)
            t = max(t, self.st_read[r] + 1 + 2)
        self._need(t)
        p = self.pos
        short = 4 if d.n == 4 else 0
        if ty == '4x4':
            self.raw(f"v_mfma_f32_4x4x4_16b_f16 {d}, {a}, {b}, {c}")
            for r in wr:
                self.w_mfma[r] = (p - 6, key)
            for r in rd_c:
                self.c_read[r] = p - 6
            return
        name = ("v_mfma_f32_16x16x16_" if a.n == 2 else "v_mfma_f32_16x16x32_" if d.n == 4 else "v_mfma_f32_32x32x16_") + ty
        self.raw(f"{name} {d}, {a}, {b}, {c}")
        for r in rd_ab:
            self.ab_read[r] = p
        for r in wr:
            self.w_mfma[r] = (p - short, key)
        for r in rd_c:
            self.c_read[r] = p - short

    def _mem_issue(self, rd, wr):
        self._mem_deps(rd + wr)
        t = self.pos
        for r in rd + wr:
            t = max(t, self.w_mfma[r][0] + 1 + 12)
        for r in rd:
            t = max(t, self.w_trans[r] + 1 + 1)
        for r in wr:
            t = max(t, self.c_read[r] + 1 + 7, self.st_read[r] + 1 + 1, self.ab_read[r] + 1 + self.warpad)
        self._need(t)

    def _lds_room(self):
        if self.lgkm_seq - self.lgkm_done >= MAX_LGKM:
            self.wait(lgkm=self.lgkm_seq - MAX_LGKM + 1)

    def ds_read(self, op, dst, addr, off=0):
        assert 0 <= off < 65536, off
        self._lds_room()
        self._mem_issue([addr.b], list(dst.regs()))
        self.raw(f"{op} {dst}, {addr}" + (f" offset:{off}" if off else ""))
        self.lgkm_seq += 1
        for r in dst.regs():
            self.p_lgkm[r] = self.lgkm_seq
        return self.lgkm_seq

    def ds_write(self, op, addr, data, off=0):
        assert 0 <= off < 65536, off
        self._lds_room()
        self._mem_issue([addr.b] + list(data.regs()), [])
        p = self.pos
        self.raw(f"{op} {addr}, {data}" + (f" offset:{off}" if off else ""))
        for r in data.regs():
            self.st_read[r] = p
        self.lgkm_seq += 1
        return self.lgkm_seq

    def _vm_text(self, op, data, voff, srd, soff, off, flags):
        assert 0 <= off < 4096, off
        self._sgpr_from_valu([srd, soff], 5)
        t = op + " " + (f"{data}, " if data is not None else "") + f"{voff}, {srd}, {soff} offen"
        if off:
            t += f" offset:{off}"
        if flags:
            t += " " + flags
        return t

    def buf_load(self, op, dst, voff, srd, soff=0, off=0, flags=""):
        self._mem_issue([voff.b], list(dst.regs()))
        self.raw(self._vm_text(op, dst, voff, srd, soff, off, flags))
        self.vm_seq += 1
        for r in dst.regs():
            self.p_vm[r] = self.vm_seq
        return self.vm_seq

    def buf_store(self, op, data, voff, srd, soff=0, off=0, flags="", ret=False):
        self._mem_issue([voff.b] + list(data.regs()), [])
        txt = self._vm_text(op, data, voff, srd, soff, off, flags)
        p = self.pos
        self.raw(txt)
        self.vm_seq += 1
        for r in data.regs():
            self.st_read[r] = p
            if ret:
                self.p_vm[r] = self.vm_seq
        return self.vm_seq

    def dma(self, voff, srd, soff=0, off=0, flags=""):
        self._mem_issue([voff.b], [])
        self._need(self.m0_w + 1 + 1)
        self.raw(self._vm_text("buffer_load_dwordx4", None, voff, srd, soff, off, (flags + " lds").strip()))
        self.vm_seq += 1
        return self.vm_seq

    def salu(self, op, *ops):
        self._sgpr_from_valu(ops, 2)
        p = self.pos
        self.raw(f"{op} " + ", ".join(str(o) for o in ops))
        if ops and ops[0] == "m0":
            self.m0_w = p

    def label(self, name):
        self.sync()
        self.lines.append(f"{name}:")

    def branch(self, op, name):
        self.sync_soft()
        self.raw(f"{op} {name}")

    def sync_soft(self):
        self.raw("s_waitcnt vmcnt(0) lgkmcnt(0)")
        self.lgkm_done = self.lgkm_seq
        self.vm_done = self.vm_seq
        last = max(p for p, _ in self.w_mfma)
        self._need(max(last + 1 + 12, self.pos + 5))

    def cond_begin(self):
        self._cond = (self.vm_seq, self.vm_done, self.lgkm_seq, self.lgkm_done)
        self._cond_pos = self.pos

    def cond_end(self):
        vs, vd, ls, ld = self._cond
        for arr, lim in ((self.p_vm, vs), (self.p_lgkm, ls)):
            for r in range(256):
                if arr[r] is not None and arr[r] > lim:
                    arr[r] = lim
        self.vm_done = min(vd, vs - 1) if self.vm_seq > vs else vd
        self.lgkm_done = min(ld, ls - 1) if self.lgkm_seq > ls else ld
        self.vm_seq, self.lgkm_seq = vs, ls
        shift = self.pos - self._cond_pos
        for arr in (self.w_valu, self.w_trans, self.w_half, self.c_read, self.st_read):
            for r in range(256):
                if arr[r] < self._cond_pos:
                    arr[r] += shift
        for r in range(256):
            if self.w_mfma[r][0] < self._cond_pos:
                self.w_mfma[r] = (self.w_mfma[r][0] + shift, self.w_mfma[r][1])
        for k, v in self.sgpr_valu_w.items():
            if v < self._cond_pos:
                self.sgpr_valu_w[k] = v + shift
        if self.m0_w < self._cond_pos:
            self.m0_w += shift
        return vs

    def barrier(self):
        self.raw("s_barrier")

    def text(self):
        return "\n".join(self.lines) + "\n"
```

```python
import math
import struct
import sys

from asmgen import *
from sched import Sched

NAME = 'standalone__modern_conv_block_convnext_v2__vision_kernel'


def f2u(x):
    return struct.unpack('<I', struct.pack('<f', x))[0]


def h2u(x):
    return struct.unpack('<H', struct.pack('<e', x))[0]


C2 = -2 * math.sqrt(2 / math.pi) * math.log2(math.e)
C1 = C2 * 0.044715
GA = -(abs(C1) ** (1.0 / 3.0))
GK = C2 / GA

HOLE = (0x1F00, 0x3F00)
W1F = 16384
R2 = W1F + 73728
RS = 6592
DIAG = R2 + 10 * RS
CNT = HOLE[0] + 192
C_PUB, C_W1A, C_W1B, C_F, C_T2 = 4, 8, 12, 16, 32
SCO = 3072
TABO = 5120
LDS_BYTES = 163840
WS_P = 0
WS_TOT = 96 * 256 * 16
WS_STAMP = 1 << 20
WS_LN = 4 << 20
WS_BYTES = 80 << 20
OOB_V = 0x80000000
OOB_S = 0x40000000
X_BYTES = 512 * 512 * 96 * 2
ROWB = 512 * 192
LO = "dst_sel:WORD_0 dst_unused:UNUSED_PRESERVE src0_sel:WORD_0"
HI = "dst_sel:WORD_1 dst_unused:UNUSED_PRESERVE src0_sel:WORD_1"

sX, sOUT, sW1, sW2, sDW, sGA, sBE, sWS, sDBG = [S(4 + 4 * i, 4) for i in range(9)]
sWAVE, sX0, sY0, sT0, sT1, sT2, sT3 = [S(40 + i) for i in range(7)]
sK, sM = S(48), S(49)
sID = [S(50 + 2 * i, 2) for i in range(8)]
sIX = [S(88, 2), S(90, 2)]
sD4 = [S(92, 2), S(94, 2)]
sYB, sXM = S(66), S(67)
sTILE = [S(68 + i) for i in range(4)]
sPRIV = S(72)
sSTAMP = S(73)
sEX = S(74, 2)
sCNT = S(76)
sROLE = S(77)
sRET = S(78, 2)
sLNB, sSL, sW2B, sFC = S(80), S(81), S(82), S(83)
sLD = S(80, 16)
sTM = S(96, 2)
sRT = S(98, 2)


class Gen:
    def __init__(self, opt):
        self.o = opt
        self.p = Prog()
        self.p.rawpad, self.p.warpad = opt.get('rawpad', 0), opt.get('warpad', 0)
        self.nstamp = 0
        self.rc = {}

    def stamp(self, tb):
        if not self.o.get('stamps'):
            return
        p = self.p
        t = V(tb, 4)
        p.raw(f"s_memtime {sTM}")
        p.raw(f"s_memrealtime {sRT}")
        p.raw("s_waitcnt lgkmcnt(0)")
        p.lgkm_done = p.lgkm_seq
        for i in range(4):
            p.valu("v_mov_b32", t.sub(i), S(sTM.b + i))
        p.salu("s_sub_u32", sT0, sSTAMP, W1F)
        p.raw("s_mov_b64 exec, 1")
        p.buf_store("buffer_store_dwordx4", t, self.vA[0], sWS, sT0, 16 * self.nstamp)
        p.raw("s_mov_b64 exec, -1")
        p.nop(2)
        self.nstamp += 1

    def fine(self, s, times, tag):
        if self.o.get('fine') != tag:
            return
        p = self.p

        def one(k):
            if k:
                p.raw(f"v_writelane_b32 v249, s{84 + 2 * ((k - 1) % 2)}, {k - 1}")
            p.raw(f"s_memtime s[{84 + 2 * (k % 2)}:{85 + 2 * (k % 2)}]")
        for k, t in enumerate(times):
            s.misc(t, lambda k=k: one(k), wr=['@fine'])
        self.nfine = len(times)

    def mark(self):
        if self.o.get('fine') != 'su':
            return
        k = self.nfine = getattr(self, 'nfine', -1) + 1
        self.p.raw("s_memtime s[100:101]")
        self.p.raw("s_waitcnt lgkmcnt(0)")
        self.p.raw(f"v_writelane_b32 v249, s100, {k}")

    def fine_flush(self, tag):
        if self.o.get('fine') != tag:
            return
        p, k = self.p, self.nfine
        p.raw(f"s_memtime s[{84 + 2 * (k % 2)}:{85 + 2 * (k % 2)}]")
        p.raw("s_waitcnt lgkmcnt(0)")
        for i in (k - 1, k):
            p.raw(f"v_writelane_b32 v249, s{84 + 2 * (i % 2)}, {i}")
        p.salu("s_lshl_b32", sT0, S(2), 3)
        p.salu("s_add_u32", sT0, sT0, sWAVE)
        p.salu("s_lshl_b32", sT0, sT0, 10)
        p.salu("s_add_u32", sT0, sT0, (2 << 20) - W1F)
        p.buf_store("buffer_store_dword", V(249), self.vA[0], sWS, sT0)

    def frag(self, idx):
        return self.vA[idx >> 6], (idx & 63) * 1024

    def ring(self, rg):
        k = self.rc.get(id(rg), 0)
        self.rc[id(rg)] = k + 1
        return rg[k % len(rg)]

    def srd(self, d, ptr, nbytes):
        p = self.p
        p.salu("s_mov_b32", d.sub(0), ptr.sub(0))
        p.salu("s_and_b32", d.sub(1), ptr.sub(1), 0xFFFF)
        p.salu("s_mov_b32", d.sub(2), nbytes)
        p.salu("s_mov_b32", d.sub(3), 0x20000)

    def lane_sum64(self, v, t):
        p = self.p
        for r in (8, 4, 2, 1):
            p.valu("v_add_f32_dpp", v, v, v, mods=f"row_ror:{r} row_mask:0xf bank_mask:0xf")
        p.valu("v_mov_b32", t, v)
        p.swap16(v, t)
        p.valu("v_add_f32", v, v, t)
        p.valu("v_mov_b32", t, v)
        p.swap32(v, t)
        p.valu("v_add_f32", v, v, t)

    def lane(self, dst):
        self.p.valu("v_bfe_u32", dst, self.vA[0], 4, 6)

    def call_if(self, older, names, tag):
        p = self.p
        p.salu("s_cmp_lt_u32" if older else "s_cmp_ge_u32", sWAVE, 4)
        p.raw(f"s_cbranch_scc0 {tag}")
        p.cond_begin()
        for n in names:
            p.raw(n if n.startswith("s_") else f"s_call_b64 {sRET}, {n}")
        p.cond_end()
        p.lines.append(f"{tag}:")

    def alloc(self):
        self.LN = [V(24 * t, 24) for t in range(4)]
        self.CA = [V(0, 48), V(48, 48), V(48, 48), V(96, 48)]
        self.Y1 = [V(96 + 16 * i, 16) for i in range(self.o.get('ny', 5))]
        self.ring1 = [V(176 + 4 * i, 4) for i in range(4)]
        self.ringA = [V(192 + 4 * i, 4) for i in range(5)]
        self.ringB = [V(144 + 4 * i, 4) for i in range(8)]
        self.vB = [V(212 + i) for i in range(4)]
        self.ls = [[V(240, 2), V(242, 2), V(244, 2)], [V(216, 2), V(218, 2), V(220, 2)]]
        self.tq = V(222, 2)
        self.SQ = [V(224 + i) for i in range(12)]
        self.vX, self.vC = [V(236), V(237)], [V(238), V(239)]
        self.vB0, self.vCnt, self.vS = V(246), V(247), V(248)
        self.vA = [V(250), V(251), V(252)]
        self.vG, self.vBias, self.vI = V(253), V(254), V(255)
        hexs = lambda k, d: [int(c, 16) for c in str(self.o.get(k, d)) if c != 'n']
        self.keep = hexs('keep', '2345678ab')
        self.sp = {0: hexs('sp0', 'n'), 1: hexs('sp1', 'n'), 2: [], 3: []}
        self.spi = {(ti, j): 6 + 2 * n for n, (ti, j) in enumerate((ti, j) for ti in (0, 1) for j in self.sp[ti])}
        fifo = [0, 8, 16, 96, 104, 192, 200, 208, 224, 112, 216, 232]
        late = {j: b for j, b in ((10, 96), (11, 104)) if j in self.keep}
        rest = [j for j in self.keep if j not in late]
        assert len(rest) <= 6 or (len(rest) == 7 and rest[6] >= 8)
        late.update(zip(rest, [0, 8, 16, 192, 200, 208, 224]))
        self.todo = [j for j in range(12) if j not in self.keep]
        col = {b: j for j, b in late.items()}
        col.update(zip([b for b in fifo if b not in col], self.todo))
        self.fifo = [(col[b], V(b, 8)) for b in fifo]
        self.blk3 = {j: b for j, b in self.fifo}
        self.vW2 = V(246)

    def signal(self, off, dyn=False):
        p = self.p
        a, b = self.tq.sub(0), self.tq.sub(1)
        p.valu("v_mov_b32", b, 1)
        if dyn:
            p.valu("v_add_u32", a, sFC, self.vCnt)
        p.wait_all(vm=False)
        p.raw("s_mov_b64 exec, 1")
        p.ds_write("ds_add_u32", a if dyn else self.vCnt, b, off)
        p.raw("s_mov_b64 exec, -1")

    def await_(self, off, n, dyn=False, tq=None):
        p = self.p
        tq = tq or self.tq
        a, b = tq.sub(0), tq.sub(1)
        k = self.nawait = getattr(self, 'nawait', 0) + 1
        if dyn:
            p.valu("v_add_u32", a, sFC, self.vCnt)
        p.valu("v_mov_b32", b, 0)
        p.raw(f"s_branch Law{k}")
        p.lines.append(f"Lax{k}:")
        p.raw("s_sleep 2")
        p.lines.append(f"Law{k}:")
        p.raw(f"ds_read_b32 {b}, {a if dyn else self.vCnt} offset:{off}")
        p.raw(f"s_sub_u32 {sCNT}, {sCNT}, 1")
        p.raw(f"s_cselect_b32 {sT1}, {n}, 0")
        p.raw(f"s_cselect_b32 {sCNT}, 0, {sCNT}")
        p.raw("s_waitcnt lgkmcnt(0)")
        p.raw(f"v_readfirstlane_b32 {sT0}, {b}")
        p.raw("s_nop 1")
        p.raw(f"s_max_u32 {sT0}, {sT0}, {sT1}")
        p.raw(f"s_cmp_lt_u32 {sT0}, {n}")
        p.raw(f"s_cbranch_scc1 Lax{k}")
        p.lgkm_seq += 1
        p.lgkm_done = p.lgkm_seq

    def row0_dma(self, R, k=0):
        p = self.p
        p.salu("s_add_u32", "m0", sXM, R * RS + ((R >> 1) & 3) * 16 + 896 * k)
        so = sYB
        if R == 0:
            p.salu("s_sub_u32", sT2, sYB, ROWB)
            p.salu("s_cmp_eq_u32", sY0, 0)
            p.salu("s_cselect_b32", sT2, OOB_S, sT2)
            so = sT2
        elif R > 1:
            p.salu("s_add_u32", sYB, sYB, ROWB)
        p.dma(self.vX[k], sX, so, flags='nt' if self.o.get('nt0', 0) else '')

    def row_dma(self, R):
        p = self.p
        p.salu("s_add_u32", sSL, sSL, RS)
        p.salu("s_cmp_eq_u32", sSL, 10 * RS)
        p.salu("s_cselect_b32", sSL, 0, sSL)
        p.salu("s_add_u32", sT0, sSL, sXM)
        p.salu("s_add_u32", "m0", sT0, ((R >> 1) & 3) * 16)
        p.salu("s_add_u32", sYB, sYB, ROWB)
        p.dma(self.vX[0], sX, sYB)
        p.salu("s_add_u32", "m0", sT0, ((R >> 1) & 3) * 16 + 896)
        self.x_tok = p.dma(self.vX[1], sX, sYB)

    def skip_round(self):
        p = self.p
        p.salu("s_add_u32", sYB, sYB, 8 * ROWB)
        p.salu("s_sub_u32", sSL, sSL, 2 * RS)

    def touch_rows(self, a, b):
        p = self.p
        self.lane(b)
        p.valu("v_and_b32", a, 15, b)
        p.valu("v_lshlrev_b32", a, 7, a)
        p.valu("v_lshrrev_b32", b, 4, b)
        p.valu("v_mul_u32_u24", b, ROWB, b)
        p.salu("s_sub_u32", sT0, sXM, R2 + 192 - ROWB)
        p.salu("s_mul_i32", sT1, sX0, 192)
        p.salu("s_add_u32", sT0, sT0, sT1)
        p.valu("v_add3_u32", a, a, b, sT0)
        p.salu("s_mov_b32", "m0", LDS_BYTES)
        p.salu("s_add_u32", sT1, sYB, 4 * ROWB)
        for so in (sYB, sT1):
            p.raw(f"buffer_load_dword {a}, {sX}, {so} offen lds")
            p.vm_seq += 1

    def conv_addr(self):
        p = self.p
        a = self.tq.sub(0)
        p.salu("s_add_u32", sT0, sSL, RS)
        for k in range(4):
            p.valu("v_add_u32", self.vB[k], sT0, self.vB0)
            if k:
                p.valu("v_add_u32", self.vB[k], k * RS, self.vB[k])
            if k >= 2:
                p.valu("v_add_u32", a, 16, self.vB[k])
                p.valu("v_bfi_b32", self.vB[k], 48, a, self.vB[k])
            p.valu("v_subrev_u32", a, 10 * RS, self.vB[k])
            p.valu("v_min_u32", self.vB[k], self.vB[k], a)
            p.valu("v_add_u32", self.vB[k], R2, self.vB[k])

    def w1_dma(self, u):
        p = self.p
        p.salu("s_and_b32", sT0, sWAVE, 3)
        p.salu("s_add_u32", sT0, sT0, 4 * u)
        p.salu("s_mul_i32", sT1, sT0, 43)
        p.salu("s_lshr_b32", sT1, sT1, 8)
        p.salu("s_lshl_b32", sT3, sT0, 10)
        p.salu("s_add_u32", "m0", sT3, W1F)
        p.salu("s_mul_i32", sT3, sT1, 6)
        p.salu("s_sub_u32", sT0, sT0, sT3)
        p.salu("s_mul_i32", sT0, sT0, 12288)
        p.salu("s_lshl_b32", sT1, sT1, 6)
        p.salu("s_add_u32", sT0, sT0, sT1)
        return p.dma(self.vW1g, sW1, sT0)

    def tr_addr(self, dst, lane, t0, hshift):
        p = self.p
        p.valu("v_lshrrev_b32", t0, 5, lane)
        p.valu("v_lshlrev_b32", dst, hshift, t0)
        p.valu("v_bfe_u32", t0, lane, 2, 2)
        p.valu("v_lshl_add_u32", dst, t0, 6, dst)
        p.valu("v_bfe_u32", t0, lane, 4, 1)
        p.valu("v_lshl_add_u32", dst, t0, 5, dst)
        p.valu("v_and_b32", t0, 1, lane)
        p.valu("v_lshl_add_u32", dst, t0, 4, dst)
        p.valu("v_bfe_u32", t0, lane, 1, 1)
        p.valu("v_lshl_add_u32", dst, t0, 3, dst)

    def prologue(self):
        p, o = self.p, self.o
        p.salu("s_cmp_ge_u32", S(2), 256)
        p.raw("s_cbranch_scc1 Lend")
        p.raw(f"s_load_dwordx16 {sLD}, s[0:1], 0")
        p.raw(f"s_load_dwordx2 {sTM}, s[0:1], 64")
        if o.get('stamps'):
            p.raw("s_memtime s[68:69]")
            p.raw("s_memrealtime s[70:71]")
        self.mark()
        tid, lane = V(119), V(118)
        t = [V(120 + i) for i in range(48)]
        p.valu("v_mov_b32", tid, V(0))
        p.valu("v_and_b32", lane, 63, V(0))
        p.valu("v_lshrrev_b32", t[0], 6, V(0))
        p.valu("v_readfirstlane_b32", sWAVE, t[0])
        p.raw(f"s_getpc_b64 {sEX}")
        p.lines.append("Lpc:")
        p.salu("s_lshr_b32", sT0, S(2), 3)
        p.salu("s_and_b32", sT0, sT0, 15)
        p.salu("s_lshl_b32", sT0, sT0, 13)
        p.valu("v_lshrrev_b32", t[2], 3, V(0))
        p.valu("v_lshl_add_u32", t[2], t[2], 7, sT0)
        p.valu("v_min_u32", t[2], "Lend-Lpc", t[2])
        if o.get('pf', 1):
            p.raw(f"global_load_dword v112, {t[2]}, {sEX}")
            p.vm_seq += 1
        p.salu("s_and_b32", sT0, S(2), 7)
        p.salu("s_lshr_b32", sT1, S(2), 3)
        p.salu("s_and_b32", sX0, sT0, 3)
        p.salu("s_lshl_b32", sX0, sX0, 2)
        p.salu("s_and_b32", sT2, sT1, 3)
        p.salu("s_add_u32", sX0, sX0, sT2)
        p.salu("s_lshr_b32", sY0, sT0, 2)
        p.salu("s_lshl_b32", sY0, sY0, 3)
        p.salu("s_lshr_b32", sT2, sT1, 2)
        p.salu("s_add_u32", sY0, sY0, sT2)
        p.salu("s_lshl_b32", sX0, sX0, 5)
        p.salu("s_lshl_b32", sY0, sY0, 5)
        p.salu("s_and_b32", sT0, sWAVE, 3)
        p.salu("s_mul_i32", sT0, sT0, 1536)
        p.salu("s_add_u32", sXM, sT0, R2)
        p.salu("s_mul_i32", sT1, sX0, 192)
        p.salu("s_add_u32", sT0, sT0, sT1)
        p.salu("s_sub_u32", sT0, sT0, 192)
        p.valu("v_lshl_add_u32", t[1], lane, 4, sT0)
        p.valu("v_add_u32", t[3], 896, t[1])
        p.valu("v_mov_b32", t[2], OOB_V)
        p.salu("s_mov_b32", sT1, ROWB)
        p.valu("v_cmp_gt_u32", "vcc", sT1, t[1])
        p.valu("v_cndmask_b32", self.vX[0], t[2], t[1], "vcc")
        p.valu("v_cmp_gt_u32", "vcc", sT1, t[3])
        p.valu("v_cndmask_b32", self.vX[1], t[2], t[3], "vcc")
        p.salu("s_mul_i32", sYB, sY0, ROWB)
        dv, di = V(126, 2), t[8]
        p.valu("v_min_u32", di, 215, tid)
        p.valu("v_lshlrev_b32", t[10], 3, di)
        p.valu("v_lshlrev_b32", self.vA[0], 4, lane)
        p.raw("s_waitcnt lgkmcnt(0)")
        self.srd(sX, sLD.sub(0, 2), X_BYTES)
        self.mark()
        p.salu("s_cmp_ge_u32", sWAVE, 4)
        p.raw("s_cbranch_scc1 Lrowb")
        p.cond_begin()
        self.srd(sDW, sLD.sub(2, 2), 1728)
        p.buf_load("buffer_load_dwordx2", dv, t[10], sDW)
        for R in range(10):
            self.row0_dma(R)
        p.raw("s_branch Lsetup")
        p.cond_end()
        p.lines.append("Lrowb:")
        p.cond_begin()
        for R in range(10):
            self.row0_dma(R, 1)
        self.mark()
        self.srd(sW1, sLD.sub(4, 2), 73728)
        p.valu("v_lshrrev_b32", self.vW1g, 2, lane)
        p.valu("v_mul_u32_u24", self.vW1g, 768, self.vW1g)
        p.valu("v_and_b32", t[5], 3, lane)
        p.valu("v_lshl_add_u32", self.vW1g, t[5], 4, self.vW1g)
        tp = o.get('tp', 6)
        for u in range(6):
            self.w1_dma(u)
        if tp == 6:
            self.touch_rows(t[20], t[21])
        self.mark()
        p.raw(f"s_waitcnt vmcnt({8 if tp == 6 else 6})")
        self.mark()
        p.barrier()
        p.raw("s_setprio %d" % o.get('bp', 0))
        for u in range(6, 18):
            self.w1_dma(u)
            if u + 1 == tp:
                self.touch_rows(t[20], t[21])
        p.cond_end()
        p.lines.append("Lsetup:")
        self.mark()
        self.srd(sW2, sLD.sub(6, 2), 73728)
        self.srd(sGA, sLD.sub(8, 2), 768)
        self.srd(sBE, sLD.sub(10, 2), 768)
        self.srd(sOUT, sLD.sub(12, 2), X_BYTES)
        self.srd(sDBG, sLD.sub(14, 2), 256)
        self.srd(sWS, sTM, WS_BYTES)
        for i in range(3):
            p.valu("v_lshlrev_b32", self.vA[i], 4, lane)
            p.valu("v_add_u32", self.vA[i], W1F + 65536 * i, self.vA[i])
        p.salu("s_lshl_b32", sSTAMP, S(2), 3)
        p.salu("s_add_u32", sSTAMP, sSTAMP, sWAVE)
        p.salu("s_lshl_b32", sLNB, sSTAMP, 10)
        p.salu("s_add_u32", sLNB, sLNB, WS_LN - W1F)
        p.salu("s_mul_i32", sSTAMP, sSTAMP, 16 * o.get('stamps', 1))
        p.salu("s_add_u32", sSTAMP, sSTAMP, WS_STAMP)
        if o.get('stamps'):
            for i in range(4):
                p.valu("v_mov_b32", V(188 + i), S(68 + i))
            p.salu("s_sub_u32", sT0, sSTAMP, W1F)
            p.raw("s_mov_b64 exec, 1")
            p.buf_store("buffer_store_dwordx4", V(188, 4), self.vA[0], sWS, sT0, 0)
            p.raw("s_mov_b64 exec, -1")
            self.nstamp += 1
        p.salu("s_mov_b32", sK, h2u(GK) * 0x10001)
        p.salu("s_mov_b32", sM, 0xFFF8FFF8)
        m, g = t[11], t[12]
        p.valu("v_and_b32", m, 15, lane)
        p.valu("v_lshrrev_b32", g, 4, lane)
        p.valu("v_and_b32", t[13], 3, m)
        p.valu("v_mul_u32_u24", t[14], 2 * RS + 16, t[13])
        p.valu("v_lshrrev_b32", t[13], 2, m)
        p.valu("v_lshl_add_u32", t[13], t[13], 1, g)
        p.valu("v_mul_u32_u24", t[13], 192, t[13])
        p.salu("s_sub_u32", sT0, sXM, R2)
        p.valu("v_add3_u32", self.vB0, t[13], t[14], sT0)
        p.valu("v_bfe_u32", t[13], m, 2, 1)
        p.valu("v_sub_u32", t[13], g, t[13])
        p.valu("v_lshrrev_b32", t[14], 3, m)
        p.valu("v_and_b32", t[15], 3, m)
        p.valu("v_lshl_add_u32", t[15], t[14], 2, t[15])
        p.valu("v_lshlrev_b32", t[16], 6, t[13])
        p.valu("v_lshl_add_u32", t[16], t[15], 3, t[16])
        p.valu("v_add_u32", t[16], DIAG + 8, t[16])
        p.valu("v_mov_b32", t[17], DIAG)
        p.valu("v_cmp_gt_u32", "vcc", 3, t[13])
        p.valu("v_cndmask_b32", t[16], t[17], t[16], "vcc")
        p.valu("v_cmp_eq_u32", "vcc", 0, t[14])
        p.valu("v_cndmask_b32", self.vC[0], t[17], t[16], "vcc")
        p.valu("v_cndmask_b32", self.vC[1], t[16], t[17], "vcc")
        p.valu("v_lshrrev_b32", t[13], 2, m)
        p.valu("v_bfe_u32", t[15], m, 1, 1)
        p.valu("v_cmp_eq_u32", "vcc", t[13], g)
        p.valu("v_cndmask_b32", t[15], 8, t[15], "vcc")
        for i in range(2):
            p.valu("v_cmp_eq_u32", sIX[i], i, t[15])
        p.valu("v_lshlrev_b32", self.vBias, 5, g)
        p.valu("v_add_u32", self.vBias, HOLE[0], self.vBias)
        p.valu("v_lshlrev_b32", self.vG, 4, g)
        n, h = t[11], t[12]
        p.valu("v_and_b32", n, 31, lane)
        p.valu("v_lshrrev_b32", h, 5, lane)
        p.valu("v_bfe_u32", t[13], n, 2, 1)
        p.valu("v_bfe_u32", t[14], n, 3, 1)
        p.valu("v_bfe_u32", t[15], n, 1, 1)
        p.valu("v_lshrrev_b32", t[16], 4, n)
        p.valu("v_lshl_add_u32", t[15], t[16], 1, t[15])
        p.valu("v_lshl_add_u32", t[15], t[14], 2, t[15])
        p.valu("v_cmp_eq_u32", "vcc", t[13], h)
        p.valu("v_cndmask_b32", t[15], 8, t[15], "vcc")
        for i in range(8):
            p.valu("v_cmp_eq_u32", sID[i], i, t[15])
        p.valu("v_and_b32", t[16], 1, n)
        p.valu("v_lshlrev_b32", t[16], 4, t[16])
        p.valu("v_mov_b32", self.vI, 0x3F80)
        p.valu("v_lshlrev_b32", self.vI, t[16], self.vI)
        p.valu("v_and_b32", t[17], 19, n)
        p.valu("v_lshl_add_u32", t[17], t[13], 3, t[17])
        p.valu("v_lshl_add_u32", t[17], t[14], 2, t[17])
        p.valu("v_lshlrev_b32", t[17], 2, t[17])
        p.valu("v_lshl_add_u32", t[17], h, 7, t[17])
        p.salu("s_mul_i32", sW2B, sWAVE, 9216)
        p.salu("s_add_u32", sPRIV, sW2B, R2)
        p.valu("v_add_u32", self.vS, sPRIV, t[17])
        p.valu("v_and_b32", t[13], 3, lane)
        p.valu("v_mul_u32_u24", t[14], 2 * ROWB, t[13])
        p.valu("v_bfe_u32", t[13], lane, 2, 2)
        p.valu("v_mul_u32_u24", t[13], 384, t[13])
        p.valu("v_add3_u32", self.vG, self.vG, t[13], t[14])
        p.salu("s_mul_i32", sT3, sX0, 192)
        p.salu("s_add_u32", sT3, sT3, sXM)
        p.salu("s_sub_u32", sT3, sT3, R2)
        p.salu("s_and_b32", sFC, sWAVE, 4)
        p.salu("s_lshl_b32", sT1, sFC, 1)
        p.salu("s_add_u32", sT1, sT1, sY0)
        for ti in range(4):
            p.salu("s_add_u32", sT0, sT1, 16 * (ti >> 1) + (ti & 1))
            p.salu("s_mul_i32", sT0, sT0, ROWB)
            p.salu("s_add_u32", sTILE[ti], sT0, sT3)
        for i in range(2):
            p.salu("s_mov_b32", sD4[0].sub(i), 0xAAAAAAAA)
            p.salu("s_mov_b32", sD4[1].sub(i), 0xCCCCCCCC)
        p.salu("s_mov_b32", sSL, 9 * RS)
        p.salu("s_mov_b32", sCNT, 200000)
        p.valu("v_mov_b32", self.vCnt, CNT)
        self.tr_addr(self.vW1r, lane, t[28], 8)
        p.salu("s_and_b32", sT0, sWAVE, 3)
        p.salu("s_lshl_b32", sT0, sT0, 10)
        p.valu("v_add_u32", self.vW1w, sT0, self.vA[0])
        p.salu("s_add_u32", sT0, sT0, W1F)
        p.valu("v_add_u32", self.vW1r, sT0, self.vW1r)
        for r in self.SQ:
            p.valu("v_mov_b32", r, 0)
        self.mark()
        p.salu("s_cmp_ge_u32", sWAVE, 4)
        p.raw("s_cbranch_scc1 Lwa")
        p.cond_begin()
        ch = [V(64 + 2 * k, 2) for k in range(5)]
        for r in (ch[0].sub(1), ch[1].sub(1), ch[2].sub(0), ch[3].sub(0), ch[4].sub(0), ch[4].sub(1)):
            p.valu("v_mov_b32", r, 0)
        p.valu("v_min_u32", t[20], 35, tid)
        p.valu("v_mul_u32_u24", t[20], 200, t[20])
        p.valu("v_add_u32", t[20], DIAG, t[20])
        p.valu("v_and_b32", t[21], 31, tid)
        p.valu("v_lshlrev_b32", t[21], 3, t[21])
        p.valu("v_bfe_u32", t[22], tid, 5, 1)
        p.valu("v_lshl_add_u32", t[21], t[22], 13, t[21])
        p.valu("v_add_u32", t[21], HOLE[0], t[21])
        p.valu("v_cmp_gt_u32", "vcc", 64, tid)
        p.valu("v_cndmask_b32", t[20], t[21], t[20], "vcc")
        p.ds_write("ds_write_b64", t[20], ch[4])
        p.valu("v_lshrrev_b32", t[20], 1, di)
        p.valu("v_mul_u32_u24", t[21], 57, t[20])
        p.valu("v_lshrrev_b32", t[21], 11, t[21])
        p.valu("v_mul_u32_u24", t[22], 171, t[20])
        p.valu("v_lshrrev_b32", t[22], 11, t[22])
        p.valu("v_mul_u32_u24", t[20], 200, t[20])
        p.valu("v_mul_u32_u24", t[22], 2400 - 64, t[22])
        p.valu("v_mul_u32_u24", t[21], 2400 - 192, t[21])
        p.valu("v_sub_u32", t[20], t[20], t[22])
        p.valu("v_add_u32", t[20], t[20], t[21])
        p.valu("v_and_b32", t[21], 1, di)
        p.valu("v_lshl_add_u32", t[20], t[21], 5, t[20])
        p.valu("v_add_u32", t[20], DIAG + 8, t[20])
        self.gelu_table()
        p.raw("s_waitcnt vmcnt(10)")
        for r in dv.regs():
            p.p_vm[r] = None
        for k in range(4):
            p.valu("v_and_b32", ch[k].sub(k >> 1), (0xFFFF, 0xFFFF0000)[k & 1], dv.sub(k >> 1))
            p.ds_write("ds_write_b64", t[20], ch[k], 8 * k)
        self.mark()
        p.raw("s_waitcnt vmcnt(0) lgkmcnt(0)")
        self.mark()
        p.barrier()
        p.cond_end()
        p.lines.append("Lwa:")
        p.vm_done, p.lgkm_done = p.vm_seq, p.lgkm_seq
        self.mark()
        self.stamp(188)
        self.stamp(188)

    def gelu_table(self):
        p = self.p
        tid, t = V(119), [V(120 + i) for i in range(4)]
        y = [V(i) for i in range(32)]
        e = [V(32 + i) for i in range(32)]
        p.valu("v_and_b32", t[0], 255, tid)
        p.valu("v_lshlrev_b32", t[1], 8, t[0])
        for i in range(32):
            p.valu("v_add_u32", y[i], 8 * i + 4, t[1])
            p.valu("v_cvt_f32_f16", y[i], y[i])
        for i in range(32):
            p.valu("v_fmaak_f32", e[i], y[i], y[i], hex(f2u(GK)))
            p.valu("v_mul_f32", e[i], y[i], e[i])
        for i in range(32):
            p.valu("v_exp_f32", e[i], e[i])
        for i in range(32):
            p.valu("v_add_f32", e[i], "1.0", e[i])
        for i in range(32):
            p.valu("v_rcp_f32", e[i], e[i])
        for i in range(32):
            p.valu("v_mul_f32", y[i], y[i], e[i])
        for i in range(16):
            p.valu("v_cvt_pk_f16_f32", e[i], y[2 * i], y[2 * i + 1])
        p.valu("v_lshlrev_b32", t[1], 6, t[0])
        p.valu("v_bfe_u32", t[0], t[0], 2, 5)
        p.valu("v_cmp_ne_u32", "vcc", 31, t[0])
        p.raw(f"s_and_saveexec_b64 {sEX}, vcc")
        for i in range(4):
            p.ds_write("ds_write_b128", t[1], V(32 + 4 * i, 4), 16 * i)
        p.raw(f"s_mov_b64 exec, {sEX}")

    def sentinels(self):
        p = self.p
        t = [V(100 + i) for i in range(6)]
        sv = V(108, 4)
        p.salu("s_cmp_lg_u32", sWAVE, 7)
        p.raw("s_cbranch_scc1 Lnosent")
        p.cond_begin()
        lane = t[4]
        self.lane(lane)
        for i in range(4):
            p.valu("v_mov_b32", sv.sub(i), -1)
        p.valu("v_lshlrev_b32", t[0], 12, lane)
        p.valu("v_add_u32", t[1], 64 * 4096, t[0])
        p.valu("v_cmp_gt_u32", "vcc", 32, lane)
        p.valu("v_mov_b32", t[5], OOB_V)
        p.valu("v_cndmask_b32", t[1], t[5], t[1], "vcc")
        p.salu("s_lshl_b32", sT0, S(2), 4)
        p.raw(f"buffer_store_dwordx4 {sv}, {t[0]}, {sWS}, {sT0} offen sc1")
        p.raw(f"buffer_store_dwordx4 {sv}, {t[1]}, {sWS}, {sT0} offen sc1")
        p.salu("s_add_u32", sT0, sT0, WS_TOT)
        p.salu("s_cmp_lt_u32", S(2), 96)
        p.salu("s_cselect_b32", sT0, sT0, OOB_S)
        p.valu("v_lshlrev_b32", t[3], 11, lane)
        p.raw("s_mov_b64 exec, 0xff")
        p.raw(f"buffer_store_dwordx4 {sv}, {t[3]}, {sWS}, {sT0} offen sc1")
        p.raw("s_mov_b64 exec, -1")
        p.nop(2)
        p.cond_end()
        p.lines.append("Lnosent:")

    def init_counter(self):
        p = self.p
        p.salu("s_cmp_lg_u32", sWAVE, 7)
        p.raw("s_cbranch_scc1 Lnoinit")
        p.cond_begin()
        p.raw("s_waitcnt vmcnt(0)")
        p.raw(f"v_mov_b32 {self.tq.sub(0)}, 1")
        p.raw(f"v_mov_b32 {self.tq.sub(1)}, 0")
        p.raw("s_mov_b64 exec, 1")
        p.raw(f"buffer_atomic_add {self.tq.sub(0)}, {self.tq.sub(1)}, {sDBG}, 0 offen")
        p.raw("s_mov_b64 exec, -1")
        p.nop(2)
        p.cond_end()
        p.lines.append("Lnoinit:")

    def stats(self, s, t, ti, cb):
        acc = self.CA[ti].sub(4 * cb, 4)
        s2, q2 = self.ls[ti & 1][:2]
        if self.o.get('lnpk', 1):
            for k in range(2):
                c2 = acc.sub(2 * k, 2)
                if cb == 0 and k == 0:
                    last = [self.CA[ti | 1].sub(44, 4)]
                    s.valu(t, "v_pk_mul_f32", q2, c2, c2, rd=last)
                    s.valu(t, "v_pk_add_f32", s2, c2, acc.sub(2, 2), rd=last)
                else:
                    s.valu(t, "v_pk_fma_f32", q2, c2, c2, q2)
                    if cb:
                        s.valu(t, "v_pk_add_f32", s2, s2, c2)
            return
        for k in range(4):
            c, sa, qa = acc.sub(k), s2.sub(k & 1), q2.sub(k & 1)
            if cb == 0 and k < 2:
                s.valu(t, "v_mul_f32", qa, c, c)
                s.valu(t, "v_add_f32", sa, c, acc.sub(k + 2))
            else:
                s.valu(t, "v_fmac_f32", qa, c, c, rmw=True)
                if cb:
                    s.valu(t, "v_add_f32", sa, sa, c)

    def conv(self, s, blk, t0, t1, rd=(), wr=()):
        dt = (t1 - t0) / 72
        mode, s.mode = s.mode, self.o.get('dsc', 1)
        late = self.o.get('late', 1)
        for cb in range(12):
            t = t0 + 6 * cb * dt
            F = []
            for k in range(4):
                F.append(self.ring(self.ringB))
                s.ds_read(t + (k - 7) * dt, "ds_read_b128", F[k], self.vB[k], cb * 16, rd=rd)
            for dy in range(3):
                a = self.ring(self.ringA)
                for k in range(2):
                    s.ds_read(t + (2 * dy - 7) * dt, "ds_read_b64", a.sub(2 * k, 2), self.vC[k], (dy * 12 + cb) * 200)
                for par in range(2):
                    acc = self.CA[2 * blk + par].sub(4 * cb, 4)
                    s.mfma(t + (2 * dy + par) * dt, acc, a, F[dy + par], acc if dy else 0, rd=wr)
            if not late:
                for par in range(2):
                    self.stats(s, t + (9 + 3 * par) * dt, 2 * blk + par, cb)
        s.mode = mode
        if late:
            for cb in range(12):
                for par in range(2):
                    self.stats(s, t1 + 0.01, 2 * blk + par, cb)

    def ln(self, s, ti, t0, t1):
        C, D, ls, pk = self.CA[ti], self.LN[ti], self.ls[ti & 1], self.o.get('lnpk', 1)
        a, a1, q, q1, rs, off = [ls[i // 2].sub(i % 2) for i in range(6)]
        ts = t0 - (t1 - t0) * (ti & 1)
        s.valu(ts, "v_add_f32", a, a, a1)
        s.valu(ts, "v_add_f32", q, q, q1)
        s.swap(ts, 32, a, q)
        s.valu(ts, "v_add_f32", a, a, q)
        s.valu(ts, "v_mul_f32", a, f2u(1.0 / 96), a)
        s.valu(ts, "v_mov_b32", q, a)
        s.swap(ts, 32, a, q)
        s.valu(ts, "v_fma_f32", q, f"-{a}", a, q, rd=[a])
        s.valu(ts, "v_max_f32", q, 0, q)
        s.valu(ts, "v_add_f32", q, f2u(1e-5), q)
        s.valu(ts, "v_rsq_f32", q, q)
        s.valu(ts, "v_mul_f32", rs, f2u(GA), q)
        s.valu(ts, "v_mul_f32", off, a, rs)
        for i in range(24):
            t = t0 + (t1 - t0) * i / 24
            if pk:
                s.valu(t, "v_pk_fma_f32", C.sub(2 * i, 2), C.sub(2 * i, 2), ls[2], ls[2],
                       mods="op_sel:[0,0,1] op_sel_hi:[1,0,1] neg_lo:[0,0,1] neg_hi:[0,0,1]")
            else:
                for k in range(2):
                    s.valu(t, "v_fma_f32", C.sub(2 * i + k), C.sub(2 * i + k), rs, f"-{off}", rd=[off])
            s.valu(t, "v_cvt_pk_bf16_f32", D.sub(i), C.sub(2 * i), C.sub(2 * i + 1))

    def gemm1(self, s, t0, j, ln, y, pixel_lane, ringW, span=1.0, rd=()):
        for s6 in range(6):
            t = t0 + span * s6 / 6
            w = self.ring(ringW)
            a, off = self.frag(j * 6 + s6)
            s.ds_read(t - self.o.get('lead', 0.8), "ds_read_b128", w, a, off, rd=rd)
            b = ln.sub(4 * s6, 4)
            if pixel_lane:
                s.mfma(t, y, w, b, y if s6 else 0)
            else:
                s.mfma(t, y, b, w, y if s6 else 0)

    def gelu32(self, s, t0, y, nl, blk, acc=None, idk=None):
        self.gelu(s, t0, y, nl, dst=[blk.sub(i) for i in (0, 1, 4, 5, 2, 3, 6, 7)])
        t = t0 + self.o.get('fin', 0.9) + self.o.get('lw', 0.55)
        if acc is not None:
            for q in range(2):
                s.mfma(t + 0.1 * q, y, blk.sub(4 * q, 4), idk.sub(4 * q, 4), y if q else 0, 'f16')
            for i in range(16):
                s.valu(t + 0.35 + 0.02 * i, "v_fmac_f32", acc, y.sub(i), y.sub(i), rmw=True)
            t += 0.15
        for i in range(4):
            s.swap(t, 16, blk.sub(i), blk.sub(4 + i))
        return t

    def sq4(self, s, t, pair):
        q = self.q4
        s.mfma(t, q, pair, pair, q if self.q4_open else 0, '4x4')
        self.q4_open = True

    def sq4_flush(self, s, t, acc):
        if not self.q4_open:
            return
        q = self.q4
        s.valu(t, "v_cndmask_b32", q.sub(0), q.sub(0), q.sub(1), sD4[0])
        s.valu(t, "v_cndmask_b32", q.sub(2), q.sub(2), q.sub(3), sD4[0])
        s.valu(t, "v_cndmask_b32", q.sub(0), q.sub(0), q.sub(2), sD4[1])
        s.valu(t, "v_add_f32", acc, acc, q.sub(0))
        self.q4_open = False

    def gelu(self, s, t0, y, nl, acc=None, dst=None):
        o = self.o
        lw, fin = o.get('lw', 0.55), o.get('fin', 0.9)
        mixlo, mixhi = "op_sel_hi:[1,1,0]", "op_sel:[1,1,0] op_sel_hi:[1,1,0]"
        for i in range(nl):
            a0, a1 = y.sub(2 * i), y.sub(2 * i + 1)
            t = t0 + lw * i / nl
            s.valu(t, "v_cvt_pkrtz_f16_f32", a1, a0, a1)
            s.valu(t, "v_and_b32", a1, sM, a1)
            s.valu(t, "v_bfe_u32", a0, a1, 2, 14)
            s.valu(t, "v_lshrrev_b32", a1, 18, a1)
            s.ds_read(t, "ds_read_u16", a0, a0)
            s.ds_read(t, "ds_read_u16" if dst is None else "ds_read_u16_d16_hi", a1, a1)
        nt = 8 - nl
        m4, late = o.get('m4', 0) and dst is None, []
        w = [4, 4, 4, 8, 8, 4, 8, 8, 4] + ([4, 4] if dst is None else [])
        cum = [sum(w[:k]) / sum(w) for k in range(len(w) + 1)]
        for k in range(len(w)):
            for i in range(nl, 8):
                u, e = y.sub(2 * i), y.sub(2 * i + 1)
                t = t0 + cum[k] + (cum[k + 1] - cum[k]) * (i - nl) / nt
                if k == 0:
                    s.valu(t, "v_cvt_pk_f16_f32", u, u, e)
                elif k == 1:
                    s.valu(t, "v_pk_fma_f16", e, u, u, sK)
                elif k == 2:
                    s.valu(t, "v_pk_mul_f16", e, u, e)
                elif k in (3, 4):
                    s.valu(t, "v_exp_f16_sdwa", e, e, mods=(LO, HI)[k - 3])
                elif k == 5:
                    s.valu(t, "v_pk_add_f16", e, e, "1.0", mods="op_sel_hi:[1,0]")
                elif k in (6, 7):
                    s.valu(t, "v_rcp_f16_sdwa", e, e, mods=(LO, HI)[k - 6])
                elif k == 8:
                    second = m4 and (i - nl) % 2 == 1
                    s.valu(t, "v_pk_mul_f16", (y.sub(2 * i - 1) if second else u) if dst is None else dst[i], u, e)
                elif m4 and (i - nl) // 2 < nt // 2:
                    if k == 9 and (i - nl) % 2 == 0:
                        late.append((t, y.sub(2 * i, 2)))
                else:
                    s.valu(t, "v_fma_mix_f32", acc, u, u, acc, mods=(mixlo, mixhi)[k - 9])
        for t, pr in late:
            self.sq4(s, t, pr)
        for i in range(nl):
            a0, a1 = y.sub(2 * i), y.sub(2 * i + 1)
            t = t0 + fin + lw * i / nl
            if m4:
                self.sq4(s, t, y.sub(2 * i, 2))
            elif dst is None:
                for a in (a0, a1):
                    s.valu(t, "v_fma_mix_f32", acc, a, a, acc, mods=mixlo)
            else:
                s.valu(t, "v_or_b32", dst[i], a0, a1)

    def pattern(self, key, default):
        return [int(c) for c in str(self.o.get(key, default))]

    def ws_frag(self, f, fn):
        p = self.p
        if f == 0:
            return fn(sLNB)
        p.salu("s_add_u32", sT3, sLNB, f * self.o.get('fst', 1 << 21))
        return fn(sT3)

    def prio_steps(self, s, t0, t1, key='pp'):
        n = 4 * max(1, round((t1 - t0) / self.o.get(key, self.o.get('pp', 2.0))))
        for k in range(n):
            s.misc(t0 + (t1 - t0) * k / n, lambda k=k: self.p.raw(f"s_setprio {3 - k % 4}"), rd=['@bar'] if k == 0 else [], wr=['@prio'])

    def w1_transform(self, us, fr):
        p = self.p
        a, b = V(113), V(114)
        p.valu("v_add_u32", a, 65536, self.vW1r)
        p.valu("v_add_u32", b, 65536, self.vW1w)
        for k, u in enumerate(us):
            for i in range(2):
                p.ds_read("ds_read_b64_tr_b16", fr[k].sub(2 * i, 2), self.vW1r if u < 16 else a, (u % 16) * 4096 + i * 512)
        for k, u in enumerate(us):
            p.ds_write("ds_write_b128", self.vW1w if u < 16 else b, fr[k], (u % 16) * 4096)

    def code_pf(self, s, times):
        p = self.p

        def one():
            k = self.ncpf = getattr(self, 'ncpf', 0) + 1
            p.raw(f"s_getpc_b64 {sEX}")
            p.lines.append(f"Lcq{k}:")
            p.salu("s_lshl_b32", sT0, sWAVE, 10)
            p.salu("s_add_u32", sT0, sT0, self.o.get('cpd', 6144))
            p.salu("s_min_u32", sT0, sT0, f"Lend-Lcq{k}-1024")
            p.salu("s_add_u32", sEX.sub(0), sEX.sub(0), sT0)
            p.salu("s_addc_u32", sEX.sub(1), sEX.sub(1), 0)
            p.salu("s_sub_u32", sEX.sub(0), sEX.sub(0), W1F)
            p.salu("s_subb_u32", sEX.sub(1), sEX.sub(1), 0)
            p.salu("s_mov_b32", "m0", LDS_BYTES)
            p.nop(1)
            p.raw(f"global_load_lds_dword {self.vA[0]}, {sEX}")
            p.vm_seq += 1
        if self.o.get('cpf', 1):
            for t in times:
                s.misc(t, one)

    def setprio(self, s, t, lv):
        s.misc(t, lambda: self.p.raw(f"s_setprio {lv}"), wr=['@prio'])

    def phase1(self):
        p, o = self.p, self.o
        p.salu("s_cmp_lt_u32", sWAVE, 4)
        p.raw("s_cbranch_scc1 Lsu1")
        p.cond_begin()
        p.raw("s_waitcnt vmcnt(%d)" % (14 if o.get('tp', 6) <= 18 else 12))
        self.mark()
        self.w1_transform(range(6), [V(4 * u, 4) for u in range(6)])
        self.signal(C_W1A)
        self.mark()
        self.await_(C_F, 4)
        self.mark()
        for R in range(2, 10):
            self.row_dma(R)
        self.mark()
        p.raw("s_waitcnt vmcnt(16)")
        self.mark()
        self.w1_transform(range(6, 18), [V(4 * u, 4) for u in range(12)])
        self.signal(C_W1B)
        self.mark()
        p.cond_end()
        self.sentinels()
        p.raw("s_setprio 3")
        p.raw("s_waitcnt vmcnt(0)")
        self.mark()
        p.lines.append("Lsu1:")
        p.vm_done, p.lgkm_done = p.vm_seq, p.lgkm_seq
        self.stamp(188)
        s = self.s = Sched(p, o)
        nl = self.pattern('nl1', '65')
        L, cl = o.get('cl', 4.0), o.get('cc', 2.6)
        Y, ny = self.Y1, len(self.Y1)
        u = [None, V(237), V(244), V(245)]
        self.q4, self.q4_open = V(240, 4), False
        tq2 = V(238, 2)
        tmp = [V(48, 8), V(56, 8)]
        m0, m1 = o.get('m0', 0.0), o.get('m1', 2.0)

        def w2_addr():
            self.lane(u[1])
            p.valu("v_lshrrev_b32", self.vW2, 2, u[1])
            p.valu("v_mul_u32_u24", self.vW2, 192, self.vW2)
            p.valu("v_and_b32", u[1], 3, u[1])
            p.valu("v_lshl_add_u32", self.vW2, u[1], 4, self.vW2)

        def init_check():
            p.salu("s_cmp_lg_u32", sWAVE, 0)
            p.raw("s_cbranch_scc1 Lpix")
            p.cond_begin()
            p.raw(f"v_mov_b32 {u[2]}, 0")
            p.lines.append("Lpi:")
            p.raw(f"buffer_load_dword {u[3]}, {u[2]}, {sDBG}, 0 offen sc1")
            p.raw("s_waitcnt vmcnt(0)")
            p.raw(f"v_readfirstlane_b32 {sT0}, {u[3]}")
            self.spin_guard("Lpix")
            p.salu("s_cmp_lt_u32", sT0, 256)
            p.raw("s_cbranch_scc1 Lpi")
            p.cond_end()
            p.lines.append("Lpix:")

        def flush(t, j):
            s.swap(t, 32, self.SQ[j], self.SQ[j + 1])
            s.valu(t, "v_add_f32", self.SQ[j], self.SQ[j], self.SQ[j + 1])
            s.ds_write(t, "ds_write_b32", self.vS, self.SQ[j], TABO + j * 128 + (3072 - 768) * (j >= 6), rd=['@ring', '@sums'])

        for blk in range(2):
            t0 = blk * (24 + L + o.get('cd', 0.7))
            s.misc(t0 - 0.5, self.conv_addr, rd=[self.vB0, '@dma'], wr=self.vB + [self.tq], cost=90)
            if blk:
                s.misc(t0 - 0.3, lambda: p.wait(vm=self.x_tok), rd=['@dma'], wr=['@rows'])
            self.conv(s, blk, t0, t0 + cl, rd=['@rows'], wr=['@cdone'])
            s.misc(t0 + cl, lambda blk=blk: self.signal(C_F + 8 * blk, True), wr=['@cdone', self.tq], cost=8)
            h = (L - cl) / 2
            self.ln(s, 2 * blk, t0 + cl + 0.02, t0 + cl + h)
            self.ln(s, 2 * blk + 1, t0 + cl + h, t0 + L)
            t0 += L
            if blk == 0:
                s.misc(t0 - 1.0, lambda: self.await_(C_W1A, 4), wr=['@w1', self.tq], cost=40)
                if o.get('stamps'):
                    s.misc(t0, lambda: self.stamp(192), wr=[V(192, 4)])
            if blk:
                Y = [Y[1], Y[2], Y[0], Y[3], Y[4]]
            idk = V((64, 216)[blk], 8)
            if self.keep if blk else self.spi:
                for m in range(8):
                    s.valu(t0, "v_cndmask_b32", idk.sub(m), 0, self.vI, sID[m])
                    s.valu(t0, "v_and_b32", idk.sub(m), 0x3C003C00, idk.sub(m))
            for j in range(12):
                t = t0 + 2 * j
                e = 24 * blk + 2 * j
                held = [(2 * blk + par, j) in self.spi or (blk and par and j in self.keep) for par in range(2)]
                if blk == 0 and j == 4:
                    s.misc(t - 1.2, lambda: self.await_(C_W1B, 4), wr=['@w1', self.tq], cost=40)
                for s6 in range(6):
                    tt = t + m0 + (m1 - m0) * s6 / 6
                    w = self.ring(self.ring1)
                    s.ds_read(tt - o.get('lead', 0.8), "ds_read_b128", w, *self.frag(j * 6 + s6), rd=['@w1'])
                    for par in range(2):
                        y = Y[(e + par + 4) % ny]
                        ab = (self.LN[2 * blk + par].sub(4 * s6, 4), w)
                        s.mfma(tt + par * (m1 - m0) / 12, y, *(ab[::-1] if held[par] else ab), y if s6 else 0)
                if blk == 1 and j == 8:
                    d0 = t0 + o.get('w0', 16.0)
                    s.misc(d0, lambda: (self.await_(C_F + 12, 4, tq=tq2), w2_addr()), rd=[self.vA[0]],
                           wr=[self.vW2, u[1], tq2, '@ring'], cost=60)
                    for k, f in enumerate((0, 1, 2, 3, 4, 6, 7)):
                        s.vmem(d0 + 0.3 + 0.5 * k, lambda f=f: self.w2_fetch(f, self.vW2), rd=[self.vW2], wr=['@w2raw'], lat=0)
                    s.misc(d0 + 4, lambda: setattr(self, 'w2_tok0', self.w2_tok), rd=['@w2raw'], wr=['@w2t0'], cost=0)
                    for k in range(0, 8, 2):
                        flush(d0, k)
                if blk == 1 and j == 11:
                    flush(t + 1, 8)
                for par in ((1, 0) if e == 46 else (0, 1)):
                    tg, y, n = t + m1 + (par ^ (e == 46)) + o.get('g0', 0.1), Y[(e + par + 4) % ny], nl[(e + par) % len(nl)]
                    if not held[par]:
                        self.gelu(s, tg, y, n, acc=self.SQ[j])
                        continue
                    bl = self.blk3[j] if blk else self.ring(tmp)
                    te = self.gelu32(s, tg, y, n, bl, self.SQ[j], idk)
                    for q in range(0 if blk else 2):
                        s.vmem(te + 0.2 + 0.4 * q, lambda q=q, bl=bl, f=self.spi[par, j]: self.ws_frag(f + q, lambda so: p.buf_store(
                            "buffer_store_dwordx4", bl.sub(4 * q, 4), self.vA[0], sWS, so, flags=o.get('ssf', ''))), rd=[bl.sub(4 * q, 4)], lat=0)
                self.sq4_flush(s, t + m1 + 2.6, self.SQ[j])
                if blk == 0 and j == 2:
                    for k in range(6):
                        s.vmem(t + 0.7 * k, lambda k=k: self.ws_frag(k, lambda so: p.buf_store(
                            "buffer_store_dwordx4", self.LN[0].sub(4 * k, 4), self.vA[0], sWS, so, flags=o.get('ssf', ''))), rd=[self.LN[0].sub(4 * k, 4)], lat=0)
                if blk == 0 and j == 5:
                    s.misc(t, self.init_counter, wr=[self.tq])
                    s.misc(t + 1, lambda: (self.skip_round(), self.touch_rows(self.tq.sub(0), self.tq.sub(1))), wr=[self.tq, '@dma'], cost=24)
                if blk == 0 and j == 9:
                    d0 = t0 + o.get('d0', 19.0)
                    s.misc(d0, lambda: self.await_(C_F + 4, 4, True), wr=[self.tq, '@dma'], cost=40)
                    for R in range(2, 10):
                        s.vmem(d0 + o.get('dspan', 2.5) * (R - 2) / 8, lambda R=R: self.row_dma(R), rd=self.vX, wr=['@dma'], lat=0)
                if blk == 1 and j == 5:
                    s.misc(t, init_check, wr=u[2:])
                if blk == 1 and j == 3 and o.get('nt0', 0):
                    s.misc(t, lambda: self.touch_x(u[2], u[3]), wr=u[2:], cost=24)
        end = 48 + 2 * L + m1 + o.get('cd', 0.7)
        self.setprio(s, L + o.get('la', 7), 3)
        s.misc(24 + 2 * L + o.get('cd', 0.7), lambda: self.call_if(True, ["s_setprio 2"], "Lbk"), wr=['@prio'])
        self.setprio(s, end - o.get('q0', 3.0), 1)
        self.code_pf(s, [6, 16, 26, 30, 38, 48, 56])
        self.fine(s, range(0, 60), 'p1')
        self.T1 = end - m1
        flush(end, 10)
        t = [None, V(238), V(239), V(237), V(244), V(245)]
        pv = [V(128, 8), V(136, 8), V(112, 8), V(120, 8), V(216, 8)]

        def pub_addr():
            self.lane(t[3])
            p.valu("v_min_u32", t[3], 47, t[3])
            p.valu("v_lshlrev_b32", t[4], 5, t[3])
            p.valu("v_add_u32", t[4], R2 + TABO, t[4])
            p.valu("v_add_u32", t[5], 3072 - 768, t[4])
            p.valu("v_cmp_gt_u32", "vcc", 24, t[3])
            p.valu("v_cndmask_b32", t[4], t[5], t[4], "vcc")
            p.valu("v_lshlrev_b32", t[3], 13, t[3])
            p.valu("v_add_u32", t[5], 4096, t[3])
        s.misc(end - 4, pub_addr, wr=t[3:], cost=40)

        def publish():
            p.raw("s_setprio 3")
            self.ticket(t, 0, "Lnopub", pv)

            def rd(w, d):
                for k in range(2):
                    p.ds_read("ds_read_b128", d.sub(4 * k, 4), t[4], 9216 * w + 16 * k)

            def add(d, b):
                for i in range(8):
                    p.valu("v_add_f32", d.sub(i), d.sub(i), b.sub(i))
            for w in range(5):
                rd(w, pv[w])
            for w in range(1, 4):
                add(pv[0], pv[w])
                rd(4 + w, pv[w])
            for w in (4, 1, 2, 3):
                add(pv[0], pv[w])
            for i in range(8):
                p.valu("v_min_u32", pv[4].sub(i), -2, pv[0].sub(i))
            p.salu("s_lshl_b32", sT0, S(2), 4)
            p.buf_store("buffer_store_dwordx4", pv[4].sub(0, 4), t[3], sWS, sT0, flags="sc1")
            p.buf_store("buffer_store_dwordx4", pv[4].sub(4, 4), t[5], sWS, sT0, flags="sc1")
            p.ds_write("ds_write_b32", self.vCnt, t[1], C_PUB)
            p.raw("s_waitcnt lgkmcnt(0)")
            p.nop(2)
            p.cond_end()
            p.lines.append("Lnopub:")
            self.stamp(128)
        s.misc(end, publish, wr=t[1:] + pv + ['@sums', '@prio'], cost=60)

    def ticket(self, t, cnt, label, regs):
        p = self.p
        p.valu("v_mov_b32", t[1], 1)
        p.wait_all(vm=False)
        p.raw("s_mov_b64 exec, 1")
        p.raw(f"ds_add_rtn_u32 {t[2]}, {self.vCnt}, {t[1]} offset:{cnt}")
        p.raw("s_mov_b64 exec, -1")
        for v in regs:
            p._mem_issue([], list(v.regs()))
        p.raw("s_waitcnt lgkmcnt(0)")
        p.lgkm_seq += 1
        p.lgkm_done = p.lgkm_seq
        p.valu("v_readfirstlane_b32", sT0, t[2])
        p.salu("s_cmp_lg_u32", sT0, 7)
        p.raw(f"s_cbranch_scc1 {label}")
        p.cond_begin()

    def w2_fetch(self, f, addr):
        p = self.p
        k, T = divmod(f, 3)
        p.salu("s_add_u32", "m0", sPRIV, f * 1024)
        p.salu("s_add_u32", sT0, sW2B, k * 3072 + T * 64)
        self.w2_tok = p.dma(addr, sW2, sT0)

    def touch_x(self, a, b):
        p = self.p
        self.lane(b)
        p.valu("v_and_b32", a, 15, b)
        p.valu("v_min_u32", a, 11, a)
        p.valu("v_lshlrev_b32", a, 7, a)
        p.valu("v_lshrrev_b32", b, 4, b)
        p.valu("v_mul_u32_u24", b, 2 * ROWB, b)
        p.valu("v_add_u32", a, a, b)
        p.salu("s_mov_b32", "m0", LDS_BYTES)
        p.salu("s_cmp_lt_u32", sWAVE, 4)
        p.raw("s_cbranch_scc0 Lnotouch")
        p.cond_begin()
        for ti in range(2):
            p.raw(f"buffer_load_dword {a}, {sX}, {sTILE[ti]} offen lds")
            p.vm_seq += 1
        p.cond_end()
        p.lines.append("Lnotouch:")

    def poll_regs(self):
        rv = [V(128 + 4 * i, 4) for i in range(4)]
        tv = [V(128 + i) for i in range(6)]
        gv = [V(134 + i) for i in range(6)]
        t = [V(240 + i) for i in range(6)]
        return rv, tv, gv, t

    def poll_loads(self, p, reducer):
        rv, tv, gv, t = self.poll_regs()
        if reducer:
            p.salu("s_lshl_b32", sT1, S(2), 12)
            for i in range(4):
                p.buf_load("buffer_load_dwordx4", rv[i], t[5], sWS, sT1, 1024 * i, flags="sc1")
        else:
            p.salu("s_and_b32", sT1, S(2), 7)
            p.salu("s_lshl_b32", sT1, sT1, 11)
            p.salu("s_add_u32", sT1, sT1, WS_TOT)
            for i in range(6):
                p.buf_load("buffer_load_dword", tv[i], t[0], sWS, sT1, 256 * i, flags="sc1")

    def gamma_loads(self, p):
        rv, tv, gv, t = self.poll_regs()
        p.valu("v_lshrrev_b32", t[1], 1, t[0])
        for i in range(6):
            p.buf_load("buffer_load_ushort", gv[i], t[1], sGA, 0, 128 * i)

    def poll_routine(self):
        main, self.p = self.p, Prog()
        p = self.p
        rv, tv, gv, t = self.poll_regs()
        ret = f"s_setpc_b64 {sRET}"
        p.lines.append("Lpolln:")
        p.raw(f"s_getreg_b32 {sT0}, hwreg(HW_REG_IB_STS, 0, 4)")
        p.salu("s_cmp_eq_u32", sT0, 0)
        p.raw("s_cbranch_scc1 Lpoll")
        p.raw(ret)
        p.lines.append("Lpoll:")
        p.raw("s_waitcnt vmcnt(0)")
        p.salu("s_cmp_eq_u32", sROLE, 2)
        p.raw("s_cbranch_scc1 LpollC")
        allr = [rv[i].sub(k) for i in range(4) for k in range(4)]
        p.valu("v_max_u32", t[1], allr[0], allr[1])
        for i in range(2, 16, 2):
            p.valu("v_max3_u32", t[1], t[1], allr[i], allr[i + 1])
        p.valu("v_cmp_eq_u32", "vcc", -1, t[1])
        p.nop(5)
        p.raw("s_cbranch_vccz LpollR")
        self.poll_loads(p, True)
        p.raw(ret)
        self.p = p2 = Prog()
        p2.lines.append("LpollR:")
        for k in range(4):
            p2.valu("v_add_f32", rv[0].sub(k), rv[0].sub(k), rv[1].sub(k))
            p2.valu("v_add_f32", rv[3].sub(k), rv[2].sub(k), rv[3].sub(k))
            p2.valu("v_add_f32", rv[3].sub(k), rv[0].sub(k), rv[3].sub(k))
        for k in range(4):
            self.lane_sum64(rv[3].sub(k), t[1])
            p2.valu("v_min_u32", rv[3].sub(k), -2, rv[3].sub(k))
        p2.salu("s_lshl_b32", sT1, S(2), 4)
        p2.salu("s_add_u32", sT1, sT1, WS_TOT)
        p2.valu("v_lshlrev_b32", t[1], 9, t[0])
        p2.raw("s_mov_b64 exec, 0xff")
        p2.buf_store("buffer_store_dwordx4", rv[3], t[1], sWS, sT1, flags="sc1")
        p2.raw("s_mov_b64 exec, -1")
        p2.salu("s_mov_b32", sROLE, 2)
        self.poll_loads(p2, False)
        self.gamma_loads(p2)
        p2.raw(ret)
        self.p = p3 = Prog()
        p3.lines.append("LpollC:")
        p3.valu("v_max3_u32", t[1], tv[0], tv[1], tv[2])
        p3.valu("v_max3_u32", t[1], t[1], tv[3], tv[4])
        p3.valu("v_max_u32", t[1], t[1], tv[5])
        p3.valu("v_cmp_eq_u32", "vcc", -1, t[1])
        p3.nop(5)
        p3.raw("s_cbranch_vccz LpollS")
        self.poll_loads(p3, False)
        p3.raw(ret)
        self.p = p4 = Prog()
        p4.lines.append("LpollS:")
        p4.salu("s_mov_b32", sT0, f2u(1.0 / (GA * GA)))
        p4.valu("v_mov_b32", t[2], f2u(1e-6))
        for i in range(6):
            p4.valu("v_fma_f32", tv[i], tv[i], sT0, t[2])
            p4.valu("v_sqrt_f32", tv[i], tv[i])
            p4.valu("v_lshlrev_b32", gv[i], 16, gv[i])
        p4.valu("v_add_f32", t[3], tv[0], tv[1])
        for i in range(2, 6):
            p4.valu("v_add_f32", t[3], t[3], tv[i])
        self.lane_sum64(t[3], t[1])
        p4.salu("s_mov_b32", sT0, f2u(1.0 / 384))
        p4.valu("v_fma_f32", t[3], t[3], sT0, t[2])
        p4.valu("v_rcp_f32", t[3], t[3])
        for i in range(6):
            p4.valu("v_mul_f32", tv[i], tv[i], t[3])
            p4.valu("v_fma_f32", tv[i], tv[i], gv[i], "1.0")
            p4.valu("v_mul_f32", tv[i], f2u(1.0 / GA), tv[i])
        p4.salu("s_mov_b32", sROLE, 0)
        p4.nop(2)
        p4.raw(ret)
        self.p = main
        for q in (p, p2, p3, p4):
            main.lines += q.lines

    def poll_point(self, k):
        p = self.p
        p.salu("s_cmp_eq_u32", sROLE, 0)
        p.raw(f"s_cbranch_scc1 Lpp{k}")
        p.cond_begin()
        p.raw(f"s_call_b64 {sRET}, {'Lpolln' if self.o.get('nb', 1) else 'Lpoll'}")
        p.cond_end()
        p.lines.append(f"Lpp{k}:")

    def spin_guard(self, exit_label):
        p = self.p
        p.salu("s_cmp_eq_u32", sCNT, 0)
        p.salu("s_cbranch_scc1", exit_label)
        p.salu("s_sub_u32", sCNT, sCNT, 1)

    def gap(self):
        p, o, s = self.p, self.o, self.s
        rv, tv, gv, t = self.poll_regs()
        self.pollr = pollr = [V(128, 16), t[0], t[1], t[2], t[3], t[5], '@poll']
        T1 = self.T1
        g8 = t[4]

        def role():
            p.salu("s_mov_b32", sROLE, 0)
            p.valu("v_bfe_u32", g8, self.vA[0], 8, 2)
            p.valu("v_lshlrev_b32", g8, 3, g8)
            p.salu("s_cmp_lg_u32", sWAVE, 0)
            p.raw("s_cbranch_scc1 Lnorole")
            p.cond_begin()
            p.valu("v_subrev_u32", t[5], W1F, self.vA[0])
            p.valu("v_lshrrev_b32", t[0], 2, t[5])
            p.salu("s_cmp_lt_u32", S(2), 96)
            p.salu("s_cselect_b32", sROLE, 1, 2)
            p.raw("s_cbranch_scc1 Lred")
            self.poll_loads(p, False)
            self.gamma_loads(p)
            p.raw("s_branch Lnorole")
            p.lines.append("Lred:")
            self.poll_loads(p, True)
            p.cond_end()
            p.lines.append("Lnorole:")
            for r in range(128, 144):
                p.p_vm[r] = None
            p.raw("s_setprio 0")
        tp = s.misc(T1, role, wr=pollr + [g8, '@prio'], cost=10).t
        nl = self.pattern('nlg', '5')
        Y = self.Y1[3:]
        NG = len(self.todo)
        self.npoll = 0
        for n, j in enumerate(self.todo):
            tg = T1 + 2.1 + n
            self.gemm1(s, tg - (0.6 if n > 1 else 1.1), j, self.LN[3], Y[n % 2], True, self.ring1, span=0.5 if n > 1 else 1.0)
            self.gelu32(s, tg, Y[n % 2], nl[n % len(nl)], self.blk3[j])
        tw = tp + o.get('gb', 1.5)
        tq = V(248, 2) if not o.get('fine') else V(238, 2)
        s.misc(tw, lambda: self.await_(C_PUB, 1, tq=tq), rd=['@sums'], wr=['@tab', tq], cost=40)
        for k in (5, 8):
            s.vmem(tw, lambda k=k: self.w2_fetch(k, self.vW2), rd=['@tab', self.vW2], wr=['@w2raw'], lat=1200)
        if o.get('g1s', 1):
            for ti in (2, 1):
                self.ln16(s, T1 + 2, self.LN[ti])
        ta = T1 + 1.6 + NG
        tb = self.TB = ta + o.get('tb', 2.0)
        Yf = Y[NG % 2]
        self.Yr = Y[(NG + 1) % 2]
        fr = self.fr = [V(72 + 4 * k, 4) for k in range(6)] + [Yf.sub(4 * k, 4) for k in range(3)]
        bf = [V(176 + 2 * k, 2) for k in range(3)]
        u = self.u = [V(186 + i) for i in range(6)] + [Yf.sub(12 + i) for i in range(4)]
        lane, vWR = u[4], u[7:10]
        self.vH = [V(248), V(249) if not o.get('fine') else V(248)]

        def beta_loads():
            p.salu("s_mul_i32", sT0, sWAVE, 96)
            for k in range(3):
                p.buf_load("buffer_load_dwordx2", bf[k], g8, sBE, sT0, k * 32)
        s.vmem(ta, beta_loads, rd=[g8], wr=bf, lat=800)

        def addr():
            self.lane(lane)
            p.valu("v_lshl_add_u32", u[0], lane, 4, sPRIV)
            for k in range(3):
                p.salu("s_mul_i32", sT0, sWAVE, 3)
                p.salu("s_add_u32", sT0, sT0, k)
                p.salu("s_and_b32", sT1, sT0, 1)
                p.salu("s_mul_i32", sT1, sT1, 3072 - 8)
                p.salu("s_mul_i32", sT0, sT0, 3072)
                p.salu("s_sub_u32", sT0, sT0, sT1)
                p.salu("s_add_u32", sT0, sT0, R2)
                p.valu("v_lshl_add_u32", vWR[k], lane, 4, sT0)
            p.valu("v_lshl_add_u32", u[1], g8, 2, sPRIV)
            p.valu("v_and_b32", u[3], 3, lane)
            for bit, sh in ((2, 3), (3, 2), (4, 6), (5, 5)):
                p.valu("v_bfe_u32", u[5], lane, bit, 1)
                p.valu("v_lshl_add_u32", u[3], u[5], sh, u[3])
            p.valu("v_lshlrev_b32", u[3], 4, u[3])
            for i in range(2):
                p.valu("v_add_u32", self.vH[i], W1F + 36 * 1024 * i, u[3])
            p.valu("v_min_u32", u[3], 11, lane)
            p.salu("s_mul_i32", sT0, sWAVE, 12)
            p.valu("v_add_u32", u[3], sT0, u[3])
            p.valu("v_cmp_gt_u32", "vcc", 64, u[3])
            p.valu("v_lshlrev_b32", u[3], 2, u[3])
            p.valu("v_add_u32", u[6], R2 + SCO + 128, u[3])
            p.valu("v_add_u32", u[5], HOLE[1], u[3])
            p.valu("v_add_u32", u[3], HOLE[0] - 256, u[3])
            p.valu("v_cndmask_b32", u[3], u[3], u[5], "vcc")
            p.valu("v_add_u32", u[2], sPRIV, g8)
        s.misc(ta, addr, rd=[g8], wr=u + self.vH, cost=130)
        s.misc(T1 + 1.5, lambda: p.wait(vm=self.w2_tok0), rd=['@w2t0'], wr=['@w2ok0'])
        s.misc(ta + 1.1, lambda: p.wait(vm=self.w2_tok), rd=['@w2raw'], wr=['@w2ok1'])
        for k in (0, 3, 6, 1, 4, 7, 2, 5, 8):
            for y in range(2):
                s.ds_read(ta + 0.3 * (k % 3), "ds_read_b64_tr_b16", fr[k].sub(2 * y, 2), u[0], k * 1024 + y * 8, rd=['@w2ok%d' % (k in (5, 8))])
        bacc = V(120, 8)

        def partial(T):
            p._mem_issue(list(bacc.regs()) + list(fr[3].regs()), [])
            p.salu("s_mov_b32", "exec_lo", 0x00010001)
            p.salu("s_mov_b32", "exec_hi", 0x00010001)
            for y in range(2):
                p.ds_write("ds_write_b128", u[1], bacc.sub(4 * y, 4), SCO + 128 + T * 128 + y * 16)
            p.raw("s_mov_b64 exec, -1")
        for T in range(3):
            tt = ta + 0.3 + 0.5 * T
            for k in range(3):
                for y in range(2):
                    d = bacc.sub(4 * y, 4)
                    s.mfma(tt, d, fr[k * 3 + T].sub(2 * y, 2), bf[k], d if k else 0)
            s.misc(tt + 0.25, lambda T=T: partial(T), rd=[bacc, u[1], fr[3], '@ba'], cost=10)
            for k in range(3):
                f = fr[k * 3 + T]
                for i in range(4):
                    w = V(182 + 2 * (i % 2), 2)
                    tc = tt + 0.05 + 0.04 * (4 * k + i)
                    s.valu(tc, "v_lshlrev_b32", w.sub(0), 16, f.sub(i))
                    s.valu(tc, "v_and_b32", w.sub(1), 0xFFFF0000, f.sub(i))
                    s.valu(tc, "v_cvt_pk_f16_f32", f.sub(i), w.sub(0), w.sub(1), rd=['@ba'])
        k = tp + 0.8
        while k < tb:
            self.poll_op(k)
            k += o.get('pi', 0.3)
        self.prio_steps(s, tp + o.get('gp', 2.0), tb)
        self.code_pf(s, [T1 + 2, tb - 1])
        self.fine(s, [T1 - 2 + 0.5 * k for k in range(40)], 'mid')

        def ba():
            self.stamp(120)
            p.wait_all(vm=False)
            p.barrier()
            p.raw("s_setprio 2")
        s.misc(tb, ba, wr=['@ba', '@prio', '@bar'] + ([bacc] if o.get('stamps') else []))
        bs = [V(176 + i) for i in range(8)]
        for k in range(8):
            s.ds_read(tb, "ds_read_b32", bs[k], u[6], 9216 * k, rd=['@ba'])
        for k in range(1, 8):
            s.valu(tb, "v_add_f32", bs[0], bs[0], bs[k])
        s.ds_write(tb, "ds_write_b32", u[3], bs[0], rd=['@b4'])

    def poll_op(self, t):
        self.npoll += 1
        self.s.misc(t, lambda k=self.npoll: self.poll_point(k), wr=self.pollr)

    def fold(self, t):
        p, o, s, u, fr = self.p, self.o, self.s, self.u, self.fr
        rv, tv, gv, _ = self.poll_regs()
        lane, vWR = u[4], u[7:10]
        ad = [V(176 + i) for i in range(6)]

        def b4():
            p._mem_issue([], [r.b for r in ad])
            p.salu("s_cmp_lg_u32", sWAVE, 0)
            p.raw("s_cbranch_scc1 Lspinx")
            p.cond_begin()
            p.raw("s_setprio 3")
            for i, a in enumerate(ad):
                p.valu("v_add_u32", a, 64 * i, lane)
                p.valu("v_mul_u32_u24", u[5], 1366, a)
                p.valu("v_lshrrev_b32", u[5], 16, u[5])
                p.valu("v_mul_u32_u24", u[5], 9216 - 96, u[5])
                p.valu("v_lshl_add_u32", a, a, 1, u[5])
                p.valu("v_add_u32", a, R2 + SCO, a)
            p.lines.append("Lspin:")
            p.salu("s_cmp_eq_u32", sROLE, 0)
            p.raw("s_cbranch_scc1 Lspiny")
            self.spin_guard("Lspiny")
            p.raw(f"s_call_b64 {sRET}, Lpoll")
            p.raw("s_branch Lspin")
            p.lines.append("Lspiny:")
            for i in range(6):
                p.valu("v_cvt_f16_f32", tv[i], tv[i])
                p.ds_write("ds_write_b16", ad[i], tv[i])
            p.raw("s_waitcnt lgkmcnt(0)")
            p.cond_end()
            p.lines.append("Lspinx:")
            p.wait_all(vm=False)
            self.stamp(176)
            p.barrier()
            self.stamp(176)
        s.misc(t, b4, rd=[lane, '@ba'], wr=self.pollr + ad + [u[5], '@b4', '@bar', '@prio'], cost=20)
        sc = [V(176 + 2 * k, 2) for k in range(3)]
        for k in range(3):
            s.ds_read(t, "ds_read_b64", sc[k], u[2], SCO + 32 * k, rd=['@b4'])
        s.misc(t, lambda: p._mem_deps([r for v in sc for r in v.regs()]), rd=sc, wr=['@sc'])
        for k in range(3):
            for T in range(3):
                f = fr[k * 3 + T]
                for i in range(4):
                    s.valu(t, "v_pk_mul_f16", f.sub(i), f.sub(i), sc[k].sub(i & 1))
                for y in range(2):
                    s.ds_write(t, "ds_write_b64", vWR[k], f.sub(2 * y, 2), (3 * y + T) * 1024, rd=['@sc', '@w2'])

        def b5():
            p.wait_all(vm=False)
            p.barrier()
            self.stamp(176)
        s.misc(t + o.get('tf', 0.5), b5, wr=['@w2', '@bar'] + (sc if o.get('stamps') else []))

    def ln16(self, s, t, ln):
        for u in range(3):
            for i in range(4):
                s.swap(t, 16, ln.sub(8 * u + i), ln.sub(8 * u + 4 + i))

    def piece(self, k):
        return divmod(k, 3) if self.o.get('lo', 1) else (k % 2, k // 2)

    def load_x1(self, dst, ti, k):
        r, T = self.piece(k)
        self.p.buf_load("buffer_load_dwordx4", dst, self.vG, sX, sTILE[ti], 64 * T + 192 * r, flags=self.o.get('xlf', ''))

    def store1(self, src, ti, k):
        r, T = self.piece(k)
        self.p.buf_store("buffer_store_dwordx4", src, self.vG, sOUT, sTILE[ti], 64 * T + 192 * r, flags=self.o.get('osf', 'sc1'))

    def phase2(self):
        p, o, s = self.p, self.o, self.s
        aq = [V(b, 4) for b in (72, 76, 80, 84, 88, 92, 128, 132, 136, 140, 240, 244)]
        ACC = {(T, v, y): aq[6 * (1 - v) + 2 * T + y] for T in range(3) for v in range(2) for y in range(2)}
        ring = self.ring1 + [V(120, 4), V(124, 4)]
        ra = o.get('ra', 1)
        P0 = self.TB + 0.1
        F0 = (o.get('rt', 2.2) if ra else 0.0)
        G0 = F0 + o.get('tf', 0.5) + 0.05
        E0 = G0 - ra
        nl = self.pattern('nl2', '5')
        g1s = o.get('g1s', 1)
        ents = [(3, j, None) for j, _ in self.fifo]
        seq = []
        for ti in (2, 1, 0):
            rec = [j for j in range(12) if j not in self.sp[ti]]
            pos = {int((n + 0.5) * 11 / len(self.sp[ti])): j for n, j in enumerate(self.sp[ti])}
            for n in range(12):
                if n in pos:
                    ents.append((ti, pos[n], None))
                else:
                    ents.append((ti, rec[0], len(seq)))
                    seq.append((ti, rec.pop(0), len(ents) - 1))
        NE = len(seq)
        entry = {q: b for q, (_, b) in enumerate(self.fifo)}
        b0 = o.get('b0', 7)
        bt = o.get('bt', 2.4)
        tend = NE + o.get('lag', 1.6)
        g2 = o.get('g2', 1.15)

        te = lambda e: P0 + (E0 + e if e >= ra else e)
        lb = {q: te(e) + tend - (NE - 1) for q, (_, _, e) in enumerate(ents) if e is not None}
        tt = [P0 + G0 + bt * q / b0 for q in range(b0 + 1)]
        while len(tt) < 48:
            q0 = len(tt) - 1
            sl, q1 = max(((lb[q] - tt[q0]) / (q - q0), q) for q in lb if q > q0)
            tt += [tt[q0] + sl * (q - q0) for q in range(q0 + 1, q1 + 1)]
        tt.append(tt[-1] + 0.6)
        tq = tt.__getitem__
        Ys = [self.Yr, V(304 - self.Yr.b, 16), V(0, 16)]
        pool = []
        idf = V(16, 8)
        events = [(P0 + F0, 3, 0, 0)]
        for q in range(48):
            for k in range(7):
                events.append((tq(q) + (tq(q + 1) - tq(q)) * min(k, 5.9) / 6, 2, q, k))
        for e in range(NE):
            for k in range(6):
                events.append((te(e) + k / 6, 0, e, k))
            events.append((max(te(e) + g2 + 0.9, tq(4 + min(e, 40)) if e < 3 else 0), 1, e, 0))
        xq = [int(c, 16) for c in str(o.get('xq', '9ab'))]
        want = [(tq(12 * n + j) - o.get('xlead', 5.0), 'x', 12 * n + j) for n in range(4) for j in xq]
        want += [(tq(q) - o.get('slead', 4.0), 's', q) for q in range(12, 48) if ents[q][2] is None]
        want.sort()
        xbuf = {}
        events.sort()
        lns = {2: self.LN[2], 1: self.LN[1], 0: self.LN[2]}
        first = {ti: min(e for e, x in enumerate(seq) if x[0] == ti) for ti in (2, 1, 0)}
        busy = set(r for _, v in self.fifo for r in v.regs())

        def bias(T, t):
            for v in range(1):
                for y in range(2):
                    s.ds_read(t, "ds_read_b128", ACC[T, v, y], self.vBias, (0x2000 + 128 * T if T < 2 else 0) + y * 16, rd=['@b4'])

        def wread(t, addr, off, rg=ring, rd=()):
            w = self.ring(rg)
            s.ds_read(t - o.get('lead', 0.8), "ds_read_b128", w, addr, off, rd=rd)
            return w

        def reload(f, dst):
            return lambda: self.ws_frag(f, lambda so: p.buf_load("buffer_load_dwordx4", dst, self.vA[0], sWS, so, flags=o.get('rlf', '')))

        small = ring[4:]
        back = []
        for t, kind, i, k in events:
            while back and back[0][0] <= t:
                pool.append(back.pop(0)[1])
            while want and want[0][0] <= t and len(pool) > o.get('xres', 1):
                _, what, q = want.pop(0)
                x = pool.pop(0)
                (xbuf if what == 'x' else entry)[q] = x
                if o.get('show'):
                    print(f'{what} load for {q} at {t - P0:.1f}, use at {tq(q + (what == "x")) - P0:.1f}', end='; ')
                for r in range(2):
                    d = x.sub(4 * r, 4)
                    fn = (lambda d=d, r=r, q=q: self.load_x1(d, ents[q][0], 2 * xq.index(q % 12) + r)) if what == 'x' else \
                        reload(self.spi[ents[q][:2]] + r, d)
                    s.vmem(t + o.get('xg', 0.0) * r, fn, wr=[d], lat=o.get('xlat', 2000))
            if kind == 3:
                for k in range(int(F0 / o.get('pi', 0.3))):
                    self.poll_op(P0 + o.get('pi', 0.3) * k)
                self.fold(t)
                for T in range(3):
                    bias(T, t + 0.3)
                continue
            if kind == 0:
                e = i
                ti, j, _ = seq[e]
                y = Ys[e % 3]
                if k == 0:
                    assert not busy & set(y.regs()), e
                    busy |= set(y.regs())
                if e == first[0] and k == 0:
                    pool += [self.LN[1].sub(8 * f, 8) for f in range(3)]
                    for f in range(6):
                        d = self.LN[2].sub(4 * f, 4)
                        s.vmem(te(first[1]) + o.get('rl0', 0.5) + o.get('rl', 0.7) * f, reload(f, d), wr=[d])
                    if g1s:
                        self.ln16(s, t - 1.0, self.LN[2])
                if g1s:
                    z, u = divmod(k, 3)
                    w = wread(t, self.vH[j // 6], ((j % 6) * 6 + 2 * u) * 1024 + 256 * z, small if e < ra else ring)
                    for v in range(2):
                        d = y.sub(8 * v + 4 * z, 4)
                        s.mfma(t + v / 12, d, w, lns[ti].sub(8 * u + 4 * v, 4), d if u else 0)
                else:
                    s.mfma(t, y, wread(t, *self.frag(j * 6 + k), small if e < ra else ring), lns[ti].sub(4 * k, 4), y if k else 0)
                continue
            if kind == 1:
                e = i
                bl = entry[seq[e][2]] = pool.pop(0)
                if g1s:
                    self.gelu(s, te(e) + g2, Ys[e % 3], int(o.get('nlr', 5)) if e < ra else nl[e % len(nl)], dst=[bl.sub(m) for m in range(8)])
                else:
                    self.gelu32(s, te(e) + g2, Ys[e % 3], nl[e % len(nl)], bl)
                busy -= set(Ys[e % 3].regs())
                continue
            q = i
            ti, j, _ = ents[q]
            n = q % 12
            if k < 6:
                T, y = divmod(k, 2)
                w = wread(t, *self.frag(72 + (2 * j + y) * 3 + T), rd=['@w2'])
                for v in (1, 0):
                    d = ACC[T, v, y]
                    s.mfma(t + (1 - v) * (tq(q + 1) - tq(q)) / 12, d, w, entry[q].sub(4 * v, 4), d if n else ACC[T, 0, y], 'f16')
                continue
            busy -= set(entry[q].regs())
            if q > 2:
                pool.append(entry[q])
            if n in xq:
                T = xq.index(n)
                x = xbuf[q]
                pool.append(x)
                if T == 0:
                    for m in range(6):
                        if m in (2, 3):
                            s.valu(t - 0.5, "v_cndmask_b32", idf.sub(m), 0, self.vI, sIX[m - 2])
                        else:
                            s.valu(t - 0.5, "v_mov_b32", idf.sub(m), 0)
                for m in range(2):
                    v, T1 = self.piece(2 * T + m)
                    for y in range(2):
                        d = ACC[T1, v, y]
                        s.mfma(t, d, idf.sub(2 - 2 * y, 4), x.sub(4 * m, 4), d)
            if n == 11:
                sg, sp = (o.get('sg', 1.6), o.get('sp', 0.0)) if ti else (0.0, 0.0)
                st = [pool.pop(0), pool.pop(0), idf]
                for T in range(3):
                    tt = t + 0.05 * T - 0.3
                    for m in range(6):
                        v, T1 = self.piece(m)
                        if T1 == T:
                            for i in range(4):
                                s.valu(tt, "v_cvt_pk_bf16_f32", st[m // 2].sub(4 * (m % 2) + i), ACC[T, v, i >> 1].sub(2 * (i & 1)), ACC[T, v, i >> 1].sub(2 * (i & 1) + 1))
                    if ti:
                        bias(T, tt)
                for m in range(6):
                    d = st[m // 2].sub(4 * (m % 2), 4)
                    s.vmem(t + 0.1 + sg * (m // 2) + sp * (m % 2), lambda d=d, m=m, ti=ti: self.store1(d, ti, m), rd=[d], lat=0)
                back += [(t + 0.1 + sg * m + sp, st[m]) for m in range(2)]
        self.prio_steps(s, P0 + G0, tq(48) + 0.4, 'pp2')
        self.code_pf(s, [te(e) for e in range(1, NE - 10, 7)])
        self.fine(s, [te(e) for e in range(1, NE + 2)], 'p2')
        s.run(tag='all')
        for tag in ('p1', 'mid', 'p2'):
            self.fine_flush(tag)
        if o.get('fine') == 'su':
            self.nfine += 2
            self.fine_flush('su')
        self.stamp(168)

    def build(self):
        self.alloc()
        self.vW1g, self.vW1r, self.vW1w = V(115), V(116), V(117)
        self.prologue()
        self.phase1()
        self.gap()
        self.phase2()
        self.p.raw("s_endpgm")
        self.poll_routine()
        self.p.lines.append("Lend:")
        self.p.raw("s_endpgm")
        return self.p


HEADER = open('standalone__modern_conv_block_convnext_v2__vision.s.ref').read().split('; Override launch')[0]


def wrap(p):
    return f"""{HEADER}; Generated by gen/gen5.py (hand-written generator; see gen/asmgen.py, gen/sched.py)
; @launch grid=(256,1,1) block=(512,1,1) lds={LDS_BYTES}
.amdgcn_target "amdgcn-amd-amdhsa--gfx950"
.text
.globl {NAME}
.p2align 8
.type {NAME},@function
{NAME}:
{p.text()}
.section .rodata,"a"
.p2align 6
.amdhsa_kernel {NAME}
  .amdhsa_next_free_vgpr 256
  .amdhsa_next_free_sgpr 102
  .amdhsa_accum_offset 256
  .amdhsa_group_segment_fixed_size 0
  .amdhsa_kernarg_size 72
  .amdhsa_user_sgpr_count 2
  .amdhsa_user_sgpr_kernarg_segment_ptr 1
  .amdhsa_system_sgpr_workgroup_id_x 1
.end_amdhsa_kernel
"""


def parse(args):
    opt = {}
    for a in args:
        k, v = a.split('=')
        if k.startswith(('nl', 'keep', 'sp0', 'sp1', 'xq')):
            opt[k] = v
            continue
        try:
            opt[k] = int(v)
        except ValueError:
            try:
                opt[k] = float(v)
            except ValueError:
                opt[k] = v
    return opt


if __name__ == '__main__':
    out = sys.argv[1]
    opt = parse(sys.argv[2:])
    g = Gen(opt)
    p = g.build()
    from align import align_dp
    al = align_dp(p.lines)
    open(out, 'w').write(wrap(p))
    print(out, 'align', al, 'instructions', sum(p.stats.values()), 'stamps', g.nstamp,
          {k: v for k, v in p.stats.items() if k in ('s_nop', 's_waitcnt', 'ds_read_b128', 'ds_read_u16')})
```

```python
import math
import struct
import sys

from asmgen import *
from sched import Sched

NAME = 'standalone__modern_conv_block_convnext_v2__vision_kernel'


def f2u(x):
    return struct.unpack('<I', struct.pack('<f', x))[0]


def h2u(x):
    return struct.unpack('<H', struct.pack('<e', x))[0]


C2 = -2 * math.sqrt(2 / math.pi) * math.log2(math.e)
C1 = C2 * 0.044715
GA = -(abs(C1) ** (1.0 / 3.0))
GK = C2 / GA

HOLE = (0x1F00, 0x3F00)
W1F = 16384
R2 = W1F + 73728
RS = 6592
DIAG = R2 + 10 * RS
CNT = HOLE[0] + 192
C_PUB, C_W1A, C_W1B, C_F, C_T2 = 4, 8, 12, 16, 32
SCO = 3072
TABO = 5120
LDS_BYTES = 163840
WS_P = 0
WS_TOT = 96 * 256 * 16
WS_STAMP = 1 << 20
WS_LN = 4 << 20
WS_BYTES = 80 << 20
OOB_V = 0x80000000
OOB_S = 0x40000000
X_BYTES = 512 * 512 * 96 * 2
ROWB = 512 * 192
LO = "dst_sel:WORD_0 dst_unused:UNUSED_PRESERVE src0_sel:WORD_0"
HI = "dst_sel:WORD_1 dst_unused:UNUSED_PRESERVE src0_sel:WORD_1"

sX, sOUT, sW1, sW2, sDW, sGA, sBE, sWS, sDBG = [S(4 + 4 * i, 4) for i in range(9)]
sWAVE, sX0, sY0, sT0, sT1, sT2, sT3 = [S(40 + i) for i in range(7)]
sK, sM = S(48), S(49)
sID = [S(50 + 2 * i, 2) for i in range(8)]
sIX = [S(88, 2), S(90, 2)]
sD4 = [S(92, 2), S(94, 2)]
sYB, sXM = S(66), S(67)
sTILE = [S(68 + i) for i in range(4)]
sPRIV = S(72)
sSTAMP = S(73)
sEX = S(74, 2)
sCNT = S(76)
sROLE = S(77)
sRET = S(78, 2)
sLNB, sSL, sW2B, sFC = S(80), S(81), S(82), S(83)
sLD = S(80, 16)
sTM = S(96, 2)
sRT = S(98, 2)


class Gen:
    def __init__(self, opt):
        self.o = opt
        self.p = Prog()
        self.p.rawpad, self.p.warpad = opt.get('rawpad', 0), opt.get('warpad', 0)
        self.nstamp = 0
        self.rc = {}

    def stamp(self, tb):
        p = self.p
        if self.o.get('dbgs'):
            self.nstamp += 1
            reg = {3: 84, 4: 85, 8: 86, 9: 87}.get(self.nstamp)
            if reg:
                p.raw(f"s_memrealtime {sRT}")
                p.raw("s_waitcnt lgkmcnt(0)")
                p.lgkm_done = p.lgkm_seq
                p.salu("s_mov_b32", S(reg), sRT.sub(0))
            if self.nstamp == 9:
                p.salu("s_cmp_lg_u32", sWAVE, 7)
                p.raw("s_cbranch_scc1 Ldbgx")
                p.valu("v_mov_b32", V(0), 0)
                p.valu("v_not_b32", V(1), S(100))
                p.valu("v_mov_b32", V(2), S(100))
                for i in range(4):
                    p.valu("v_mov_b32", V(3 + i), S(84 + i))
                p.raw("s_mov_b64 exec, 1")
                for i in range(6):
                    p.buf_store("buffer_atomic_umax", V(1 + i), V(0), sDBG, 0, 4 + 4 * i)
                p.lines.append("Ldbgx:")
            return
        if not self.o.get('stamps'):
            return
        t = V(tb, 4)
        p.raw(f"s_memtime {sTM}")
        p.raw(f"s_memrealtime {sRT}")
        p.raw("s_waitcnt lgkmcnt(0)")
        p.lgkm_done = p.lgkm_seq
        for i in range(4):
            p.valu("v_mov_b32", t.sub(i), S(sTM.b + i))
        p.salu("s_sub_u32", sT0, sSTAMP, W1F)
        if self.o.get('dbgt'):
            p.valu("v_mov_b32", t.sub(0), 0)
        p.raw("s_mov_b64 exec, 1")
        if self.o.get('dbgt'):
            p.buf_store("buffer_atomic_umax", t.sub(2), t.sub(0), sDBG, 0, 8 + 4 * self.nstamp)
        else:
            p.buf_store("buffer_store_dwordx4", t, self.vA[0], sWS, sT0, 16 * self.nstamp)
        p.raw("s_mov_b64 exec, -1")
        p.nop(2)
        self.nstamp += 1

    def fine(self, s, times, tag):
        if self.o.get('fine') != tag:
            return
        p = self.p

        def one(k):
            if k:
                p.raw(f"v_writelane_b32 v249, s{84 + 2 * ((k - 1) % 2)}, {k - 1}")
            p.raw(f"s_memtime s[{84 + 2 * (k % 2)}:{85 + 2 * (k % 2)}]")
        for k, t in enumerate(times):
            s.misc(t, lambda k=k: one(k), wr=['@fine'])
        self.nfine = len(times)

    def mark(self):
        if self.o.get('fine') != 'su':
            return
        k = self.nfine = getattr(self, 'nfine', -1) + 1
        self.p.raw("s_memtime s[100:101]")
        self.p.raw("s_waitcnt lgkmcnt(0)")
        self.p.raw(f"v_writelane_b32 v249, s100, {k}")

    def fine_flush(self, tag):
        if self.o.get('fine') != tag:
            return
        p, k = self.p, self.nfine
        p.raw(f"s_memtime s[{84 + 2 * (k % 2)}:{85 + 2 * (k % 2)}]")
        p.raw("s_waitcnt lgkmcnt(0)")
        for i in (k - 1, k):
            p.raw(f"v_writelane_b32 v249, s{84 + 2 * (i % 2)}, {i}")
        p.salu("s_lshl_b32", sT0, S(2), 3)
        p.salu("s_add_u32", sT0, sT0, sWAVE)
        p.salu("s_lshl_b32", sT0, sT0, 10)
        p.salu("s_add_u32", sT0, sT0, (2 << 20) - W1F)
        p.buf_store("buffer_store_dword", V(249), self.vA[0], sWS, sT0)

    def frag(self, idx):
        return self.vA[idx >> 6], (idx & 63) * 1024

    def ring(self, rg):
        k = self.rc.get(id(rg), 0)
        self.rc[id(rg)] = k + 1
        return rg[k % len(rg)]

    def srd(self, d, ptr, nbytes):
        p = self.p
        p.salu("s_mov_b32", d.sub(0), ptr.sub(0))
        p.salu("s_and_b32", d.sub(1), ptr.sub(1), 0xFFFF)
        p.salu("s_mov_b32", d.sub(2), nbytes)
        p.salu("s_mov_b32", d.sub(3), 0x20000)

    def lane_sum64(self, v, t):
        p = self.p
        for r in (8, 4, 2, 1):
            p.valu("v_add_f32_dpp", v, v, v, mods=f"row_ror:{r} row_mask:0xf bank_mask:0xf")
        p.valu("v_mov_b32", t, v)
        p.swap16(v, t)
        p.valu("v_add_f32", v, v, t)
        p.valu("v_mov_b32", t, v)
        p.swap32(v, t)
        p.valu("v_add_f32", v, v, t)

    def lane(self, dst):
        self.p.valu("v_bfe_u32", dst, self.vA[0], 4, 6)

    def call_if(self, older, names, tag):
        p = self.p
        p.salu("s_cmp_lt_u32" if older else "s_cmp_ge_u32", sWAVE, 4)
        p.raw(f"s_cbranch_scc0 {tag}")
        p.cond_begin()
        for n in names:
            p.raw(n if n.startswith("s_") else f"s_call_b64 {sRET}, {n}")
        p.cond_end()
        p.lines.append(f"{tag}:")

    def alloc(self):
        self.LN = [V(24 * t, 24) for t in range(4)]
        self.CA = [V(0, 48), V(48, 48), V(48, 48), V(96, 48)]
        self.Y1 = [V(96 + 16 * i, 16) for i in range(self.o.get('ny', 5))]
        self.ring1 = [V(176 + 4 * i, 4) for i in range(4)]
        self.ringA = [V(192 + 4 * i, 4) for i in range(5)]
        self.ringB = [V(144 + 4 * i, 4) for i in range(8)]
        self.vB = [V(212 + i) for i in range(4)]
        self.ls = [[V(240, 2), V(242, 2), V(244, 2)], [V(216, 2), V(218, 2), V(220, 2)]]
        self.tq = V(222, 2)
        self.SQ = [V(224 + i) for i in range(12)]
        self.vX, self.vC = [V(236), V(237)], [V(238), V(239)]
        self.vB0, self.vCnt, self.vS = V(246), V(247), V(248)
        self.vA = [V(250), V(251), V(252)]
        self.vG, self.vBias, self.vI = V(253), V(254), V(255)
        hexs = lambda k, d: [int(c, 16) for c in str(self.o.get(k, d)) if c != 'n']
        self.keep = hexs('keep', '2345678ab')
        self.sp = {0: hexs('sp0', 'n'), 1: hexs('sp1', 'n'), 2: [], 3: []}
        self.spi = {(ti, j): 6 + 2 * n for n, (ti, j) in enumerate((ti, j) for ti in (0, 1) for j in self.sp[ti])}
        fifo = [0, 8, 16, 96, 104, 192, 200, 208, 224, 112, 216, 232]
        late = {j: b for j, b in ((10, 96), (11, 104)) if j in self.keep}
        rest = [j for j in self.keep if j not in late]
        assert len(rest) <= 6 or (len(rest) == 7 and rest[6] >= 8)
        late.update(zip(rest, [0, 8, 16, 192, 200, 208, 224]))
        self.todo = [j for j in range(12) if j not in self.keep]
        col = {b: j for j, b in late.items()}
        col.update(zip([b for b in fifo if b not in col], self.todo))
        self.fifo = [(col[b], V(b, 8)) for b in fifo]
        self.blk3 = {j: b for j, b in self.fifo}
        self.vW2 = V(246)

    def signal(self, off, dyn=False):
        p = self.p
        a, b = self.tq.sub(0), self.tq.sub(1)
        p.valu("v_mov_b32", b, 1)
        if dyn:
            p.valu("v_add_u32", a, sFC, self.vCnt)
        p.wait_all(vm=False)
        p.raw("s_mov_b64 exec, 1")
        p.ds_write("ds_add_u32", a if dyn else self.vCnt, b, off)
        p.raw("s_mov_b64 exec, -1")

    def await_(self, off, n, dyn=False, tq=None):
        p = self.p
        tq = tq or self.tq
        a, b = tq.sub(0), tq.sub(1)
        k = self.nawait = getattr(self, 'nawait', 0) + 1
        if dyn:
            p.valu("v_add_u32", a, sFC, self.vCnt)
        p.valu("v_mov_b32", b, 0)
        p.raw(f"s_branch Law{k}")
        p.lines.append(f"Lax{k}:")
        p.raw("s_sleep 2")
        p.lines.append(f"Law{k}:")
        p.raw(f"ds_read_b32 {b}, {a if dyn else self.vCnt} offset:{off}")
        p.raw(f"s_sub_u32 {sCNT}, {sCNT}, 1")
        p.raw(f"s_cselect_b32 {sT1}, {n}, 0")
        p.raw(f"s_cselect_b32 {sCNT}, 0, {sCNT}")
        p.raw("s_waitcnt lgkmcnt(0)")
        p.raw(f"v_readfirstlane_b32 {sT0}, {b}")
        p.raw("s_nop 1")
        p.raw(f"s_max_u32 {sT0}, {sT0}, {sT1}")
        p.raw(f"s_cmp_lt_u32 {sT0}, {n}")
        p.raw(f"s_cbranch_scc1 Lax{k}")
        p.lgkm_seq += 1
        p.lgkm_done = p.lgkm_seq

    def row0_dma(self, R, k=0):
        p = self.p
        p.salu("s_add_u32", "m0", sXM, R * RS + ((R >> 1) & 3) * 16 + 896 * k)
        so = sYB
        if R == 0:
            p.salu("s_sub_u32", sT2, sYB, ROWB)
            p.salu("s_cmp_eq_u32", sY0, 0)
            p.salu("s_cselect_b32", sT2, OOB_S, sT2)
            so = sT2
        elif R > 1:
            p.salu("s_add_u32", sYB, sYB, ROWB)
        p.dma(self.vX[k], sX, so, flags='nt' if self.o.get('nt0', 0) else '')

    def row_dma(self, R):
        p = self.p
        p.salu("s_add_u32", sSL, sSL, RS)
        p.salu("s_cmp_eq_u32", sSL, 10 * RS)
        p.salu("s_cselect_b32", sSL, 0, sSL)
        p.salu("s_add_u32", sT0, sSL, sXM)
        p.salu("s_add_u32", "m0", sT0, ((R >> 1) & 3) * 16)
        p.salu("s_add_u32", sYB, sYB, ROWB)
        p.dma(self.vX[0], sX, sYB)
        p.salu("s_add_u32", "m0", sT0, ((R >> 1) & 3) * 16 + 896)
        self.x_tok = p.dma(self.vX[1], sX, sYB)

    def skip_round(self):
        p = self.p
        p.salu("s_add_u32", sYB, sYB, 8 * ROWB)
        p.salu("s_sub_u32", sSL, sSL, 2 * RS)

    def touch_rows(self, a, b):
        p = self.p
        self.lane(b)
        p.valu("v_and_b32", a, 15, b)
        p.valu("v_lshlrev_b32", a, 7, a)
        p.valu("v_lshrrev_b32", b, 4, b)
        p.valu("v_mul_u32_u24", b, ROWB, b)
        p.salu("s_sub_u32", sT0, sXM, R2 + 192 - ROWB)
        p.salu("s_mul_i32", sT1, sX0, 192)
        p.salu("s_add_u32", sT0, sT0, sT1)
        p.valu("v_add3_u32", a, a, b, sT0)
        p.salu("s_mov_b32", "m0", LDS_BYTES)
        p.salu("s_add_u32", sT1, sYB, 4 * ROWB)
        for so in (sYB, sT1):
            p.raw(f"buffer_load_dword {a}, {sX}, {so} offen lds")
            p.vm_seq += 1

    def conv_addr(self):
        p = self.p
        a = self.tq.sub(0)
        p.salu("s_add_u32", sT0, sSL, RS)
        for k in range(4):
            p.valu("v_add_u32", self.vB[k], sT0, self.vB0)
            if k:
                p.valu("v_add_u32", self.vB[k], k * RS, self.vB[k])
            if k >= 2:
                p.valu("v_add_u32", a, 16, self.vB[k])
                p.valu("v_bfi_b32", self.vB[k], 48, a, self.vB[k])
            p.valu("v_subrev_u32", a, 10 * RS, self.vB[k])
            p.valu("v_min_u32", self.vB[k], self.vB[k], a)
            p.valu("v_add_u32", self.vB[k], R2, self.vB[k])

    def w1_dma(self, u):
        p = self.p
        p.salu("s_and_b32", sT0, sWAVE, 3)
        p.salu("s_add_u32", sT0, sT0, 4 * u)
        p.salu("s_mul_i32", sT1, sT0, 43)
        p.salu("s_lshr_b32", sT1, sT1, 8)
        p.salu("s_lshl_b32", sT3, sT0, 10)
        p.salu("s_add_u32", "m0", sT3, W1F)
        p.salu("s_mul_i32", sT3, sT1, 6)
        p.salu("s_sub_u32", sT0, sT0, sT3)
        p.salu("s_mul_i32", sT0, sT0, 12288)
        p.salu("s_lshl_b32", sT1, sT1, 6)
        p.salu("s_add_u32", sT0, sT0, sT1)
        return p.dma(self.vW1g, sW1, sT0)

    def tr_addr(self, dst, lane, t0, hshift):
        p = self.p
        p.valu("v_lshrrev_b32", t0, 5, lane)
        p.valu("v_lshlrev_b32", dst, hshift, t0)
        p.valu("v_bfe_u32", t0, lane, 2, 2)
        p.valu("v_lshl_add_u32", dst, t0, 6, dst)
        p.valu("v_bfe_u32", t0, lane, 4, 1)
        p.valu("v_lshl_add_u32", dst, t0, 5, dst)
        p.valu("v_and_b32", t0, 1, lane)
        p.valu("v_lshl_add_u32", dst, t0, 4, dst)
        p.valu("v_bfe_u32", t0, lane, 1, 1)
        p.valu("v_lshl_add_u32", dst, t0, 3, dst)

    def prologue(self):
        p, o = self.p, self.o
        p.salu("s_cmp_ge_u32", S(2), 256)
        p.raw("s_cbranch_scc1 Lend")
        p.raw(f"s_load_dwordx16 {sLD}, s[0:1], 0")
        p.raw(f"s_load_dwordx2 {sTM}, s[0:1], 64")
        if o.get('stamps'):
            p.raw("s_memtime s[68:69]")
            p.raw("s_memrealtime s[70:71]")
        if o.get('dbgs'):
            p.raw("s_memrealtime s[100:101]")
        self.mark()
        tid, lane = V(119), V(118)
        t = [V(120 + i) for i in range(48)]
        p.valu("v_mov_b32", tid, V(0))
        p.valu("v_and_b32", lane, 63, V(0))
        p.valu("v_lshrrev_b32", t[0], 6, V(0))
        p.valu("v_readfirstlane_b32", sWAVE, t[0])
        p.raw(f"s_getpc_b64 {sEX}")
        p.lines.append("Lpc:")
        p.salu("s_lshr_b32", sT0, S(2), 3)
        p.salu("s_and_b32", sT0, sT0, 15)
        p.salu("s_lshl_b32", sT0, sT0, 13)
        p.valu("v_lshrrev_b32", t[2], 3, V(0))
        p.valu("v_lshl_add_u32", t[2], t[2], 7, sT0)
        p.valu("v_min_u32", t[2], "Lend-Lpc", t[2])
        if o.get('pf', 1):
            p.raw(f"global_load_dword v112, {t[2]}, {sEX}")
            p.vm_seq += 1
        p.salu("s_and_b32", sT0, S(2), 7)
        p.salu("s_lshr_b32", sT1, S(2), 3)
        p.salu("s_and_b32", sX0, sT0, 3)
        p.salu("s_lshl_b32", sX0, sX0, 2)
        p.salu("s_and_b32", sT2, sT1, 3)
        p.salu("s_add_u32", sX0, sX0, sT2)
        p.salu("s_lshr_b32", sY0, sT0, 2)
        p.salu("s_lshl_b32", sY0, sY0, 3)
        p.salu("s_lshr_b32", sT2, sT1, 2)
        p.salu("s_add_u32", sY0, sY0, sT2)
        p.salu("s_lshl_b32", sX0, sX0, 5)
        p.salu("s_lshl_b32", sY0, sY0, 5)
        p.salu("s_and_b32", sT0, sWAVE, 3)
        p.salu("s_mul_i32", sT0, sT0, 1536)
        p.salu("s_add_u32", sXM, sT0, R2)
        p.salu("s_mul_i32", sT1, sX0, 192)
        p.salu("s_add_u32", sT0, sT0, sT1)
        p.salu("s_sub_u32", sT0, sT0, 192)
        p.valu("v_lshl_add_u32", t[1], lane, 4, sT0)
        p.valu("v_add_u32", t[3], 896, t[1])
        p.valu("v_mov_b32", t[2], OOB_V)
        p.salu("s_mov_b32", sT1, ROWB)
        p.valu("v_cmp_gt_u32", "vcc", sT1, t[1])
        p.valu("v_cndmask_b32", self.vX[0], t[2], t[1], "vcc")
        p.valu("v_cmp_gt_u32", "vcc", sT1, t[3])
        p.valu("v_cndmask_b32", self.vX[1], t[2], t[3], "vcc")
        p.salu("s_mul_i32", sYB, sY0, ROWB)
        dv, di = V(126, 2), t[8]
        p.valu("v_min_u32", di, 215, tid)
        p.valu("v_lshlrev_b32", t[10], 3, di)
        p.valu("v_lshlrev_b32", self.vA[0], 4, lane)
        p.raw("s_waitcnt lgkmcnt(0)")
        self.srd(sX, sLD.sub(0, 2), X_BYTES)
        self.mark()
        p.salu("s_cmp_ge_u32", sWAVE, 4)
        p.raw("s_cbranch_scc1 Lrowb")
        p.cond_begin()
        self.srd(sDW, sLD.sub(2, 2), 1728)
        p.buf_load("buffer_load_dwordx2", dv, t[10], sDW)
        for R in range(10):
            self.row0_dma(R)
        p.raw("s_branch Lsetup")
        p.cond_end()
        p.lines.append("Lrowb:")
        p.cond_begin()
        for R in range(10):
            self.row0_dma(R, 1)
        self.mark()
        self.srd(sW1, sLD.sub(4, 2), 73728)
        p.valu("v_lshrrev_b32", self.vW1g, 2, lane)
        p.valu("v_mul_u32_u24", self.vW1g, 768, self.vW1g)
        p.valu("v_and_b32", t[5], 3, lane)
        p.valu("v_lshl_add_u32", self.vW1g, t[5], 4, self.vW1g)
        tp = o.get('tp', 6)
        for u in range(6):
            self.w1_dma(u)
        if tp == 6:
            self.touch_rows(t[20], t[21])
        self.mark()
        p.raw(f"s_waitcnt vmcnt({8 if tp == 6 else 6})")
        self.mark()
        p.barrier()
        p.raw("s_setprio %d" % o.get('bp', 0))
        for u in range(6, 18):
            self.w1_dma(u)
            if u + 1 == tp:
                self.touch_rows(t[20], t[21])
        p.cond_end()
        p.lines.append("Lsetup:")
        self.mark()
        self.srd(sW2, sLD.sub(6, 2), 73728)
        self.srd(sGA, sLD.sub(8, 2), 768)
        self.srd(sBE, sLD.sub(10, 2), 768)
        self.srd(sOUT, sLD.sub(12, 2), X_BYTES)
        self.srd(sDBG, sLD.sub(14, 2), 256)
        self.srd(sWS, sTM, WS_BYTES)
        for i in range(3):
            p.valu("v_lshlrev_b32", self.vA[i], 4, lane)
            p.valu("v_add_u32", self.vA[i], W1F + 65536 * i, self.vA[i])
        p.salu("s_lshl_b32", sSTAMP, S(2), 3)
        p.salu("s_add_u32", sSTAMP, sSTAMP, sWAVE)
        p.salu("s_lshl_b32", sLNB, sSTAMP, 10)
        p.salu("s_add_u32", sLNB, sLNB, WS_LN - W1F)
        p.salu("s_mul_i32", sSTAMP, sSTAMP, 16 * o.get('stamps', 1))
        p.salu("s_add_u32", sSTAMP, sSTAMP, WS_STAMP)
        if o.get('stamps'):
            for i in range(4):
                p.valu("v_mov_b32", V(188 + i), S(68 + i))
            p.salu("s_sub_u32", sT0, sSTAMP, W1F)
            p.raw("s_mov_b64 exec, 1")
            if o.get('dbgt'):
                p.valu("v_mov_b32", V(188), 0)
                p.valu("v_not_b32", V(189), V(190))
                p.buf_store("buffer_atomic_umax", V(189), V(188), sDBG, 0, 4)
                p.buf_store("buffer_atomic_umax", V(190), V(188), sDBG, 0, 8)
            else:
                p.buf_store("buffer_store_dwordx4", V(188, 4), self.vA[0], sWS, sT0, 0)
            p.raw("s_mov_b64 exec, -1")
            self.nstamp += 1
        p.salu("s_mov_b32", sK, h2u(GK) * 0x10001)
        p.salu("s_mov_b32", sM, 0xFFF8FFF8)
        m, g = t[11], t[12]
        p.valu("v_and_b32", m, 15, lane)
        p.valu("v_lshrrev_b32", g, 4, lane)
        p.valu("v_and_b32", t[13], 3, m)
        p.valu("v_mul_u32_u24", t[14], 2 * RS + 16, t[13])
        p.valu("v_lshrrev_b32", t[13], 2, m)
        p.valu("v_lshl_add_u32", t[13], t[13], 1, g)
        p.valu("v_mul_u32_u24", t[13], 192, t[13])
        p.salu("s_sub_u32", sT0, sXM, R2)
        p.valu("v_add3_u32", self.vB0, t[13], t[14], sT0)
        p.valu("v_bfe_u32", t[13], m, 2, 1)
        p.valu("v_sub_u32", t[13], g, t[13])
        p.valu("v_lshrrev_b32", t[14], 3, m)
        p.valu("v_and_b32", t[15], 3, m)
        p.valu("v_lshl_add_u32", t[15], t[14], 2, t[15])
        p.valu("v_lshlrev_b32", t[16], 6, t[13])
        p.valu("v_lshl_add_u32", t[16], t[15], 3, t[16])
        p.valu("v_add_u32", t[16], DIAG + 8, t[16])
        p.valu("v_mov_b32", t[17], DIAG)
        p.valu("v_cmp_gt_u32", "vcc", 3, t[13])
        p.valu("v_cndmask_b32", t[16], t[17], t[16], "vcc")
        p.valu("v_cmp_eq_u32", "vcc", 0, t[14])
        p.valu("v_cndmask_b32", self.vC[0], t[17], t[16], "vcc")
        p.valu("v_cndmask_b32", self.vC[1], t[16], t[17], "vcc")
        p.valu("v_lshrrev_b32", t[13], 2, m)
        p.valu("v_bfe_u32", t[15], m, 1, 1)
        p.valu("v_cmp_eq_u32", "vcc", t[13], g)
        p.valu("v_cndmask_b32", t[15], 8, t[15], "vcc")
        for i in range(2):
            p.valu("v_cmp_eq_u32", sIX[i], i, t[15])
        p.valu("v_lshlrev_b32", self.vBias, 5, g)
        p.valu("v_add_u32", self.vBias, HOLE[0], self.vBias)
        p.valu("v_lshlrev_b32", self.vG, 4, g)
        n, h = t[11], t[12]
        p.valu("v_and_b32", n, 31, lane)
        p.valu("v_lshrrev_b32", h, 5, lane)
        p.valu("v_bfe_u32", t[13], n, 2, 1)
        p.valu("v_bfe_u32", t[14], n, 3, 1)
        p.valu("v_bfe_u32", t[15], n, 1, 1)
        p.valu("v_lshrrev_b32", t[16], 4, n)
        p.valu("v_lshl_add_u32", t[15], t[16], 1, t[15])
        p.valu("v_lshl_add_u32", t[15], t[14], 2, t[15])
        p.valu("v_cmp_eq_u32", "vcc", t[13], h)
        p.valu("v_cndmask_b32", t[15], 8, t[15], "vcc")
        for i in range(8):
            p.valu("v_cmp_eq_u32", sID[i], i, t[15])
        p.valu("v_and_b32", t[16], 1, n)
        p.valu("v_lshlrev_b32", t[16], 4, t[16])
        p.valu("v_mov_b32", self.vI, 0x3F80)
        p.valu("v_lshlrev_b32", self.vI, t[16], self.vI)
        p.valu("v_and_b32", t[17], 19, n)
        p.valu("v_lshl_add_u32", t[17], t[13], 3, t[17])
        p.valu("v_lshl_add_u32", t[17], t[14], 2, t[17])
        p.valu("v_lshlrev_b32", t[17], 2, t[17])
        p.valu("v_lshl_add_u32", t[17], h, 7, t[17])
        p.salu("s_mul_i32", sW2B, sWAVE, 9216)
        p.salu("s_add_u32", sPRIV, sW2B, R2)
        p.valu("v_add_u32", self.vS, sPRIV, t[17])
        p.valu("v_and_b32", t[13], 3, lane)
        p.valu("v_mul_u32_u24", t[14], 2 * ROWB, t[13])
        p.valu("v_bfe_u32", t[13], lane, 2, 2)
        p.valu("v_mul_u32_u24", t[13], 384, t[13])
        p.valu("v_add3_u32", self.vG, self.vG, t[13], t[14])
        p.salu("s_mul_i32", sT3, sX0, 192)
        p.salu("s_add_u32", sT3, sT3, sXM)
        p.salu("s_sub_u32", sT3, sT3, R2)
        p.salu("s_and_b32", sFC, sWAVE, 4)
        p.salu("s_lshl_b32", sT1, sFC, 1)
        p.salu("s_add_u32", sT1, sT1, sY0)
        for ti in range(4):
            p.salu("s_add_u32", sT0, sT1, 16 * (ti >> 1) + (ti & 1))
            p.salu("s_mul_i32", sT0, sT0, ROWB)
            p.salu("s_add_u32", sTILE[ti], sT0, sT3)
        for i in range(2):
            p.salu("s_mov_b32", sD4[0].sub(i), 0xAAAAAAAA)
            p.salu("s_mov_b32", sD4[1].sub(i), 0xCCCCCCCC)
        p.salu("s_mov_b32", sSL, 9 * RS)
        p.salu("s_mov_b32", sCNT, 200000)
        p.valu("v_mov_b32", self.vCnt, CNT)
        self.tr_addr(self.vW1r, lane, t[28], 8)
        p.salu("s_and_b32", sT0, sWAVE, 3)
        p.salu("s_lshl_b32", sT0, sT0, 10)
        p.valu("v_add_u32", self.vW1w, sT0, self.vA[0])
        p.salu("s_add_u32", sT0, sT0, W1F)
        p.valu("v_add_u32", self.vW1r, sT0, self.vW1r)
        for r in self.SQ:
            p.valu("v_mov_b32", r, 0)
        self.mark()
        p.salu("s_cmp_ge_u32", sWAVE, 4)
        p.raw("s_cbranch_scc1 Lwa")
        p.cond_begin()
        ch = [V(64 + 2 * k, 2) for k in range(5)]
        for r in (ch[0].sub(1), ch[1].sub(1), ch[2].sub(0), ch[3].sub(0), ch[4].sub(0), ch[4].sub(1)):
            p.valu("v_mov_b32", r, 0)
        p.valu("v_min_u32", t[20], 35, tid)
        p.valu("v_mul_u32_u24", t[20], 200, t[20])
        p.valu("v_add_u32", t[20], DIAG, t[20])
        p.valu("v_and_b32", t[21], 31, tid)
        p.valu("v_lshlrev_b32", t[21], 3, t[21])
        p.valu("v_bfe_u32", t[22], tid, 5, 1)
        p.valu("v_lshl_add_u32", t[21], t[22], 13, t[21])
        p.valu("v_add_u32", t[21], HOLE[0], t[21])
        p.valu("v_cmp_gt_u32", "vcc", 64, tid)
        p.valu("v_cndmask_b32", t[20], t[21], t[20], "vcc")
        p.ds_write("ds_write_b64", t[20], ch[4])
        p.valu("v_lshrrev_b32", t[20], 1, di)
        p.valu("v_mul_u32_u24", t[21], 57, t[20])
        p.valu("v_lshrrev_b32", t[21], 11, t[21])
        p.valu("v_mul_u32_u24", t[22], 171, t[20])
        p.valu("v_lshrrev_b32", t[22], 11, t[22])
        p.valu("v_mul_u32_u24", t[20], 200, t[20])
        p.valu("v_mul_u32_u24", t[22], 2400 - 64, t[22])
        p.valu("v_mul_u32_u24", t[21], 2400 - 192, t[21])
        p.valu("v_sub_u32", t[20], t[20], t[22])
        p.valu("v_add_u32", t[20], t[20], t[21])
        p.valu("v_and_b32", t[21], 1, di)
        p.valu("v_lshl_add_u32", t[20], t[21], 5, t[20])
        p.valu("v_add_u32", t[20], DIAG + 8, t[20])
        self.gelu_table()
        p.raw("s_waitcnt vmcnt(10)")
        for r in dv.regs():
            p.p_vm[r] = None
        for k in range(4):
            p.valu("v_and_b32", ch[k].sub(k >> 1), (0xFFFF, 0xFFFF0000)[k & 1], dv.sub(k >> 1))
            p.ds_write("ds_write_b64", t[20], ch[k], 8 * k)
        self.mark()
        p.raw("s_waitcnt vmcnt(0) lgkmcnt(0)")
        self.mark()
        p.barrier()
        p.cond_end()
        p.lines.append("Lwa:")
        p.vm_done, p.lgkm_done = p.vm_seq, p.lgkm_seq
        self.mark()
        self.stamp(188)
        self.stamp(188)

    def gelu_table(self):
        p = self.p
        tid, t = V(119), [V(120 + i) for i in range(4)]
        y = [V(i) for i in range(32)]
        e = [V(32 + i) for i in range(32)]
        p.valu("v_and_b32", t[0], 255, tid)
        p.valu("v_lshlrev_b32", t[1], 8, t[0])
        for i in range(32):
            p.valu("v_add_u32", y[i], 8 * i + 4, t[1])
            p.valu("v_cvt_f32_f16", y[i], y[i])
        for i in range(32):
            p.valu("v_fmaak_f32", e[i], y[i], y[i], hex(f2u(GK)))
            p.valu("v_mul_f32", e[i], y[i], e[i])
        for i in range(32):
            p.valu("v_exp_f32", e[i], e[i])
        for i in range(32):
            p.valu("v_add_f32", e[i], "1.0", e[i])
        for i in range(32):
            p.valu("v_rcp_f32", e[i], e[i])
        for i in range(32):
            p.valu("v_mul_f32", y[i], y[i], e[i])
        for i in range(16):
            p.valu("v_cvt_pk_f16_f32", e[i], y[2 * i], y[2 * i + 1])
        tl = self.o.get('tl', 2)
        if tl:
            for i in range(16):
                p.valu("v_add_u32", e[i], (1 << tl >> 1) * 0x10001, e[i])
                p.valu("v_and_b32", e[i], (0xFFFF >> tl << tl) * 0x10001, e[i])
        p.valu("v_lshlrev_b32", t[1], 6, t[0])
        p.valu("v_bfe_u32", t[0], t[0], 2, 5)
        p.valu("v_cmp_ne_u32", "vcc", 31, t[0])
        p.raw(f"s_and_saveexec_b64 {sEX}, vcc")
        for i in range(4):
            p.ds_write("ds_write_b128", t[1], V(32 + 4 * i, 4), 16 * i)
        p.raw(f"s_mov_b64 exec, {sEX}")

    def sentinels(self):
        p = self.p
        t = [V(100 + i) for i in range(6)]
        sv = V(108, 4)
        p.salu("s_cmp_lg_u32", sWAVE, 7)
        p.raw("s_cbranch_scc1 Lnosent")
        p.cond_begin()
        lane = t[4]
        self.lane(lane)
        for i in range(4):
            p.valu("v_mov_b32", sv.sub(i), -1)
        p.valu("v_lshlrev_b32", t[0], 12, lane)
        p.valu("v_add_u32", t[1], 64 * 4096, t[0])
        p.valu("v_cmp_gt_u32", "vcc", 32, lane)
        p.valu("v_mov_b32", t[5], OOB_V)
        p.valu("v_cndmask_b32", t[1], t[5], t[1], "vcc")
        p.salu("s_lshl_b32", sT0, S(2), 4)
        p.raw(f"buffer_store_dwordx4 {sv}, {t[0]}, {sWS}, {sT0} offen sc1")
        p.raw(f"buffer_store_dwordx4 {sv}, {t[1]}, {sWS}, {sT0} offen sc1")
        p.salu("s_add_u32", sT0, sT0, WS_TOT)
        p.salu("s_cmp_lt_u32", S(2), 96)
        p.salu("s_cselect_b32", sT0, sT0, OOB_S)
        p.valu("v_lshlrev_b32", t[3], 11, lane)
        p.raw("s_mov_b64 exec, 0xff")
        p.raw(f"buffer_store_dwordx4 {sv}, {t[3]}, {sWS}, {sT0} offen sc1")
        p.raw("s_mov_b64 exec, -1")
        p.nop(2)
        p.cond_end()
        p.lines.append("Lnosent:")

    def init_counter(self):
        p = self.p
        p.salu("s_cmp_lg_u32", sWAVE, 7)
        p.raw("s_cbranch_scc1 Lnoinit")
        p.cond_begin()
        p.raw("s_waitcnt vmcnt(0)")
        p.raw(f"v_mov_b32 {self.tq.sub(0)}, 1")
        p.raw(f"v_mov_b32 {self.tq.sub(1)}, 0")
        p.raw("s_mov_b64 exec, 1")
        p.raw(f"buffer_atomic_add {self.tq.sub(0)}, {self.tq.sub(1)}, {sDBG}, 0 offen")
        p.raw("s_mov_b64 exec, -1")
        p.nop(2)
        p.cond_end()
        p.lines.append("Lnoinit:")

    def stats(self, s, t, ti, cb):
        acc = self.CA[ti].sub(4 * cb, 4)
        s2, q2 = self.ls[ti & 1][:2]
        if self.o.get('lnpk', 1):
            for k in range(2):
                c2 = acc.sub(2 * k, 2)
                if cb == 0 and k == 0:
                    last = [self.CA[ti | 1].sub(44, 4)]
                    s.valu(t, "v_pk_mul_f32", q2, c2, c2, rd=last)
                    s.valu(t, "v_pk_add_f32", s2, c2, acc.sub(2, 2), rd=last)
                else:
                    s.valu(t, "v_pk_fma_f32", q2, c2, c2, q2)
                    if cb:
                        s.valu(t, "v_pk_add_f32", s2, s2, c2)
            return
        for k in range(4):
            c, sa, qa = acc.sub(k), s2.sub(k & 1), q2.sub(k & 1)
            if cb == 0 and k < 2:
                s.valu(t, "v_mul_f32", qa, c, c)
                s.valu(t, "v_add_f32", sa, c, acc.sub(k + 2))
            else:
                s.valu(t, "v_fmac_f32", qa, c, c, rmw=True)
                if cb:
                    s.valu(t, "v_add_f32", sa, sa, c)

    def conv(self, s, blk, t0, t1, rd=(), wr=()):
        dt = (t1 - t0) / 72
        mode, s.mode = s.mode, self.o.get('dsc', 1)
        late = self.o.get('late', 1)
        for cb in range(12):
            t = t0 + 6 * cb * dt
            F = []
            for k in range(4):
                F.append(self.ring(self.ringB))
                s.ds_read(t + (k - 7) * dt, "ds_read_b128", F[k], self.vB[k], cb * 16, rd=rd)
            for dy in range(3):
                a = self.ring(self.ringA)
                for k in range(2):
                    s.ds_read(t + (2 * dy - 7) * dt, "ds_read_b64", a.sub(2 * k, 2), self.vC[k], (dy * 12 + cb) * 200)
                for par in range(2):
                    acc = self.CA[2 * blk + par].sub(4 * cb, 4)
                    s.mfma(t + (2 * dy + par) * dt, acc, a, F[dy + par], acc if dy else 0, rd=wr)
            if not late:
                for par in range(2):
                    self.stats(s, t + (9 + 3 * par) * dt, 2 * blk + par, cb)
        s.mode = mode
        if late:
            for cb in range(12):
                for par in range(2):
                    self.stats(s, t1 + 0.01, 2 * blk + par, cb)

    def ln(self, s, ti, t0, t1):
        C, D, ls, pk = self.CA[ti], self.LN[ti], self.ls[ti & 1], self.o.get('lnpk', 1)
        a, a1, q, q1, rs, off = [ls[i // 2].sub(i % 2) for i in range(6)]
        ts = t0 - (t1 - t0) * (ti & 1)
        s.valu(ts, "v_add_f32", a, a, a1)
        s.valu(ts, "v_add_f32", q, q, q1)
        s.swap(ts, 32, a, q)
        s.valu(ts, "v_add_f32", a, a, q)
        s.valu(ts, "v_mul_f32", a, f2u(1.0 / 96), a)
        s.valu(ts, "v_mov_b32", q, a)
        s.swap(ts, 32, a, q)
        s.valu(ts, "v_fma_f32", q, f"-{a}", a, q, rd=[a])
        s.valu(ts, "v_max_f32", q, 0, q)
        s.valu(ts, "v_add_f32", q, f2u(1e-5), q)
        s.valu(ts, "v_rsq_f32", q, q)
        s.valu(ts, "v_mul_f32", rs, f2u(GA), q)
        if pk:
            s.valu(ts, "v_mul_f32", off, f2u(GA), q)
            s.valu(ts, "v_mul_f32", q, a, rs)
            s.valu(ts, "v_mul_f32", q1, a, rs)
        else:
            s.valu(ts, "v_mul_f32", off, a, rs)
        for i in range(24):
            t = t0 + (t1 - t0) * i / 24
            if pk:
                s.valu(t, "v_pk_fma_f32", C.sub(2 * i, 2), C.sub(2 * i, 2), ls[2], ls[1], mods="neg_lo:[0,0,1] neg_hi:[0,0,1]")
            else:
                for k in range(2):
                    s.valu(t, "v_fma_f32", C.sub(2 * i + k), C.sub(2 * i + k), rs, f"-{off}", rd=[off])
            s.valu(t, "v_cvt_pk_bf16_f32", D.sub(i), C.sub(2 * i), C.sub(2 * i + 1))

    def gemm1(self, s, t0, j, ln, y, pixel_lane, ringW, span=1.0, rd=()):
        for s6 in range(6):
            t = t0 + span * s6 / 6
            w = self.ring(ringW)
            a, off = self.frag(j * 6 + s6)
            s.ds_read(t - self.o.get('lead', 0.8), "ds_read_b128", w, a, off, rd=rd)
            b = ln.sub(4 * s6, 4)
            if pixel_lane:
                s.mfma(t, y, w, b, y if s6 else 0)
            else:
                s.mfma(t, y, b, w, y if s6 else 0)

    def gelu32(self, s, t0, y, nl, blk, acc=None, idk=None):
        self.gelu(s, t0, y, nl, dst=[blk.sub(i) for i in (0, 1, 4, 5, 2, 3, 6, 7)])
        t = t0 + self.o.get('fin', 0.9) + self.o.get('lw', 0.55)
        if acc is not None:
            for q in range(2):
                s.mfma(t + 0.1 * q, y, blk.sub(4 * q, 4), idk.sub(4 * q, 4), y if q else 0, 'f16')
            for i in range(16):
                s.valu(t + 0.35 + 0.02 * i, "v_fmac_f32", acc, y.sub(i), y.sub(i), rmw=True)
            t += 0.15
        for i in range(4):
            s.swap(t, 16, blk.sub(i), blk.sub(4 + i))
        return t

    def sq4(self, s, t, pair):
        q = self.q4
        s.mfma(t, q, pair, pair, q if self.q4_open else 0, '4x4')
        self.q4_open = True

    def sq4_flush(self, s, t, acc):
        if not self.q4_open:
            return
        q = self.q4
        s.valu(t, "v_cndmask_b32", q.sub(0), q.sub(0), q.sub(1), sD4[0])
        s.valu(t, "v_cndmask_b32", q.sub(2), q.sub(2), q.sub(3), sD4[0])
        s.valu(t, "v_cndmask_b32", q.sub(0), q.sub(0), q.sub(2), sD4[1])
        s.valu(t, "v_add_f32", acc, acc, q.sub(0))
        self.q4_open = False

    def gelu(self, s, t0, y, nl, acc=None, dst=None):
        o = self.o
        lw, fin = o.get('lw', 0.55), o.get('fin', 0.9)
        mixlo, mixhi = "op_sel_hi:[1,1,0]", "op_sel:[1,1,0] op_sel_hi:[1,1,0]"
        for i in range(nl):
            a0, a1 = y.sub(2 * i), y.sub(2 * i + 1)
            t = t0 + lw * i / nl
            s.valu(t, "v_cvt_pkrtz_f16_f32", a1, a0, a1)
            s.valu(t, "v_and_b32", a1, sM, a1)
            s.valu(t, "v_bfe_u32", a0, a1, 2, 14)
            s.valu(t, "v_lshrrev_b32", a1, 18, a1)
            s.ds_read(t, "ds_read_u16", a0, a0)
            s.ds_read(t, "ds_read_u16" if dst is None else "ds_read_u16_d16_hi", a1, a1)
        nt = 8 - nl
        m4, late = o.get('m4', 0) and dst is None, []
        w = [4, 4, 4, 8, 8, 4, 8, 8, 4] + ([4, 4] if dst is None else [])
        cum = [sum(w[:k]) / sum(w) for k in range(len(w) + 1)]
        for k in range(len(w)):
            for i in range(nl, 8):
                u, e = y.sub(2 * i), y.sub(2 * i + 1)
                t = t0 + cum[k] + (cum[k + 1] - cum[k]) * (i - nl) / nt
                if k == 0:
                    s.valu(t, "v_cvt_pk_f16_f32", u, u, e)
                elif k == 1:
                    s.valu(t, "v_pk_fma_f16", e, u, u, sK)
                elif k == 2:
                    s.valu(t, "v_pk_mul_f16", e, u, e)
                elif k in (3, 4):
                    s.valu(t, "v_exp_f16_sdwa", e, e, mods=(LO, HI)[k - 3])
                elif k == 5:
                    s.valu(t, "v_pk_add_f16", e, e, "1.0", mods="op_sel_hi:[1,0]")
                elif k in (6, 7):
                    s.valu(t, "v_rcp_f16_sdwa", e, e, mods=(LO, HI)[k - 6])
                elif k == 8:
                    second = m4 and (i - nl) % 2 == 1
                    s.valu(t, "v_pk_mul_f16", (y.sub(2 * i - 1) if second else u) if dst is None else dst[i], u, e)
                elif m4 and (i - nl) // 2 < nt // 2:
                    if k == 9 and (i - nl) % 2 == 0:
                        late.append((t, y.sub(2 * i, 2)))
                else:
                    s.valu(t, "v_fma_mix_f32", acc, u, u, acc, mods=(mixlo, mixhi)[k - 9])
        for t, pr in late:
            self.sq4(s, t, pr)
        for i in range(nl):
            a0, a1 = y.sub(2 * i), y.sub(2 * i + 1)
            t = t0 + fin + lw * i / nl
            if m4:
                self.sq4(s, t, y.sub(2 * i, 2))
            elif dst is None:
                for a in (a0, a1):
                    s.valu(t, "v_fma_mix_f32", acc, a, a, acc, mods=mixlo)
            else:
                s.valu(t, "v_or_b32", dst[i], a0, a1)

    def pattern(self, key, default):
        return [int(c) for c in str(self.o.get(key, default))]

    def ws_frag(self, f, fn):
        p = self.p
        if f == 0:
            return fn(sLNB)
        p.salu("s_add_u32", sT3, sLNB, f * self.o.get('fst', 1 << 21))
        return fn(sT3)

    def prio_steps(self, s, t0, t1, key='pp'):
        n = 4 * max(1, round((t1 - t0) / self.o.get(key, self.o.get('pp', 2.0))))
        for k in range(n):
            s.misc(t0 + (t1 - t0) * k / n, lambda k=k: self.p.raw(f"s_setprio {3 - k % 4}"), rd=['@bar'] if k == 0 else [], wr=['@prio'])

    def w1_transform(self, us, fr):
        p = self.p
        a, b = V(113), V(114)
        p.valu("v_add_u32", a, 65536, self.vW1r)
        p.valu("v_add_u32", b, 65536, self.vW1w)
        for k, u in enumerate(us):
            for i in range(2):
                p.ds_read("ds_read_b64_tr_b16", fr[k].sub(2 * i, 2), self.vW1r if u < 16 else a, (u % 16) * 4096 + i * 512)
        for k, u in enumerate(us):
            p.ds_write("ds_write_b128", self.vW1w if u < 16 else b, fr[k], (u % 16) * 4096)

    def code_pf(self, s, times):
        p = self.p

        def one():
            k = self.ncpf = getattr(self, 'ncpf', 0) + 1
            p.raw(f"s_getpc_b64 {sEX}")
            p.lines.append(f"Lcq{k}:")
            p.salu("s_lshl_b32", sT0, sWAVE, 10)
            p.salu("s_add_u32", sT0, sT0, self.o.get('cpd', 6144))
            p.salu("s_min_u32", sT0, sT0, f"Lend-Lcq{k}-1024")
            p.salu("s_add_u32", sEX.sub(0), sEX.sub(0), sT0)
            p.salu("s_addc_u32", sEX.sub(1), sEX.sub(1), 0)
            p.salu("s_sub_u32", sEX.sub(0), sEX.sub(0), W1F)
            p.salu("s_subb_u32", sEX.sub(1), sEX.sub(1), 0)
            p.salu("s_mov_b32", "m0", LDS_BYTES)
            p.nop(1)
            p.raw(f"global_load_lds_dword {self.vA[0]}, {sEX}")
            p.vm_seq += 1
        if self.o.get('cpf', 0):
            for t in times:
                s.misc(t, one)

    def setprio(self, s, t, lv):
        s.misc(t, lambda: self.p.raw(f"s_setprio {lv}"), wr=['@prio'])

    def phase1(self):
        p, o = self.p, self.o
        p.salu("s_cmp_lt_u32", sWAVE, 4)
        p.raw("s_cbranch_scc1 Lsu1")
        p.cond_begin()
        p.raw("s_waitcnt vmcnt(%d)" % (14 if o.get('tp', 6) <= 18 else 12))
        self.mark()
        self.w1_transform(range(6), [V(4 * u, 4) for u in range(6)])
        self.signal(C_W1A)
        self.mark()
        self.await_(C_F, 4)
        self.mark()
        for R in range(2, 10):
            self.row_dma(R)
        self.mark()
        p.raw("s_waitcnt vmcnt(16)")
        self.mark()
        self.w1_transform(range(6, 18), [V(4 * u, 4) for u in range(12)])
        self.signal(C_W1B)
        self.mark()
        p.cond_end()
        self.sentinels()
        p.raw("s_setprio 3")
        p.raw("s_waitcnt vmcnt(0)")
        self.mark()
        p.lines.append("Lsu1:")
        p.vm_done, p.lgkm_done = p.vm_seq, p.lgkm_seq
        self.stamp(188)
        s = self.s = Sched(p, o)
        nl = self.pattern('nl1', '65')
        L, cl = o.get('cl', 4.0), o.get('cc', 2.6)
        Y, ny = self.Y1, len(self.Y1)
        u = [None, V(237), V(244), V(245)]
        self.q4, self.q4_open = V(240, 4), False
        tq2 = V(238, 2)
        tmp = [V(48, 8), V(56, 8)]
        m0, m1 = o.get('m0', 0.0), o.get('m1', 2.0)

        def w2_addr():
            self.lane(u[1])
            p.valu("v_lshrrev_b32", self.vW2, 2, u[1])
            p.valu("v_mul_u32_u24", self.vW2, 192, self.vW2)
            p.valu("v_and_b32", u[1], 3, u[1])
            p.valu("v_lshl_add_u32", self.vW2, u[1], 4, self.vW2)

        def init_check():
            p.salu("s_cmp_lg_u32", sWAVE, 0)
            p.raw("s_cbranch_scc1 Lpix")
            p.cond_begin()
            p.raw(f"v_mov_b32 {u[2]}, 0")
            p.lines.append("Lpi:")
            p.raw(f"buffer_load_dword {u[3]}, {u[2]}, {sDBG}, 0 offen sc1")
            p.raw("s_waitcnt vmcnt(0)")
            p.raw(f"v_readfirstlane_b32 {sT0}, {u[3]}")
            self.spin_guard("Lpix")
            p.salu("s_cmp_lt_u32", sT0, 256)
            p.raw("s_cbranch_scc1 Lpi")
            p.cond_end()
            p.lines.append("Lpix:")

        def flush(t, j):
            s.swap(t, 32, self.SQ[j], self.SQ[j + 1])
            s.valu(t, "v_add_f32", self.SQ[j], self.SQ[j], self.SQ[j + 1])
            s.ds_write(t, "ds_write_b32", self.vS, self.SQ[j], TABO + j * 128 + (3072 - 768) * (j >= 6), rd=['@ring', '@sums'])

        for blk in range(2):
            t0 = blk * (24 + L + o.get('cd', 0.7))
            s.misc(t0 - 0.5, self.conv_addr, rd=[self.vB0, '@dma'], wr=self.vB + [self.tq], cost=90)
            if blk:
                s.misc(t0 - 0.3, lambda: p.wait(vm=self.x_tok), rd=['@dma'], wr=['@rows'])
            self.conv(s, blk, t0, t0 + cl, rd=['@rows'], wr=['@cdone'])
            s.misc(t0 + cl, lambda blk=blk: self.signal(C_F + 8 * blk, True), wr=['@cdone', self.tq], cost=8)
            h = (L - cl) / 2
            self.ln(s, 2 * blk, t0 + cl + 0.02, t0 + cl + h)
            self.ln(s, 2 * blk + 1, t0 + cl + h, t0 + L)
            t0 += L
            if blk == 0:
                s.misc(t0 - 1.0, lambda: self.await_(C_W1A, 4), wr=['@w1', self.tq], cost=40)
                if o.get('stamps'):
                    s.misc(t0, lambda: self.stamp(192), wr=[V(192, 4)])
            if blk:
                Y = [Y[1], Y[2], Y[0], Y[3], Y[4]]
            idk = V((64, 216)[blk], 8)
            if self.keep if blk else self.spi:
                for m in range(8):
                    s.valu(t0, "v_cndmask_b32", idk.sub(m), 0, self.vI, sID[m])
                    s.valu(t0, "v_and_b32", idk.sub(m), 0x3C003C00, idk.sub(m))
            for j in range(12):
                t = t0 + 2 * j
                e = 24 * blk + 2 * j
                held = [(2 * blk + par, j) in self.spi or (blk and par and j in self.keep) for par in range(2)]
                if blk == 0 and j == 4:
                    s.misc(t - 1.2, lambda: self.await_(C_W1B, 4), wr=['@w1', self.tq], cost=40)
                for s6 in range(6):
                    tt = t + m0 + (m1 - m0) * s6 / 6
                    w = self.ring(self.ring1)
                    s.ds_read(tt - o.get('lead', 0.8), "ds_read_b128", w, *self.frag(j * 6 + s6), rd=['@w1'])
                    for par in range(2):
                        y = Y[(e + par + 4) % ny]
                        ab = (self.LN[2 * blk + par].sub(4 * s6, 4), w)
                        s.mfma(tt + par * (m1 - m0) / 12, y, *(ab[::-1] if held[par] else ab), y if s6 else 0)
                if blk == 1 and j == 8:
                    d0 = t0 + o.get('w0', 16.0)
                    s.misc(d0, lambda: (self.await_(C_F + 12, 4, tq=tq2), w2_addr()), rd=[self.vA[0]],
                           wr=[self.vW2, u[1], tq2, '@ring'], cost=60)
                    for k, f in enumerate((0, 1, 2, 3, 4, 6, 7)):
                        s.vmem(d0 + 0.3 + 0.5 * k, lambda f=f: self.w2_fetch(f, self.vW2), rd=[self.vW2], wr=['@w2raw'], lat=0)
                    s.misc(d0 + 4, lambda: setattr(self, 'w2_tok0', self.w2_tok), rd=['@w2raw'], wr=['@w2t0'], cost=0)
                    for k in range(0, 8, 2):
                        flush(d0, k)
                if blk == 1 and j == 11:
                    flush(t + 1, 8)
                for par in ((1, 0) if e == 46 else (0, 1)):
                    tg, y, n = t + m1 + (par ^ (e == 46)) + o.get('g0', 0.1), Y[(e + par + 4) % ny], nl[(e + par) % len(nl)]
                    if not held[par]:
                        self.gelu(s, tg, y, n, acc=self.SQ[j])
                        continue
                    bl = self.blk3[j] if blk else self.ring(tmp)
                    te = self.gelu32(s, tg, y, n, bl, self.SQ[j], idk)
                    for q in range(0 if blk else 2):
                        s.vmem(te + 0.2 + 0.4 * q, lambda q=q, bl=bl, f=self.spi[par, j]: self.ws_frag(f + q, lambda so: p.buf_store(
                            "buffer_store_dwordx4", bl.sub(4 * q, 4), self.vA[0], sWS, so, flags=o.get('ssf', ''))), rd=[bl.sub(4 * q, 4)], lat=0)
                self.sq4_flush(s, t + m1 + 2.6, self.SQ[j])
                if blk == 0 and j == 2:
                    for k in range(6):
                        s.vmem(t + 0.7 * k, lambda k=k: self.ws_frag(k, lambda so: p.buf_store(
                            "buffer_store_dwordx4", self.LN[0].sub(4 * k, 4), self.vA[0], sWS, so, flags=o.get('ssf', ''))), rd=[self.LN[0].sub(4 * k, 4)], lat=0)
                if blk == 0 and j == 6 and o.get('dbg'):
                    for k in range(6):
                        s.vmem(t + 0.7 * k, lambda k=k: self.ws_frag(6 + k, lambda so: p.buf_store(
                            "buffer_store_dwordx4", self.LN[1].sub(4 * k, 4), self.vA[0], sWS, so)), rd=[self.LN[1].sub(4 * k, 4)], lat=0)
                if blk == 0 and j == 5:
                    s.misc(t, self.init_counter, wr=[self.tq])
                    s.misc(t + 1, lambda: (self.skip_round(), self.touch_rows(self.tq.sub(0), self.tq.sub(1))), wr=[self.tq, '@dma'], cost=24)
                if blk == 0 and j == 9:
                    d0 = t0 + o.get('d0', 19.0)
                    s.misc(d0, lambda: self.await_(C_F + 4, 4, True), wr=[self.tq, '@dma'], cost=40)
                    for R in range(2, 10):
                        s.vmem(d0 + o.get('dspan', 2.5) * (R - 2) / 8, lambda R=R: self.row_dma(R), rd=self.vX, wr=['@dma'], lat=0)
                if blk == 1 and j == 5:
                    s.misc(t, init_check, wr=u[2:])
                if blk == 1 and j == 3 and o.get('nt0', 0):
                    s.misc(t, lambda: self.touch_x(u[2], u[3]), wr=u[2:], cost=24)
        end = 48 + 2 * L + m1 + o.get('cd', 0.7)
        self.setprio(s, L + o.get('la', 7), 3)
        s.misc(24 + 2 * L + o.get('cd', 0.7), lambda: self.call_if(True, ["s_setprio 2"], "Lbk"), wr=['@prio'])
        self.setprio(s, end - o.get('q0', 3.0), 1)
        self.code_pf(s, [6, 16, 26, 30, 38, 48, 56])
        self.fine(s, range(0, 60), 'p1')
        self.T1 = end - m1
        flush(end, 10)
        t = [None, V(238), V(239), V(237), V(244), V(245)]
        pv = [V(128, 8), V(136, 8), V(112, 8), V(120, 8), V(216, 8)]

        def pub_addr():
            self.lane(t[3])
            p.valu("v_min_u32", t[3], 47, t[3])
            p.valu("v_lshlrev_b32", t[4], 5, t[3])
            p.valu("v_add_u32", t[4], R2 + TABO, t[4])
            p.valu("v_add_u32", t[5], 3072 - 768, t[4])
            p.valu("v_cmp_gt_u32", "vcc", 24, t[3])
            p.valu("v_cndmask_b32", t[4], t[5], t[4], "vcc")
            p.valu("v_lshlrev_b32", t[3], 13, t[3])
            p.valu("v_add_u32", t[5], 4096, t[3])
        s.misc(end - 4, pub_addr, wr=t[3:], cost=40)

        def publish():
            p.raw("s_setprio 3")
            self.ticket(t, 0, "Lnopub", pv)

            def rd(w, d):
                for k in range(2):
                    p.ds_read("ds_read_b128", d.sub(4 * k, 4), t[4], 9216 * w + 16 * k)

            def add(d, b):
                for i in range(8):
                    p.valu("v_add_f32", d.sub(i), d.sub(i), b.sub(i))
            for w in range(5):
                rd(w, pv[w])
            for w in range(1, 4):
                add(pv[0], pv[w])
                rd(4 + w, pv[w])
            for w in (4, 1, 2, 3):
                add(pv[0], pv[w])
            for i in range(8):
                p.valu("v_min_u32", pv[4].sub(i), -2, pv[0].sub(i))
            p.salu("s_lshl_b32", sT0, S(2), 4)
            p.buf_store("buffer_store_dwordx4", pv[4].sub(0, 4), t[3], sWS, sT0, flags="sc1")
            p.buf_store("buffer_store_dwordx4", pv[4].sub(4, 4), t[5], sWS, sT0, flags="sc1")
            p.ds_write("ds_write_b32", self.vCnt, t[1], C_PUB)
            p.raw("s_waitcnt lgkmcnt(0)")
            p.nop(2)
            p.cond_end()
            p.lines.append("Lnopub:")
            self.stamp(128)
        s.misc(end, publish, wr=t[1:] + pv + ['@sums', '@prio'], cost=60)

    def ticket(self, t, cnt, label, regs):
        p = self.p
        p.valu("v_mov_b32", t[1], 1)
        p.wait_all(vm=False)
        p.raw("s_mov_b64 exec, 1")
        p.raw(f"ds_add_rtn_u32 {t[2]}, {self.vCnt}, {t[1]} offset:{cnt}")
        p.raw("s_mov_b64 exec, -1")
        for v in regs:
            p._mem_issue([], list(v.regs()))
        p.raw("s_waitcnt lgkmcnt(0)")
        p.lgkm_seq += 1
        p.lgkm_done = p.lgkm_seq
        p.valu("v_readfirstlane_b32", sT0, t[2])
        p.salu("s_cmp_lg_u32", sT0, 7)
        p.raw(f"s_cbranch_scc1 {label}")
        p.cond_begin()

    def w2_fetch(self, f, addr):
        p = self.p
        k, T = divmod(f, 3)
        p.salu("s_add_u32", "m0", sPRIV, f * 1024)
        p.salu("s_add_u32", sT0, sW2B, k * 3072 + T * 64)
        self.w2_tok = p.dma(addr, sW2, sT0)

    def touch_x(self, a, b):
        p = self.p
        self.lane(b)
        p.valu("v_and_b32", a, 15, b)
        p.valu("v_min_u32", a, 11, a)
        p.valu("v_lshlrev_b32", a, 7, a)
        p.valu("v_lshrrev_b32", b, 4, b)
        p.valu("v_mul_u32_u24", b, 2 * ROWB, b)
        p.valu("v_add_u32", a, a, b)
        p.salu("s_mov_b32", "m0", LDS_BYTES)
        p.salu("s_cmp_lt_u32", sWAVE, 4)
        p.raw("s_cbranch_scc0 Lnotouch")
        p.cond_begin()
        for ti in range(2):
            p.raw(f"buffer_load_dword {a}, {sX}, {sTILE[ti]} offen lds")
            p.vm_seq += 1
        p.cond_end()
        p.lines.append("Lnotouch:")

    def poll_regs(self):
        rv = [V(128 + 4 * i, 4) for i in range(4)]
        tv = [V(128 + i) for i in range(6)]
        gv = [V(134 + i) for i in range(6)]
        t = [V(240 + i) for i in range(6)]
        return rv, tv, gv, t

    def poll_loads(self, p, reducer):
        rv, tv, gv, t = self.poll_regs()
        if reducer:
            p.salu("s_lshl_b32", sT1, S(2), 12)
            for i in range(4):
                p.buf_load("buffer_load_dwordx4", rv[i], t[5], sWS, sT1, 1024 * i, flags="sc1")
        else:
            p.salu("s_and_b32", sT1, S(2), 7)
            p.salu("s_lshl_b32", sT1, sT1, 11)
            p.salu("s_add_u32", sT1, sT1, WS_TOT)
            for i in range(6):
                p.buf_load("buffer_load_dword", tv[i], t[0], sWS, sT1, 256 * i, flags="sc1")

    def gamma_loads(self, p):
        rv, tv, gv, t = self.poll_regs()
        p.valu("v_lshrrev_b32", t[1], 1, t[0])
        for i in range(6):
            p.buf_load("buffer_load_ushort", gv[i], t[1], sGA, 0, 128 * i)

    def poll_routine(self):
        main, self.p = self.p, Prog()
        p = self.p
        rv, tv, gv, t = self.poll_regs()
        ret = f"s_setpc_b64 {sRET}"
        p.lines.append("Lpolln:")
        p.raw(f"s_getreg_b32 {sT0}, hwreg(HW_REG_IB_STS, 0, 4)")
        p.salu("s_cmp_eq_u32", sT0, 0)
        p.raw("s_cbranch_scc1 Lpoll")
        p.raw(ret)
        p.lines.append("Lpoll:")
        p.raw("s_waitcnt vmcnt(0)")
        p.salu("s_cmp_eq_u32", sROLE, 2)
        p.raw("s_cbranch_scc1 LpollC")
        allr = [rv[i].sub(k) for i in range(4) for k in range(4)]
        p.valu("v_max_u32", t[1], allr[0], allr[1])
        for i in range(2, 16, 2):
            p.valu("v_max3_u32", t[1], t[1], allr[i], allr[i + 1])
        p.valu("v_cmp_eq_u32", "vcc", -1, t[1])
        p.nop(5)
        p.raw("s_cbranch_vccz LpollR")
        self.poll_loads(p, True)
        p.raw(ret)
        self.p = p2 = Prog()
        p2.lines.append("LpollR:")
        for k in range(4):
            p2.valu("v_add_f32", rv[0].sub(k), rv[0].sub(k), rv[1].sub(k))
            p2.valu("v_add_f32", rv[3].sub(k), rv[2].sub(k), rv[3].sub(k))
            p2.valu("v_add_f32", rv[3].sub(k), rv[0].sub(k), rv[3].sub(k))
        for k in range(4):
            self.lane_sum64(rv[3].sub(k), t[1])
            p2.valu("v_min_u32", rv[3].sub(k), -2, rv[3].sub(k))
        p2.salu("s_lshl_b32", sT1, S(2), 4)
        p2.salu("s_add_u32", sT1, sT1, WS_TOT)
        p2.valu("v_lshlrev_b32", t[1], 9, t[0])
        p2.raw("s_mov_b64 exec, 0xff")
        p2.buf_store("buffer_store_dwordx4", rv[3], t[1], sWS, sT1, flags="sc1")
        p2.raw("s_mov_b64 exec, -1")
        p2.salu("s_mov_b32", sROLE, 2)
        self.poll_loads(p2, False)
        self.gamma_loads(p2)
        p2.raw(ret)
        self.p = p3 = Prog()
        p3.lines.append("LpollC:")
        p3.valu("v_max3_u32", t[1], tv[0], tv[1], tv[2])
        p3.valu("v_max3_u32", t[1], t[1], tv[3], tv[4])
        p3.valu("v_max_u32", t[1], t[1], tv[5])
        p3.valu("v_cmp_eq_u32", "vcc", -1, t[1])
        p3.nop(5)
        p3.raw("s_cbranch_vccz LpollS")
        self.poll_loads(p3, False)
        p3.raw(ret)
        self.p = p4 = Prog()
        p4.lines.append("LpollS:")
        p4.salu("s_mov_b32", sT0, f2u(1.0 / (GA * GA)))
        p4.valu("v_mov_b32", t[2], f2u(1e-6))
        for i in range(6):
            p4.valu("v_fma_f32", tv[i], tv[i], sT0, t[2])
            p4.valu("v_sqrt_f32", tv[i], tv[i])
            p4.valu("v_lshlrev_b32", gv[i], 16, gv[i])
        p4.valu("v_add_f32", t[3], tv[0], tv[1])
        for i in range(2, 6):
            p4.valu("v_add_f32", t[3], t[3], tv[i])
        self.lane_sum64(t[3], t[1])
        p4.salu("s_mov_b32", sT0, f2u(1.0 / 384))
        p4.valu("v_fma_f32", t[3], t[3], sT0, t[2])
        p4.valu("v_rcp_f32", t[3], t[3])
        for i in range(6):
            p4.valu("v_mul_f32", tv[i], tv[i], t[3])
            p4.valu("v_fma_f32", tv[i], tv[i], gv[i], "1.0")
            p4.valu("v_mul_f32", tv[i], f2u(1.0 / GA), tv[i])
        p4.salu("s_mov_b32", sROLE, 0)
        p4.nop(2)
        p4.raw(ret)
        self.p = main
        for q in (p, p2, p3, p4):
            main.lines += q.lines

    def poll_point(self, k):
        p = self.p
        p.salu("s_cmp_eq_u32", sROLE, 0)
        p.raw(f"s_cbranch_scc1 Lpp{k}")
        p.cond_begin()
        p.raw(f"s_call_b64 {sRET}, {'Lpolln' if self.o.get('nb', 1) else 'Lpoll'}")
        p.cond_end()
        p.lines.append(f"Lpp{k}:")

    def spin_guard(self, exit_label):
        p = self.p
        p.salu("s_cmp_eq_u32", sCNT, 0)
        p.salu("s_cbranch_scc1", exit_label)
        p.salu("s_sub_u32", sCNT, sCNT, 1)

    def gap(self):
        p, o, s = self.p, self.o, self.s
        rv, tv, gv, t = self.poll_regs()
        self.pollr = pollr = [V(128, 16), t[0], t[1], t[2], t[3], t[5], '@poll']
        T1 = self.T1
        g8 = t[4]

        def role():
            p.salu("s_mov_b32", sROLE, 0)
            p.valu("v_bfe_u32", g8, self.vA[0], 8, 2)
            p.valu("v_lshlrev_b32", g8, 3, g8)
            p.salu("s_cmp_lg_u32", sWAVE, 0)
            p.raw("s_cbranch_scc1 Lnorole")
            p.cond_begin()
            p.valu("v_subrev_u32", t[5], W1F, self.vA[0])
            p.valu("v_lshrrev_b32", t[0], 2, t[5])
            p.salu("s_cmp_lt_u32", S(2), 96)
            p.salu("s_cselect_b32", sROLE, 1, 2)
            p.raw("s_cbranch_scc1 Lred")
            self.poll_loads(p, False)
            self.gamma_loads(p)
            p.raw("s_branch Lnorole")
            p.lines.append("Lred:")
            self.poll_loads(p, True)
            p.cond_end()
            p.lines.append("Lnorole:")
            for r in range(128, 144):
                p.p_vm[r] = None
            p.raw("s_setprio 0")
        tp = s.misc(T1, role, wr=pollr + [g8, '@prio'], cost=10).t
        nl = self.pattern('nlg', '5')
        Y = self.Y1[3:]
        NG = len(self.todo)
        self.npoll = 0
        for n, j in enumerate(self.todo):
            tg = T1 + 2.1 + n
            self.gemm1(s, tg - (0.6 if n > 1 else 1.1), j, self.LN[3], Y[n % 2], True, self.ring1, span=0.5 if n > 1 else 1.0)
            self.gelu32(s, tg, Y[n % 2], nl[n % len(nl)], self.blk3[j])
        tw = tp + o.get('gb', 1.5)
        tq = V(248, 2) if not o.get('fine') else V(238, 2)
        s.misc(tw, lambda: self.await_(C_PUB, 1, tq=tq), rd=['@sums'], wr=['@tab', tq], cost=40)
        for k in (5, 8):
            s.vmem(tw, lambda k=k: self.w2_fetch(k, self.vW2), rd=['@tab', self.vW2], wr=['@w2raw'], lat=1200)
        if o.get('g1s', 1):
            for ti in (2, 1):
                self.ln16(s, T1 + 2, self.LN[ti])
        ta = T1 + 1.6 + NG
        tb = self.TB = ta + o.get('tb', 2.0)
        Yf = Y[NG % 2]
        self.Yr = Y[(NG + 1) % 2]
        fr = self.fr = [V(72 + 4 * k, 4) for k in range(6)] + [Yf.sub(4 * k, 4) for k in range(3)]
        bf = [V(176 + 2 * k, 2) for k in range(3)]
        u = self.u = [V(186 + i) for i in range(6)] + [Yf.sub(12 + i) for i in range(4)]
        lane, vWR = u[4], u[7:10]
        self.vH = [V(248), V(249) if not o.get('fine') else V(248)]

        def beta_loads():
            p.salu("s_mul_i32", sT0, sWAVE, 96)
            for k in range(3):
                p.buf_load("buffer_load_dwordx2", bf[k], g8, sBE, sT0, k * 32)
        s.vmem(ta, beta_loads, rd=[g8], wr=bf, lat=800)

        def addr():
            self.lane(lane)
            p.valu("v_lshl_add_u32", u[0], lane, 4, sPRIV)
            for k in range(3):
                p.salu("s_mul_i32", sT0, sWAVE, 3)
                p.salu("s_add_u32", sT0, sT0, k)
                p.salu("s_and_b32", sT1, sT0, 1)
                p.salu("s_mul_i32", sT1, sT1, 3072 - 8)
                p.salu("s_mul_i32", sT0, sT0, 3072)
                p.salu("s_sub_u32", sT0, sT0, sT1)
                p.salu("s_add_u32", sT0, sT0, R2)
                p.valu("v_lshl_add_u32", vWR[k], lane, 4, sT0)
            p.valu("v_lshl_add_u32", u[1], g8, 2, sPRIV)
            p.valu("v_and_b32", u[3], 3, lane)
            for bit, sh in ((2, 3), (3, 2), (4, 6), (5, 5)):
                p.valu("v_bfe_u32", u[5], lane, bit, 1)
                p.valu("v_lshl_add_u32", u[3], u[5], sh, u[3])
            p.valu("v_lshlrev_b32", u[3], 4, u[3])
            for i in range(2):
                p.valu("v_add_u32", self.vH[i], W1F + 36 * 1024 * i, u[3])
            p.valu("v_min_u32", u[3], 11, lane)
            p.salu("s_mul_i32", sT0, sWAVE, 12)
            p.valu("v_add_u32", u[3], sT0, u[3])
            p.valu("v_cmp_gt_u32", "vcc", 64, u[3])
            p.valu("v_lshlrev_b32", u[3], 2, u[3])
            p.valu("v_add_u32", u[6], R2 + SCO + 128, u[3])
            p.valu("v_add_u32", u[5], HOLE[1], u[3])
            p.valu("v_add_u32", u[3], HOLE[0] - 256, u[3])
            p.valu("v_cndmask_b32", u[3], u[3], u[5], "vcc")
            p.valu("v_add_u32", u[2], sPRIV, g8)
        s.misc(ta, addr, rd=[g8], wr=u + self.vH, cost=130)
        s.misc(T1 + 1.5, lambda: p.wait(vm=self.w2_tok0), rd=['@w2t0'], wr=['@w2ok0'])
        s.misc(ta + 1.1, lambda: p.wait(vm=self.w2_tok), rd=['@w2raw'], wr=['@w2ok1'])
        for k in (0, 3, 6, 1, 4, 7, 2, 5, 8):
            for y in range(2):
                s.ds_read(ta + 0.3 * (k % 3), "ds_read_b64_tr_b16", fr[k].sub(2 * y, 2), u[0], k * 1024 + y * 8, rd=['@w2ok%d' % (k in (5, 8))])
        bacc = V(120, 8)

        def partial(T):
            p._mem_issue(list(bacc.regs()) + list(fr[3].regs()), [])
            p.salu("s_mov_b32", "exec_lo", 0x00010001)
            p.salu("s_mov_b32", "exec_hi", 0x00010001)
            for y in range(2):
                p.ds_write("ds_write_b128", u[1], bacc.sub(4 * y, 4), SCO + 128 + T * 128 + y * 16)
            p.raw("s_mov_b64 exec, -1")
        for T in range(3):
            tt = ta + 0.3 + 0.5 * T
            for k in range(3):
                for y in range(2):
                    d = bacc.sub(4 * y, 4)
                    s.mfma(tt, d, fr[k * 3 + T].sub(2 * y, 2), bf[k], d if k else 0)
            s.misc(tt + 0.25, lambda T=T: partial(T), rd=[bacc, u[1], fr[3], '@ba'], cost=10)
            for k in range(3):
                f = fr[k * 3 + T]
                for i in range(4):
                    w = V(182 + 2 * (i % 2), 2)
                    tc = tt + 0.05 + 0.04 * (4 * k + i)
                    s.valu(tc, "v_lshlrev_b32", w.sub(0), 16, f.sub(i))
                    s.valu(tc, "v_and_b32", w.sub(1), 0xFFFF0000, f.sub(i))
                    s.valu(tc, "v_cvt_pk_f16_f32", f.sub(i), w.sub(0), w.sub(1), rd=['@ba'])
        k = tp + 0.8
        while k < tb:
            self.poll_op(k)
            k += o.get('pi', 0.3)
        self.prio_steps(s, tp + o.get('gp', 2.0), tb)
        self.code_pf(s, [T1 + 2, tb - 1])
        self.fine(s, [T1 - 2 + 0.5 * k for k in range(40)], 'mid')

        def ba():
            self.stamp(120)
            p.wait_all(vm=False)
            p.barrier()
            p.raw("s_setprio 2")
        s.misc(tb, ba, wr=['@ba', '@prio', '@bar'] + ([bacc] if o.get('stamps') else []))
        bs = [V(176 + i) for i in range(8)]
        for k in range(8):
            s.ds_read(tb, "ds_read_b32", bs[k], u[6], 9216 * k, rd=['@ba'])
        for k in range(1, 8):
            s.valu(tb, "v_add_f32", bs[0], bs[0], bs[k])
        s.ds_write(tb, "ds_write_b32", u[3], bs[0], rd=['@b4'])

    def poll_op(self, t):
        self.npoll += 1
        self.s.misc(t, lambda k=self.npoll: self.poll_point(k), wr=self.pollr)

    def fold(self, t):
        p, o, s, u, fr = self.p, self.o, self.s, self.u, self.fr
        rv, tv, gv, _ = self.poll_regs()
        lane, vWR = u[4], u[7:10]
        ad = [V(176 + i) for i in range(6)]

        def b4():
            p._mem_issue([], [r.b for r in ad])
            p.salu("s_cmp_lg_u32", sWAVE, 0)
            p.raw("s_cbranch_scc1 Lspinx")
            p.cond_begin()
            p.raw("s_setprio 3")
            for i, a in enumerate(ad):
                p.valu("v_add_u32", a, 64 * i, lane)
                p.valu("v_mul_u32_u24", u[5], 1366, a)
                p.valu("v_lshrrev_b32", u[5], 16, u[5])
                p.valu("v_mul_u32_u24", u[5], 9216 - 96, u[5])
                p.valu("v_lshl_add_u32", a, a, 1, u[5])
                p.valu("v_add_u32", a, R2 + SCO, a)
            p.lines.append("Lspin:")
            p.salu("s_cmp_eq_u32", sROLE, 0)
            p.raw("s_cbranch_scc1 Lspiny")
            self.spin_guard("Lspiny")
            p.raw(f"s_call_b64 {sRET}, Lpoll")
            p.raw("s_branch Lspin")
            p.lines.append("Lspiny:")
            for i in range(6):
                p.valu("v_cvt_f16_f32", tv[i], tv[i])
                p.ds_write("ds_write_b16", ad[i], tv[i])
            p.raw("s_waitcnt lgkmcnt(0)")
            p.cond_end()
            p.lines.append("Lspinx:")
            p.wait_all(vm=False)
            self.stamp(176)
            p.barrier()
            self.stamp(176)
        s.misc(t, b4, rd=[lane, '@ba'], wr=self.pollr + ad + [u[5], '@b4', '@bar', '@prio'], cost=20)
        sc = [V(176 + 2 * k, 2) for k in range(3)]
        for k in range(3):
            s.ds_read(t, "ds_read_b64", sc[k], u[2], SCO + 32 * k, rd=['@b4'])
        s.misc(t, lambda: p._mem_deps([r for v in sc for r in v.regs()]), rd=sc, wr=['@sc'])
        for k in range(3):
            for T in range(3):
                f = fr[k * 3 + T]
                for i in range(4):
                    s.valu(t, "v_pk_mul_f16", f.sub(i), f.sub(i), sc[k].sub(i & 1))
                    if o.get('tw', 1):
                        s.valu(t, "v_add_u32", f.sub(i), 0x00040004, f.sub(i))
                        s.valu(t, "v_and_b32", f.sub(i), sM, f.sub(i))
                for y in range(2):
                    s.ds_write(t, "ds_write_b64", vWR[k], f.sub(2 * y, 2), (3 * y + T) * 1024, rd=['@sc', '@w2'])

        def b5():
            p.wait_all(vm=False)
            p.barrier()
            self.stamp(176)
        s.misc(t + o.get('tf', 0.5), b5, wr=['@w2', '@bar'] + (sc if o.get('stamps') else []))

    def ln16(self, s, t, ln):
        for u in range(3):
            for i in range(4):
                s.swap(t, 16, ln.sub(8 * u + i), ln.sub(8 * u + 4 + i))

    def piece(self, k):
        return divmod(k, 3) if self.o.get('lo', 1) else (k % 2, k // 2)

    def load_x1(self, dst, ti, k):
        r, T = self.piece(k)
        if 'x' in self.o.get('x_no', ''):
            return
        self.p.buf_load("buffer_load_dwordx4", dst, self.vG, sX, sTILE[ti], 64 * T + 192 * r, flags=self.o.get('xlf', ''))

    def store1(self, src, ti, k):
        r, T = self.piece(k)
        if 'o' in self.o.get('x_no', '') and ti:
            return
        self.p.buf_store("buffer_store_dwordx4", src, self.vG, sOUT, sTILE[ti], 64 * T + 192 * r, flags=self.o.get('osf', 'sc1'))

    def phase2(self):
        p, o, s = self.p, self.o, self.s
        aq = [V(b, 4) for b in (72, 76, 80, 84, 88, 92, 128, 132, 136, 140, 240, 244)]
        ACC = {(T, v, y): aq[6 * (1 - v) + 2 * T + y] for T in range(3) for v in range(2) for y in range(2)}
        ring = self.ring1 + [V(120, 4), V(124, 4)]
        ra = o.get('ra', 1)
        P0 = self.TB + 0.1
        F0 = (o.get('rt', 2.2) if ra else 0.0)
        G0 = F0 + o.get('tf', 0.5) + 0.05
        E0 = G0 - ra
        nl = self.pattern('nl2', '6')
        g1s = o.get('g1s', 1)
        ents = [(3, j, None) for j, _ in self.fifo]
        seq = []
        for ti in (2, 1, 0):
            rec = [j for j in range(12) if j not in self.sp[ti]]
            pos = {int((n + 0.5) * 11 / len(self.sp[ti])): j for n, j in enumerate(self.sp[ti])}
            for n in range(12):
                if n in pos:
                    ents.append((ti, pos[n], None))
                else:
                    ents.append((ti, rec[0], len(seq)))
                    seq.append((ti, rec.pop(0), len(ents) - 1))
        NE = len(seq)
        entry = {q: b for q, (_, b) in enumerate(self.fifo)}
        b0 = o.get('b0', 7)
        bt = o.get('bt', 2.4)
        tend = NE + o.get('lag', 1.6)
        g2 = o.get('g2', 1.15)

        te = lambda e: P0 + (E0 + e if e >= ra else e)
        lb = {q: te(e) + tend - (NE - 1) for q, (_, _, e) in enumerate(ents) if e is not None}
        tt = [P0 + G0 + bt * q / b0 for q in range(b0 + 1)]
        while len(tt) < 48:
            q0 = len(tt) - 1
            sl, q1 = max(((lb[q] - tt[q0]) / (q - q0), q) for q in lb if q > q0)
            tt += [tt[q0] + sl * (q - q0) for q in range(q0 + 1, q1 + 1)]
        tt.append(tt[-1] + 0.6)
        tq = tt.__getitem__
        Ys = [self.Yr, V(304 - self.Yr.b, 16), V(0, 16)]
        pool = []
        idf = V(16, 8)
        events = [(P0 + F0, 3, 0, 0)]
        for q in range(48):
            for k in range(7):
                events.append((tq(q) + (tq(q + 1) - tq(q)) * min(k, 5.9) / 6, 2, q, k))
        for e in range(NE):
            for k in range(6):
                events.append((te(e) + k / 6, 0, e, k))
            events.append((max(te(e) + g2 + 0.9, tq(4 + min(e, 40)) if e < 3 else 0), 1, e, 0))
        xq = [int(c, 16) for c in str(o.get('xq', '9ab'))]
        want = [(tq(12 * n + j) - o.get('xlead', 5.0), 'x', 12 * n + j) for n in range(4) for j in xq]
        want += [(tq(q) - o.get('slead', 4.0), 's', q) for q in range(12, 48) if ents[q][2] is None]
        want.sort()
        xbuf = {}
        events.sort()
        lns = {2: self.LN[2], 1: self.LN[1], 0: self.LN[2]}
        first = {ti: min(e for e, x in enumerate(seq) if x[0] == ti) for ti in (2, 1, 0)}
        busy = set(r for _, v in self.fifo for r in v.regs())

        def bias(T, t):
            for v in range(1):
                for y in range(2):
                    s.ds_read(t, "ds_read_b128", ACC[T, v, y], self.vBias, (0x2000 + 128 * T if T < 2 else 0) + y * 16, rd=['@b4'])

        def wread(t, addr, off, rg=ring, rd=()):
            w = self.ring(rg)
            s.ds_read(t - o.get('lead', 0.8), "ds_read_b128", w, addr, off, rd=rd)
            return w

        def reload(f, dst):
            if 'l' in o.get('x_no', ''):
                return lambda: None
            return lambda: self.ws_frag(f, lambda so: p.buf_load("buffer_load_dwordx4", dst, self.vA[0], sWS, so, flags=o.get('rlf', '')))

        small = ring[4:]
        back = []
        for t, kind, i, k in events:
            while back and back[0][0] <= t:
                pool.append(back.pop(0)[1])
            while want and want[0][0] <= t and len(pool) > o.get('xres', 1):
                _, what, q = want.pop(0)
                x = pool.pop(0)
                (xbuf if what == 'x' else entry)[q] = x
                if o.get('show'):
                    print(f'{what} load for {q} at {t - P0:.1f}, use at {tq(q + (what == "x")) - P0:.1f}', end='; ')
                for r in range(2):
                    d = x.sub(4 * r, 4)
                    fn = (lambda d=d, r=r, q=q: self.load_x1(d, ents[q][0], 2 * xq.index(q % 12) + r)) if what == 'x' else \
                        reload(self.spi[ents[q][:2]] + r, d)
                    s.vmem(t + o.get('xg', 0.0) * r, fn, wr=[d], lat=o.get('xlat', 2000))
            if kind == 3:
                for k in range(int(F0 / o.get('pi', 0.3))):
                    self.poll_op(P0 + o.get('pi', 0.3) * k)
                self.fold(t)
                for T in range(3):
                    bias(T, t + 0.3)
                continue
            if kind == 0:
                e = i
                ti, j, _ = seq[e]
                y = Ys[e % 3]
                if k == 0:
                    assert not busy & set(y.regs()), e
                    busy |= set(y.regs())
                if e == first[0] and k == 0:
                    pool += [self.LN[1].sub(8 * f, 8) for f in range(3)]
                    for f in range(6):
                        d = self.LN[2].sub(4 * f, 4)
                        s.vmem(te(first[1]) + o.get('rl0', 0.5) + o.get('rl', 0.7) * f, reload(f, d), wr=[d])
                    if g1s:
                        self.ln16(s, t - 1.0, self.LN[2])
                if g1s:
                    z, u = divmod(k, 3)
                    w = wread(t, self.vH[j // 6], ((j % 6) * 6 + 2 * u) * 1024 + 256 * z, small if e < ra else ring)
                    for v in range(2):
                        d = y.sub(8 * v + 4 * z, 4)
                        s.mfma(t + v / 12, d, w, lns[ti].sub(8 * u + 4 * v, 4), d if u else 0)
                else:
                    s.mfma(t, y, wread(t, *self.frag(j * 6 + k), small if e < ra else ring), lns[ti].sub(4 * k, 4), y if k else 0)
                continue
            if kind == 1:
                e = i
                bl = entry[seq[e][2]] = pool.pop(0)
                if g1s:
                    self.gelu(s, te(e) + g2, Ys[e % 3], int(o.get('nlr', 5)) if e < ra else nl[e % len(nl)], dst=[bl.sub(m) for m in range(8)])
                else:
                    self.gelu32(s, te(e) + g2, Ys[e % 3], nl[e % len(nl)], bl)
                busy -= set(Ys[e % 3].regs())
                continue
            q = i
            ti, j, _ = ents[q]
            n = q % 12
            if k < 6:
                T, y = divmod(k, 2)
                w = wread(t, *self.frag(72 + (2 * j + y) * 3 + T), rd=['@w2'])
                for v in (1, 0):
                    d = ACC[T, v, y]
                    s.mfma(t + (1 - v) * (tq(q + 1) - tq(q)) / 12, d, w, entry[q].sub(4 * v, 4), d if n else ACC[T, 0, y], 'f16')
                continue
            busy -= set(entry[q].regs())
            if q > 2:
                pool.append(entry[q])
            if n in xq:
                T = xq.index(n)
                x = xbuf[q]
                pool.append(x)
                if T == 0:
                    for m in range(6):
                        if m in (2, 3):
                            s.valu(t - 0.5, "v_cndmask_b32", idf.sub(m), 0, self.vI, sIX[m - 2])
                        else:
                            s.valu(t - 0.5, "v_mov_b32", idf.sub(m), 0)
                for m in range(2):
                    v, T1 = self.piece(2 * T + m)
                    for y in range(2):
                        d = ACC[T1, v, y]
                        s.mfma(t, d, idf.sub(2 - 2 * y, 4), x.sub(4 * m, 4), d)
            if n == 11:
                sg, sp = (o.get('sg', 1.6), o.get('sp', 0.0)) if ti else (0.0, 0.0)
                st = [pool.pop(0), pool.pop(0), idf]
                for T in range(3):
                    tt = t + 0.05 * T - 0.3
                    for m in range(6):
                        v, T1 = self.piece(m)
                        if T1 == T:
                            for i in range(4):
                                s.valu(tt, "v_cvt_pk_bf16_f32", st[m // 2].sub(4 * (m % 2) + i), ACC[T, v, i >> 1].sub(2 * (i & 1)), ACC[T, v, i >> 1].sub(2 * (i & 1) + 1))
                    if ti:
                        bias(T, tt)
                for m in range(6):
                    d = st[m // 2].sub(4 * (m % 2), 4)
                    s.vmem(t + 0.1 + sg * (m // 2) + sp * (m % 2), lambda d=d, m=m, ti=ti: self.store1(d, ti, m), rd=[d], lat=0)
                back += [(t + 0.1 + sg * m + sp, st[m]) for m in range(2)]
        pe = o.get('pe', 0)
        self.prio_steps(s, P0 + G0, tq(48) + 0.4 - pe, 'pp2')
        for k, f in enumerate((1.0, 0.55, 0.25, 0.1) if pe else ()):
            self.setprio(s, tq(48) + 0.4 - pe * f, 3 - k)
        self.code_pf(s, [te(e) for e in range(1, NE - 10, 7)])
        self.fine(s, [te(e) for e in range(1, NE + 2)], 'p2')
        s.run(tag='all')
        for tag in ('p1', 'mid', 'p2'):
            self.fine_flush(tag)
        if o.get('fine') == 'su':
            self.nfine += 2
            self.fine_flush('su')
        self.stamp(168)

    def build(self):
        self.alloc()
        self.vW1g, self.vW1r, self.vW1w = V(115), V(116), V(117)
        self.prologue()
        self.phase1()
        self.gap()
        self.phase2()
        self.p.raw("s_endpgm")
        self.poll_routine()
        self.p.lines.append("Lend:")
        self.p.raw("s_endpgm")
        return self.p


HEADER = open('standalone__modern_conv_block_convnext_v2__vision.s.ref').read().split('; Override launch')[0]


def wrap(p):
    return f"""{HEADER}; Generated by gen/gen5.py (hand-written generator; see gen/asmgen.py, gen/sched.py)
; @launch grid=(256,1,1) block=(512,1,1) lds={LDS_BYTES}
.amdgcn_target "amdgcn-amd-amdhsa--gfx950"
.text
.globl {NAME}
.p2align 8
.type {NAME},@function
{NAME}:
{p.text()}
.section .rodata,"a"
.p2align 6
.amdhsa_kernel {NAME}
  .amdhsa_next_free_vgpr 256
  .amdhsa_next_free_sgpr 102
  .amdhsa_accum_offset 256
  .amdhsa_group_segment_fixed_size 0
  .amdhsa_kernarg_size 72
  .amdhsa_user_sgpr_count 2
  .amdhsa_user_sgpr_kernarg_segment_ptr 1
  .amdhsa_system_sgpr_workgroup_id_x 1
.end_amdhsa_kernel
"""


def parse(args):
    opt = {}
    for a in args:
        k, v = a.split('=')
        if k.startswith(('nl', 'keep', 'sp0', 'sp1', 'xq')):
            opt[k] = v
            continue
        try:
            opt[k] = int(v)
        except ValueError:
            try:
                opt[k] = float(v)
            except ValueError:
                opt[k] = v
    return opt


if __name__ == '__main__':
    out = sys.argv[1]
    opt = parse(sys.argv[2:])
    g = Gen(opt)
    p = g.build()
    from align import align_dp
    al = align_dp(p.lines)
    open(out, 'w').write(wrap(p))
    print(out, 'align', al, 'instructions', sum(p.stats.values()), 'stamps', g.nstamp,
          {k: v for k, v in p.stats.items() if k in ('s_nop', 's_waitcnt', 'ds_read_b128', 'ds_read_u16')})
```

```python
import math
import struct
import sys

from asmgen import *
from sched import Sched

NAME = 'standalone__modern_conv_block_convnext_v2__vision_kernel'


def f2u(x):
    return struct.unpack('<I', struct.pack('<f', x))[0]


def h2u(x):
    return struct.unpack('<H', struct.pack('<e', x))[0]


C2 = -2 * math.sqrt(2 / math.pi) * math.log2(math.e)
C1 = C2 * 0.044715
GA = -(abs(C1) ** (1.0 / 3.0))
GK = C2 / GA

HOLE = (0x1F00, 0x3F00)
W1F = 16384
R2 = W1F + 73728
RS = 6592
DIAG = R2 + 10 * RS
CNT = HOLE[0] + 192
C_PUB, C_W1A, C_W1B, C_F, C_T2 = 4, 8, 12, 16, 32
SCO = 3072
TABO = 5120
LDS_BYTES = 163840
WS_P = 0
WS_TOT = 96 * 256 * 16
WS_STAMP = 1 << 20
WS_LN = 4 << 20
WS_BYTES = 80 << 20
OOB_V = 0x80000000
OOB_S = 0x40000000
X_BYTES = 512 * 512 * 96 * 2
ROWB = 512 * 192
LO = "dst_sel:WORD_0 dst_unused:UNUSED_PRESERVE src0_sel:WORD_0"
HI = "dst_sel:WORD_1 dst_unused:UNUSED_PRESERVE src0_sel:WORD_1"

sX, sOUT, sW1, sW2, sDW, sGA, sBE, sWS, sDBG = [S(4 + 4 * i, 4) for i in range(9)]
sWAVE, sX0, sY0, sT0, sT1, sT2, sT3 = [S(40 + i) for i in range(7)]
sK, sM = S(48), S(49)
sID = [S(50 + 2 * i, 2) for i in range(8)]
sIX = [S(88, 2), S(90, 2)]
sD4 = [S(92, 2), S(94, 2)]
sYB, sXM = S(66), S(67)
sTILE = [S(68 + i) for i in range(4)]
sPRIV = S(72)
sSTAMP = S(73)
sEX = S(74, 2)
sCNT = S(76)
sROLE = S(77)
sRET = S(78, 2)
sLNB, sSL, sW2B, sFC = S(80), S(81), S(82), S(83)
sLD = S(80, 16)
sTM = S(96, 2)
sRT = S(98, 2)


class Gen:
    def __init__(self, opt):
        self.o = opt
        self.p = Prog()
        self.p.rawpad, self.p.warpad = opt.get('rawpad', 0), opt.get('warpad', 0)
        self.nstamp = 0
        self.rc = {}

    def stamp(self, tb):
        p = self.p
        if self.o.get('dbgs'):
            self.nstamp += 1
            reg = {3: 84, 4: 85, 8: 86, 9: 87}.get(self.nstamp)
            if reg:
                p.raw(f"s_memrealtime {sRT}")
                p.raw("s_waitcnt lgkmcnt(0)")
                p.lgkm_done = p.lgkm_seq
                p.salu("s_mov_b32", S(reg), sRT.sub(0))
            if self.nstamp == 9:
                p.salu("s_cmp_lg_u32", sWAVE, 7)
                p.raw("s_cbranch_scc1 Ldbgx")
                p.salu("s_mul_i32", sT0, S(2), 1285)
                p.salu("s_add_u32", sT0, sT0, 1284)
                p.salu("s_lshr_b32", sT0, sT0, 16)
                p.salu("s_mul_i32", sT1, sT0, 51)
                p.salu("s_cmp_lg_u32", sT1, S(2))
                p.raw("s_cbranch_scc1 Ldbgx")
                p.salu("s_mul_i32", sT0, sT0, 12)
                p.valu("v_mov_b32", V(0), 4)
                for i in range(3):
                    p.salu("s_sub_u32", sT1, S(85 + i), S(100))
                    p.valu("v_mov_b32", V(2 + i), sT1)
                p.raw("s_mov_b64 exec, 1")
                p.raw(f"buffer_store_dwordx3 v[2:4], v0, {sDBG}, {sT0} offen")
                p.lines.append("Ldbgx:")
            return
        if not self.o.get('stamps'):
            return
        t = V(tb, 4)
        p.raw(f"s_memtime {sTM}")
        p.raw(f"s_memrealtime {sRT}")
        p.raw("s_waitcnt lgkmcnt(0)")
        p.lgkm_done = p.lgkm_seq
        for i in range(4):
            p.valu("v_mov_b32", t.sub(i), S(sTM.b + i))
        p.salu("s_sub_u32", sT0, sSTAMP, W1F)
        if self.o.get('dbgt'):
            p.valu("v_mov_b32", t.sub(0), 0)
        p.raw("s_mov_b64 exec, 1")
        if self.o.get('dbgt'):
            p.buf_store("buffer_atomic_umax", t.sub(2), t.sub(0), sDBG, 0, 8 + 4 * self.nstamp)
        else:
            p.buf_store("buffer_store_dwordx4", t, self.vA[0], sWS, sT0, 16 * self.nstamp)
        p.raw("s_mov_b64 exec, -1")
        p.nop(2)
        self.nstamp += 1

    def fine(self, s, times, tag):
        if self.o.get('fine') != tag:
            return
        p = self.p

        def one(k):
            if k:
                p.raw(f"v_writelane_b32 v249, s{84 + 2 * ((k - 1) % 2)}, {k - 1}")
            p.raw(f"s_memtime s[{84 + 2 * (k % 2)}:{85 + 2 * (k % 2)}]")
        for k, t in enumerate(times):
            s.misc(t, lambda k=k: one(k), wr=['@fine'])
        self.nfine = len(times)

    def mark(self):
        if self.o.get('fine') != 'su':
            return
        k = self.nfine = getattr(self, 'nfine', -1) + 1
        self.p.raw("s_memtime s[100:101]")
        self.p.raw("s_waitcnt lgkmcnt(0)")
        self.p.raw(f"v_writelane_b32 v249, s100, {k}")

    def fine_flush(self, tag):
        if self.o.get('fine') != tag:
            return
        p, k = self.p, self.nfine
        p.raw(f"s_memtime s[{84 + 2 * (k % 2)}:{85 + 2 * (k % 2)}]")
        p.raw("s_waitcnt lgkmcnt(0)")
        for i in (k - 1, k):
            p.raw(f"v_writelane_b32 v249, s{84 + 2 * (i % 2)}, {i}")
        p.salu("s_lshl_b32", sT0, S(2), 3)
        p.salu("s_add_u32", sT0, sT0, sWAVE)
        p.salu("s_lshl_b32", sT0, sT0, 10)
        p.salu("s_add_u32", sT0, sT0, (2 << 20) - W1F)
        p.buf_store("buffer_store_dword", V(249), self.vA[0], sWS, sT0)

    def frag(self, idx):
        return self.vA[idx >> 6], (idx & 63) * 1024

    def ring(self, rg):
        k = self.rc.get(id(rg), 0)
        self.rc[id(rg)] = k + 1
        return rg[k % len(rg)]

    def srd(self, d, ptr, nbytes):
        p = self.p
        p.salu("s_mov_b32", d.sub(0), ptr.sub(0))
        p.salu("s_and_b32", d.sub(1), ptr.sub(1), 0xFFFF)
        p.salu("s_mov_b32", d.sub(2), nbytes)
        p.salu("s_mov_b32", d.sub(3), 0x20000)

    def lane_sum64(self, v, t):
        p = self.p
        for r in (8, 4, 2, 1):
            p.valu("v_add_f32_dpp", v, v, v, mods=f"row_ror:{r} row_mask:0xf bank_mask:0xf")
        p.valu("v_mov_b32", t, v)
        p.swap16(v, t)
        p.valu("v_add_f32", v, v, t)
        p.valu("v_mov_b32", t, v)
        p.swap32(v, t)
        p.valu("v_add_f32", v, v, t)

    def lane(self, dst):
        self.p.valu("v_bfe_u32", dst, self.vA[0], 4, 6)

    def call_if(self, older, names, tag):
        p = self.p
        p.salu("s_cmp_lt_u32" if older else "s_cmp_ge_u32", sWAVE, 4)
        p.raw(f"s_cbranch_scc0 {tag}")
        p.cond_begin()
        for n in names:
            p.raw(n if n.startswith("s_") else f"s_call_b64 {sRET}, {n}")
        p.cond_end()
        p.lines.append(f"{tag}:")

    def alloc(self):
        self.LN = [V(24 * t, 24) for t in range(4)]
        self.CA = [V(0, 48), V(48, 48), V(48, 48), V(96, 48)]
        self.Y1 = [V(96 + 16 * i, 16) for i in range(self.o.get('ny', 5))]
        self.ring1 = [V(176 + 4 * i, 4) for i in range(4)]
        self.ringA = [V(192 + 4 * i, 4) for i in range(5)]
        self.ringB = [V(144 + 4 * i, 4) for i in range(8)]
        self.vB = [V(212 + i) for i in range(4)]
        self.ls = [[V(240, 2), V(242, 2), V(244, 2)], [V(216, 2), V(218, 2), V(220, 2)]]
        self.tq = V(222, 2)
        self.SQ = [V(224 + i) for i in range(12)]
        self.vX, self.vC = [V(236), V(237)], [V(238), V(239)]
        self.vB0, self.vCnt, self.vS = V(246), V(247), V(248)
        self.vA = [V(250), V(251), V(252)]
        self.vG, self.vBias, self.vI = V(253), V(254), V(255)
        hexs = lambda k, d: [int(c, 16) for c in str(self.o.get(k, d)) if c != 'n']
        self.keep = hexs('keep', '2345678ab')
        self.sp = {0: hexs('sp0', 'n'), 1: hexs('sp1', 'n'), 2: [], 3: []}
        self.spi = {(ti, j): 6 + 2 * n for n, (ti, j) in enumerate((ti, j) for ti in (0, 1) for j in self.sp[ti])}
        fifo = [0, 8, 16, 96, 104, 192, 200, 208, 224, 112, 216, 232]
        late = {j: b for j, b in ((10, 96), (11, 104)) if j in self.keep}
        rest = [j for j in self.keep if j not in late]
        assert len(rest) <= 6 or (len(rest) == 7 and rest[6] >= 8)
        late.update(zip(rest, [0, 8, 16, 192, 200, 208, 224]))
        self.todo = [j for j in range(12) if j not in self.keep]
        col = {b: j for j, b in late.items()}
        col.update(zip([b for b in fifo if b not in col], self.todo))
        self.fifo = [(col[b], V(b, 8)) for b in fifo]
        self.blk3 = {j: b for j, b in self.fifo}
        self.vW2 = V(246)

    def signal(self, off, dyn=False):
        p = self.p
        a, b = self.tq.sub(0), self.tq.sub(1)
        p.valu("v_mov_b32", b, 1)
        if dyn:
            p.valu("v_add_u32", a, sFC, self.vCnt)
        p.wait_all(vm=False)
        p.raw("s_mov_b64 exec, 1")
        p.ds_write("ds_add_u32", a if dyn else self.vCnt, b, off)
        p.raw("s_mov_b64 exec, -1")

    def await_(self, off, n, dyn=False, tq=None):
        p = self.p
        tq = tq or self.tq
        a, b = tq.sub(0), tq.sub(1)
        k = self.nawait = getattr(self, 'nawait', 0) + 1
        if dyn:
            p.valu("v_add_u32", a, sFC, self.vCnt)
        p.valu("v_mov_b32", b, 0)
        p.raw(f"s_branch Law{k}")
        p.lines.append(f"Lax{k}:")
        p.raw("s_sleep 2")
        p.lines.append(f"Law{k}:")
        p.raw(f"ds_read_b32 {b}, {a if dyn else self.vCnt} offset:{off}")
        p.raw(f"s_sub_u32 {sCNT}, {sCNT}, 1")
        p.raw(f"s_cselect_b32 {sT1}, {n}, 0")
        p.raw(f"s_cselect_b32 {sCNT}, 0, {sCNT}")
        p.raw("s_waitcnt lgkmcnt(0)")
        p.raw(f"v_readfirstlane_b32 {sT0}, {b}")
        p.raw("s_nop 1")
        p.raw(f"s_max_u32 {sT0}, {sT0}, {sT1}")
        p.raw(f"s_cmp_lt_u32 {sT0}, {n}")
        p.raw(f"s_cbranch_scc1 Lax{k}")
        p.lgkm_seq += 1
        p.lgkm_done = p.lgkm_seq

    def row0_dma(self, R, k=0):
        p = self.p
        p.salu("s_add_u32", "m0", sXM, R * RS + ((R >> 1) & 3) * 16 + 896 * k)
        so = sYB
        if R == 0:
            p.salu("s_sub_u32", sT2, sYB, ROWB)
            p.salu("s_cmp_eq_u32", sY0, 0)
            p.salu("s_cselect_b32", sT2, OOB_S, sT2)
            so = sT2
        elif R > 1:
            p.salu("s_add_u32", sYB, sYB, ROWB)
        p.dma(self.vX[k], sX, so, flags='nt' if self.o.get('nt0', 0) else '')

    def row_dma(self, R):
        p = self.p
        p.salu("s_add_u32", sSL, sSL, RS)
        p.salu("s_cmp_eq_u32", sSL, 10 * RS)
        p.salu("s_cselect_b32", sSL, 0, sSL)
        p.salu("s_add_u32", sT0, sSL, sXM)
        p.salu("s_add_u32", "m0", sT0, ((R >> 1) & 3) * 16)
        p.salu("s_add_u32", sYB, sYB, ROWB)
        p.dma(self.vX[0], sX, sYB)
        p.salu("s_add_u32", "m0", sT0, ((R >> 1) & 3) * 16 + 896)
        self.x_tok = p.dma(self.vX[1], sX, sYB)

    def skip_round(self):
        p = self.p
        p.salu("s_add_u32", sYB, sYB, 8 * ROWB)
        p.salu("s_sub_u32", sSL, sSL, 2 * RS)

    def touch_rows(self, a, b):
        p = self.p
        self.lane(b)
        p.valu("v_and_b32", a, 15, b)
        p.valu("v_lshlrev_b32", a, 7, a)
        p.valu("v_lshrrev_b32", b, 4, b)
        p.valu("v_mul_u32_u24", b, ROWB, b)
        p.salu("s_sub_u32", sT0, sXM, R2 + 192 - ROWB)
        p.salu("s_mul_i32", sT1, sX0, 192)
        p.salu("s_add_u32", sT0, sT0, sT1)
        p.valu("v_add3_u32", a, a, b, sT0)
        p.salu("s_mov_b32", "m0", LDS_BYTES)
        p.salu("s_add_u32", sT1, sYB, 4 * ROWB)
        for so in (sYB, sT1):
            p.raw(f"buffer_load_dword {a}, {sX}, {so} offen lds")
            p.vm_seq += 1

    def conv_addr(self):
        p = self.p
        a = self.tq.sub(0)
        p.salu("s_add_u32", sT0, sSL, RS)
        for k in range(4):
            p.valu("v_add_u32", self.vB[k], sT0, self.vB0)
            if k:
                p.valu("v_add_u32", self.vB[k], k * RS, self.vB[k])
            if k >= 2:
                p.valu("v_add_u32", a, 16, self.vB[k])
                p.valu("v_bfi_b32", self.vB[k], 48, a, self.vB[k])
            p.valu("v_subrev_u32", a, 10 * RS, self.vB[k])
            p.valu("v_min_u32", self.vB[k], self.vB[k], a)
            p.valu("v_add_u32", self.vB[k], R2, self.vB[k])

    def w1_dma(self, u):
        p = self.p
        p.salu("s_and_b32", sT0, sWAVE, 3)
        p.salu("s_add_u32", sT0, sT0, 4 * u)
        p.salu("s_mul_i32", sT1, sT0, 43)
        p.salu("s_lshr_b32", sT1, sT1, 8)
        p.salu("s_lshl_b32", sT3, sT0, 10)
        p.salu("s_add_u32", "m0", sT3, W1F)
        p.salu("s_mul_i32", sT3, sT1, 6)
        p.salu("s_sub_u32", sT0, sT0, sT3)
        p.salu("s_mul_i32", sT0, sT0, 12288)
        p.salu("s_lshl_b32", sT1, sT1, 6)
        p.salu("s_add_u32", sT0, sT0, sT1)
        return p.dma(self.vW1g, sW1, sT0)

    def tr_addr(self, dst, lane, t0, hshift):
        p = self.p
        p.valu("v_lshrrev_b32", t0, 5, lane)
        p.valu("v_lshlrev_b32", dst, hshift, t0)
        p.valu("v_bfe_u32", t0, lane, 2, 2)
        p.valu("v_lshl_add_u32", dst, t0, 6, dst)
        p.valu("v_bfe_u32", t0, lane, 4, 1)
        p.valu("v_lshl_add_u32", dst, t0, 5, dst)
        p.valu("v_and_b32", t0, 1, lane)
        p.valu("v_lshl_add_u32", dst, t0, 4, dst)
        p.valu("v_bfe_u32", t0, lane, 1, 1)
        p.valu("v_lshl_add_u32", dst, t0, 3, dst)

    def prologue(self):
        p, o = self.p, self.o
        p.salu("s_cmp_ge_u32", S(2), 256)
        p.raw("s_cbranch_scc1 Lend")
        p.raw(f"s_load_dwordx16 {sLD}, s[0:1], 0")
        p.raw(f"s_load_dwordx2 {sTM}, s[0:1], 64")
        if o.get('stamps'):
            p.raw("s_memtime s[68:69]")
            p.raw("s_memrealtime s[70:71]")
        if o.get('dbgs'):
            p.raw("s_memrealtime s[100:101]")
        self.mark()
        tid, lane = V(119), V(118)
        t = [V(120 + i) for i in range(48)]
        p.valu("v_mov_b32", tid, V(0))
        p.valu("v_and_b32", lane, 63, V(0))
        p.valu("v_lshrrev_b32", t[0], 6, V(0))
        p.valu("v_readfirstlane_b32", sWAVE, t[0])
        p.raw(f"s_getpc_b64 {sEX}")
        p.lines.append("Lpc:")
        p.salu("s_lshr_b32", sT0, S(2), 3)
        p.salu("s_and_b32", sT0, sT0, 15)
        p.salu("s_lshl_b32", sT0, sT0, 13)
        p.valu("v_lshrrev_b32", t[2], 3, V(0))
        p.valu("v_lshl_add_u32", t[2], t[2], 7, sT0)
        p.valu("v_min_u32", t[2], "Lend-Lpc", t[2])
        if o.get('pf', 1):
            p.raw(f"global_load_dword v112, {t[2]}, {sEX}")
            p.vm_seq += 1
        p.salu("s_and_b32", sT0, S(2), 7)
        p.salu("s_lshr_b32", sT1, S(2), 3)
        p.salu("s_and_b32", sX0, sT0, 3)
        p.salu("s_lshl_b32", sX0, sX0, 2)
        p.salu("s_and_b32", sT2, sT1, 3)
        p.salu("s_add_u32", sX0, sX0, sT2)
        p.salu("s_lshr_b32", sY0, sT0, 2)
        p.salu("s_lshl_b32", sY0, sY0, 3)
        p.salu("s_lshr_b32", sT2, sT1, 2)
        p.salu("s_add_u32", sY0, sY0, sT2)
        p.salu("s_lshl_b32", sX0, sX0, 5)
        p.salu("s_lshl_b32", sY0, sY0, 5)
        p.salu("s_and_b32", sT0, sWAVE, 3)
        p.salu("s_mul_i32", sT0, sT0, 1536)
        p.salu("s_add_u32", sXM, sT0, R2)
        p.salu("s_mul_i32", sT1, sX0, 192)
        p.salu("s_add_u32", sT0, sT0, sT1)
        p.salu("s_sub_u32", sT0, sT0, 192)
        p.valu("v_lshl_add_u32", t[1], lane, 4, sT0)
        p.valu("v_add_u32", t[3], 896, t[1])
        p.valu("v_mov_b32", t[2], OOB_V)
        p.salu("s_mov_b32", sT1, ROWB)
        p.valu("v_cmp_gt_u32", "vcc", sT1, t[1])
        p.valu("v_cndmask_b32", self.vX[0], t[2], t[1], "vcc")
        p.valu("v_cmp_gt_u32", "vcc", sT1, t[3])
        p.valu("v_cndmask_b32", self.vX[1], t[2], t[3], "vcc")
        p.salu("s_mul_i32", sYB, sY0, ROWB)
        dv, di = V(126, 2), t[8]
        p.valu("v_min_u32", di, 215, tid)
        p.valu("v_lshlrev_b32", t[10], 3, di)
        p.valu("v_lshlrev_b32", self.vA[0], 4, lane)
        p.raw("s_waitcnt lgkmcnt(0)")
        self.srd(sX, sLD.sub(0, 2), X_BYTES)
        self.mark()
        p.salu("s_cmp_ge_u32", sWAVE, 4)
        p.raw("s_cbranch_scc1 Lrowb")
        p.cond_begin()
        self.srd(sDW, sLD.sub(2, 2), 1728)
        p.buf_load("buffer_load_dwordx2", dv, t[10], sDW)
        for R in range(10):
            self.row0_dma(R)
        p.raw("s_branch Lsetup")
        p.cond_end()
        p.lines.append("Lrowb:")
        p.cond_begin()
        for R in range(10):
            self.row0_dma(R, 1)
        self.mark()
        self.srd(sW1, sLD.sub(4, 2), 73728)
        p.valu("v_lshrrev_b32", self.vW1g, 2, lane)
        p.valu("v_mul_u32_u24", self.vW1g, 768, self.vW1g)
        p.valu("v_and_b32", t[5], 3, lane)
        p.valu("v_lshl_add_u32", self.vW1g, t[5], 4, self.vW1g)
        tp = o.get('tp', 6)
        for u in range(6):
            self.w1_dma(u)
        if tp == 6:
            self.touch_rows(t[20], t[21])
        self.mark()
        p.raw(f"s_waitcnt vmcnt({8 if tp == 6 else 6})")
        self.mark()
        p.barrier()
        p.raw("s_setprio %d" % o.get('bp', 0))
        for u in range(6, 18):
            self.w1_dma(u)
            if u + 1 == tp:
                self.touch_rows(t[20], t[21])
        p.cond_end()
        p.lines.append("Lsetup:")
        self.mark()
        self.srd(sW2, sLD.sub(6, 2), 73728)
        self.srd(sGA, sLD.sub(8, 2), 768)
        self.srd(sBE, sLD.sub(10, 2), 768)
        self.srd(sOUT, sLD.sub(12, 2), X_BYTES)
        self.srd(sDBG, sLD.sub(14, 2), 256)
        self.srd(sWS, sTM, WS_BYTES)
        for i in range(3):
            p.valu("v_lshlrev_b32", self.vA[i], 4, lane)
            p.valu("v_add_u32", self.vA[i], W1F + 65536 * i, self.vA[i])
        p.salu("s_lshl_b32", sSTAMP, S(2), 3)
        p.salu("s_add_u32", sSTAMP, sSTAMP, sWAVE)
        p.salu("s_lshl_b32", sLNB, sSTAMP, 10)
        p.salu("s_add_u32", sLNB, sLNB, WS_LN - W1F)
        p.salu("s_mul_i32", sSTAMP, sSTAMP, 16 * o.get('stamps', 1))
        p.salu("s_add_u32", sSTAMP, sSTAMP, WS_STAMP)
        if o.get('stamps'):
            for i in range(4):
                p.valu("v_mov_b32", V(188 + i), S(68 + i))
            p.salu("s_sub_u32", sT0, sSTAMP, W1F)
            p.raw("s_mov_b64 exec, 1")
            if o.get('dbgt'):
                p.valu("v_mov_b32", V(188), 0)
                p.valu("v_not_b32", V(189), V(190))
                p.buf_store("buffer_atomic_umax", V(189), V(188), sDBG, 0, 4)
                p.buf_store("buffer_atomic_umax", V(190), V(188), sDBG, 0, 8)
            else:
                p.buf_store("buffer_store_dwordx4", V(188, 4), self.vA[0], sWS, sT0, 0)
            p.raw("s_mov_b64 exec, -1")
            self.nstamp += 1
        p.salu("s_mov_b32", sK, h2u(GK) * 0x10001)
        p.salu("s_mov_b32", sM, 0xFFF8FFF8)
        m, g = t[11], t[12]
        p.valu("v_and_b32", m, 15, lane)
        p.valu("v_lshrrev_b32", g, 4, lane)
        p.valu("v_and_b32", t[13], 3, m)
        p.valu("v_mul_u32_u24", t[14], 2 * RS + 16, t[13])
        p.valu("v_lshrrev_b32", t[13], 2, m)
        p.valu("v_lshl_add_u32", t[13], t[13], 1, g)
        p.valu("v_mul_u32_u24", t[13], 192, t[13])
        p.salu("s_sub_u32", sT0, sXM, R2)
        p.valu("v_add3_u32", self.vB0, t[13], t[14], sT0)
        p.valu("v_bfe_u32", t[13], m, 2, 1)
        p.valu("v_sub_u32", t[13], g, t[13])
        p.valu("v_lshrrev_b32", t[14], 3, m)
        p.valu("v_and_b32", t[15], 3, m)
        p.valu("v_lshl_add_u32", t[15], t[14], 2, t[15])
        p.valu("v_lshlrev_b32", t[16], 6, t[13])
        p.valu("v_lshl_add_u32", t[16], t[15], 3, t[16])
        p.valu("v_add_u32", t[16], DIAG + 8, t[16])
        p.valu("v_mov_b32", t[17], DIAG)
        p.valu("v_cmp_gt_u32", "vcc", 3, t[13])
        p.valu("v_cndmask_b32", t[16], t[17], t[16], "vcc")
        p.valu("v_cmp_eq_u32", "vcc", 0, t[14])
        p.valu("v_cndmask_b32", self.vC[0], t[17], t[16], "vcc")
        p.valu("v_cndmask_b32", self.vC[1], t[16], t[17], "vcc")
        p.valu("v_lshrrev_b32", t[13], 2, m)
        p.valu("v_bfe_u32", t[15], m, 1, 1)
        p.valu("v_cmp_eq_u32", "vcc", t[13], g)
        p.valu("v_cndmask_b32", t[15], 8, t[15], "vcc")
        for i in range(2):
            p.valu("v_cmp_eq_u32", sIX[i], i, t[15])
        p.valu("v_lshlrev_b32", self.vBias, 5, g)
        p.valu("v_add_u32", self.vBias, HOLE[0], self.vBias)
        p.valu("v_lshlrev_b32", self.vG, 4, g)
        n, h = t[11], t[12]
        p.valu("v_and_b32", n, 31, lane)
        p.valu("v_lshrrev_b32", h, 5, lane)
        p.valu("v_bfe_u32", t[13], n, 2, 1)
        p.valu("v_bfe_u32", t[14], n, 3, 1)
        p.valu("v_bfe_u32", t[15], n, 1, 1)
        p.valu("v_lshrrev_b32", t[16], 4, n)
        p.valu("v_lshl_add_u32", t[15], t[16], 1, t[15])
        p.valu("v_lshl_add_u32", t[15], t[14], 2, t[15])
        p.valu("v_cmp_eq_u32", "vcc", t[13], h)
        p.valu("v_cndmask_b32", t[15], 8, t[15], "vcc")
        for i in range(8):
            p.valu("v_cmp_eq_u32", sID[i], i, t[15])
        p.valu("v_and_b32", t[16], 1, n)
        p.valu("v_lshlrev_b32", t[16], 4, t[16])
        p.valu("v_mov_b32", self.vI, 0x3F80)
        p.valu("v_lshlrev_b32", self.vI, t[16], self.vI)
        p.valu("v_and_b32", t[17], 19, n)
        p.valu("v_lshl_add_u32", t[17], t[13], 3, t[17])
        p.valu("v_lshl_add_u32", t[17], t[14], 2, t[17])
        p.valu("v_lshlrev_b32", t[17], 2, t[17])
        p.valu("v_lshl_add_u32", t[17], h, 7, t[17])
        p.salu("s_mul_i32", sW2B, sWAVE, 9216)
        p.salu("s_add_u32", sPRIV, sW2B, R2)
        p.valu("v_add_u32", self.vS, sPRIV, t[17])
        p.valu("v_and_b32", t[13], 3, lane)
        p.valu("v_mul_u32_u24", t[14], 2 * ROWB, t[13])
        p.valu("v_bfe_u32", t[13], lane, 2, 2)
        p.valu("v_mul_u32_u24", t[13], 384, t[13])
        p.valu("v_add3_u32", self.vG, self.vG, t[13], t[14])
        p.salu("s_mul_i32", sT3, sX0, 192)
        p.salu("s_add_u32", sT3, sT3, sXM)
        p.salu("s_sub_u32", sT3, sT3, R2)
        p.salu("s_and_b32", sFC, sWAVE, 4)
        p.salu("s_lshl_b32", sT1, sFC, 1)
        p.salu("s_add_u32", sT1, sT1, sY0)
        for ti in range(4):
            p.salu("s_add_u32", sT0, sT1, 16 * (ti >> 1) + (ti & 1))
            p.salu("s_mul_i32", sT0, sT0, ROWB)
            p.salu("s_add_u32", sTILE[ti], sT0, sT3)
        for i in range(2):
            p.salu("s_mov_b32", sD4[0].sub(i), 0xAAAAAAAA)
            p.salu("s_mov_b32", sD4[1].sub(i), 0xCCCCCCCC)
        p.salu("s_mov_b32", sSL, 9 * RS)
        p.salu("s_mov_b32", sCNT, 200000)
        p.valu("v_mov_b32", self.vCnt, CNT)
        self.tr_addr(self.vW1r, lane, t[28], 8)
        p.salu("s_and_b32", sT0, sWAVE, 3)
        p.salu("s_lshl_b32", sT0, sT0, 10)
        p.valu("v_add_u32", self.vW1w, sT0, self.vA[0])
        p.salu("s_add_u32", sT0, sT0, W1F)
        p.valu("v_add_u32", self.vW1r, sT0, self.vW1r)
        for r in self.SQ:
            p.valu("v_mov_b32", r, 0)
        self.mark()
        p.salu("s_cmp_ge_u32", sWAVE, 4)
        p.raw("s_cbranch_scc1 Lwa")
        p.cond_begin()
        ch = [V(64 + 2 * k, 2) for k in range(5)]
        for r in (ch[0].sub(1), ch[1].sub(1), ch[2].sub(0), ch[3].sub(0), ch[4].sub(0), ch[4].sub(1)):
            p.valu("v_mov_b32", r, 0)
        p.valu("v_min_u32", t[20], 35, tid)
        p.valu("v_mul_u32_u24", t[20], 200, t[20])
        p.valu("v_add_u32", t[20], DIAG, t[20])
        p.valu("v_and_b32", t[21], 31, tid)
        p.valu("v_lshlrev_b32", t[21], 3, t[21])
        p.valu("v_bfe_u32", t[22], tid, 5, 1)
        p.valu("v_lshl_add_u32", t[21], t[22], 13, t[21])
        p.valu("v_add_u32", t[21], HOLE[0], t[21])
        p.valu("v_cmp_gt_u32", "vcc", 64, tid)
        p.valu("v_cndmask_b32", t[20], t[21], t[20], "vcc")
        p.ds_write("ds_write_b64", t[20], ch[4])
        p.valu("v_lshrrev_b32", t[20], 1, di)
        p.valu("v_mul_u32_u24", t[21], 57, t[20])
        p.valu("v_lshrrev_b32", t[21], 11, t[21])
        p.valu("v_mul_u32_u24", t[22], 171, t[20])
        p.valu("v_lshrrev_b32", t[22], 11, t[22])
        p.valu("v_mul_u32_u24", t[20], 200, t[20])
        p.valu("v_mul_u32_u24", t[22], 2400 - 64, t[22])
        p.valu("v_mul_u32_u24", t[21], 2400 - 192, t[21])
        p.valu("v_sub_u32", t[20], t[20], t[22])
        p.valu("v_add_u32", t[20], t[20], t[21])
        p.valu("v_and_b32", t[21], 1, di)
        p.valu("v_lshl_add_u32", t[20], t[21], 5, t[20])
        p.valu("v_add_u32", t[20], DIAG + 8, t[20])
        self.gelu_table()
        p.raw("s_waitcnt vmcnt(10)")
        for r in dv.regs():
            p.p_vm[r] = None
        for k in range(4):
            p.valu("v_and_b32", ch[k].sub(k >> 1), (0xFFFF, 0xFFFF0000)[k & 1], dv.sub(k >> 1))
            p.ds_write("ds_write_b64", t[20], ch[k], 8 * k)
        self.mark()
        p.raw("s_waitcnt vmcnt(0) lgkmcnt(0)")
        self.mark()
        p.barrier()
        p.cond_end()
        p.lines.append("Lwa:")
        p.vm_done, p.lgkm_done = p.vm_seq, p.lgkm_seq
        self.mark()
        self.stamp(188)
        self.stamp(188)

    def gelu_table(self):
        p = self.p
        tid, t = V(119), [V(120 + i) for i in range(4)]
        y = [V(i) for i in range(32)]
        e = [V(32 + i) for i in range(32)]
        p.valu("v_and_b32", t[0], 255, tid)
        p.valu("v_lshlrev_b32", t[1], 8, t[0])
        for i in range(32):
            p.valu("v_add_u32", y[i], 8 * i + 4, t[1])
            p.valu("v_cvt_f32_f16", y[i], y[i])
        for i in range(32):
            p.valu("v_fmaak_f32", e[i], y[i], y[i], hex(f2u(GK)))
            p.valu("v_mul_f32", e[i], y[i], e[i])
        for i in range(32):
            p.valu("v_exp_f32", e[i], e[i])
        for i in range(32):
            p.valu("v_add_f32", e[i], "1.0", e[i])
        for i in range(32):
            p.valu("v_rcp_f32", e[i], e[i])
        for i in range(32):
            p.valu("v_mul_f32", y[i], y[i], e[i])
        for i in range(16):
            p.valu("v_cvt_pk_f16_f32", e[i], y[2 * i], y[2 * i + 1])
        tl = self.o.get('tl', 2)
        if tl:
            for i in range(16):
                p.valu("v_add_u32", e[i], (1 << tl >> 1) * 0x10001, e[i])
                p.valu("v_and_b32", e[i], (0xFFFF >> tl << tl) * 0x10001, e[i])
        p.valu("v_lshlrev_b32", t[1], 6, t[0])
        p.valu("v_bfe_u32", t[0], t[0], 2, 5)
        p.valu("v_cmp_ne_u32", "vcc", 31, t[0])
        p.raw(f"s_and_saveexec_b64 {sEX}, vcc")
        for i in range(4):
            p.ds_write("ds_write_b128", t[1], V(32 + 4 * i, 4), 16 * i)
        p.raw(f"s_mov_b64 exec, {sEX}")

    def sentinels(self):
        p = self.p
        t = [V(100 + i) for i in range(6)]
        sv = V(108, 4)
        p.salu("s_cmp_lg_u32", sWAVE, 7)
        p.raw("s_cbranch_scc1 Lnosent")
        p.cond_begin()
        lane = t[4]
        self.lane(lane)
        for i in range(4):
            p.valu("v_mov_b32", sv.sub(i), -1)
        p.valu("v_lshlrev_b32", t[0], 12, lane)
        p.valu("v_add_u32", t[1], 64 * 4096, t[0])
        p.valu("v_cmp_gt_u32", "vcc", 32, lane)
        p.valu("v_mov_b32", t[5], OOB_V)
        p.valu("v_cndmask_b32", t[1], t[5], t[1], "vcc")
        p.salu("s_lshl_b32", sT0, S(2), 4)
        p.raw(f"buffer_store_dwordx4 {sv}, {t[0]}, {sWS}, {sT0} offen sc1")
        p.raw(f"buffer_store_dwordx4 {sv}, {t[1]}, {sWS}, {sT0} offen sc1")
        p.salu("s_add_u32", sT0, sT0, WS_TOT)
        p.salu("s_cmp_lt_u32", S(2), 96)
        p.salu("s_cselect_b32", sT0, sT0, OOB_S)
        p.valu("v_lshlrev_b32", t[3], 11, lane)
        p.raw("s_mov_b64 exec, 0xff")
        p.raw(f"buffer_store_dwordx4 {sv}, {t[3]}, {sWS}, {sT0} offen sc1")
        p.raw("s_mov_b64 exec, -1")
        p.nop(2)
        p.cond_end()
        p.lines.append("Lnosent:")

    def init_counter(self):
        p = self.p
        p.salu("s_cmp_lg_u32", sWAVE, 7)
        p.raw("s_cbranch_scc1 Lnoinit")
        p.cond_begin()
        p.raw("s_waitcnt vmcnt(0)")
        p.raw(f"v_mov_b32 {self.tq.sub(0)}, 1")
        p.raw(f"v_mov_b32 {self.tq.sub(1)}, 0")
        p.raw("s_mov_b64 exec, 1")
        p.raw(f"buffer_atomic_add {self.tq.sub(0)}, {self.tq.sub(1)}, {sDBG}, 0 offen")
        p.raw("s_mov_b64 exec, -1")
        p.nop(2)
        p.cond_end()
        p.lines.append("Lnoinit:")

    def stats(self, s, t, ti, cb):
        acc = self.CA[ti].sub(4 * cb, 4)
        s2, q2 = self.ls[ti & 1][:2]
        if self.o.get('lnpk', 1):
            for k in range(2):
                c2 = acc.sub(2 * k, 2)
                if cb == 0 and k == 0:
                    last = [self.CA[ti | 1].sub(44, 4)]
                    s.valu(t, "v_pk_mul_f32", q2, c2, c2, rd=last)
                    s.valu(t, "v_pk_add_f32", s2, c2, acc.sub(2, 2), rd=last)
                else:
                    s.valu(t, "v_pk_fma_f32", q2, c2, c2, q2)
                    if cb:
                        s.valu(t, "v_pk_add_f32", s2, s2, c2)
            return
        for k in range(4):
            c, sa, qa = acc.sub(k), s2.sub(k & 1), q2.sub(k & 1)
            if cb == 0 and k < 2:
                s.valu(t, "v_mul_f32", qa, c, c)
                s.valu(t, "v_add_f32", sa, c, acc.sub(k + 2))
            else:
                s.valu(t, "v_fmac_f32", qa, c, c, rmw=True)
                if cb:
                    s.valu(t, "v_add_f32", sa, sa, c)

    def conv(self, s, blk, t0, t1, rd=(), wr=()):
        dt = (t1 - t0) / 72
        mode, s.mode = s.mode, self.o.get('dsc', 1)
        late = self.o.get('late', 1)
        for cb in range(12):
            t = t0 + 6 * cb * dt
            F = []
            for k in range(4):
                F.append(self.ring(self.ringB))
                s.ds_read(t + (k - 7) * dt, "ds_read_b128", F[k], self.vB[k], cb * 16, rd=rd)
            for dy in range(3):
                a = self.ring(self.ringA)
                for k in range(2):
                    s.ds_read(t + (2 * dy - 7) * dt, "ds_read_b64", a.sub(2 * k, 2), self.vC[k], (dy * 12 + cb) * 200)
                for par in range(2):
                    acc = self.CA[2 * blk + par].sub(4 * cb, 4)
                    s.mfma(t + (2 * dy + par) * dt, acc, a, F[dy + par], acc if dy else 0, rd=wr)
            if not late:
                for par in range(2):
                    self.stats(s, t + (9 + 3 * par) * dt, 2 * blk + par, cb)
        s.mode = mode
        if late:
            for cb in range(12):
                for par in range(2):
                    self.stats(s, t1 + 0.01, 2 * blk + par, cb)

    def ln(self, s, ti, t0, t1):
        C, D, ls, pk = self.CA[ti], self.LN[ti], self.ls[ti & 1], self.o.get('lnpk', 1)
        a, a1, q, q1, rs, off = [ls[i // 2].sub(i % 2) for i in range(6)]
        ts = t0 - (t1 - t0) * (ti & 1)
        s.valu(ts, "v_add_f32", a, a, a1)
        s.valu(ts, "v_add_f32", q, q, q1)
        s.swap(ts, 32, a, q)
        s.valu(ts, "v_add_f32", a, a, q)
        s.valu(ts, "v_mul_f32", a, f2u(1.0 / 96), a)
        s.valu(ts, "v_mov_b32", q, a)
        s.swap(ts, 32, a, q)
        s.valu(ts, "v_fma_f32", q, f"-{a}", a, q, rd=[a])
        s.valu(ts, "v_max_f32", q, 0, q)
        s.valu(ts, "v_add_f32", q, f2u(1e-5), q)
        s.valu(ts, "v_rsq_f32", q, q)
        s.valu(ts, "v_mul_f32", rs, f2u(GA), q)
        if pk:
            s.valu(ts, "v_mul_f32", off, f2u(GA), q)
            s.valu(ts, "v_mul_f32", q, a, rs)
            s.valu(ts, "v_mul_f32", q1, a, rs)
        else:
            s.valu(ts, "v_mul_f32", off, a, rs)
        for i in range(24):
            t = t0 + (t1 - t0) * i / 24
            if pk:
                s.valu(t, "v_pk_fma_f32", C.sub(2 * i, 2), C.sub(2 * i, 2), ls[2], ls[1], mods="neg_lo:[0,0,1] neg_hi:[0,0,1]")
            else:
                for k in range(2):
                    s.valu(t, "v_fma_f32", C.sub(2 * i + k), C.sub(2 * i + k), rs, f"-{off}", rd=[off])
            s.valu(t, "v_cvt_pk_bf16_f32", D.sub(i), C.sub(2 * i), C.sub(2 * i + 1))

    def gemm1(self, s, t0, j, ln, y, pixel_lane, ringW, span=1.0, rd=()):
        for s6 in range(6):
            t = t0 + span * s6 / 6
            w = self.ring(ringW)
            a, off = self.frag(j * 6 + s6)
            s.ds_read(t - self.o.get('lead', 0.8), "ds_read_b128", w, a, off, rd=rd)
            b = ln.sub(4 * s6, 4)
            if pixel_lane:
                s.mfma(t, y, w, b, y if s6 else 0)
            else:
                s.mfma(t, y, b, w, y if s6 else 0)

    def gelu32(self, s, t0, y, nl, blk, acc=None, idk=None):
        self.gelu(s, t0, y, nl, dst=[blk.sub(i) for i in (0, 1, 4, 5, 2, 3, 6, 7)])
        t = t0 + self.o.get('fin', 0.9) + self.o.get('lw', 0.55)
        if acc is not None:
            for q in range(2):
                s.mfma(t + 0.1 * q, y, blk.sub(4 * q, 4), idk.sub(4 * q, 4), y if q else 0, 'f16')
            for i in range(16):
                s.valu(t + 0.35 + 0.02 * i, "v_fmac_f32", acc, y.sub(i), y.sub(i), rmw=True)
            t += 0.15
        for i in range(4):
            s.swap(t, 16, blk.sub(i), blk.sub(4 + i))
        return t

    def sq4(self, s, t, pair):
        q = self.q4
        s.mfma(t, q, pair, pair, q if self.q4_open else 0, '4x4')
        self.q4_open = True

    def sq4_flush(self, s, t, acc):
        if not self.q4_open:
            return
        q = self.q4
        s.valu(t, "v_cndmask_b32", q.sub(0), q.sub(0), q.sub(1), sD4[0])
        s.valu(t, "v_cndmask_b32", q.sub(2), q.sub(2), q.sub(3), sD4[0])
        s.valu(t, "v_cndmask_b32", q.sub(0), q.sub(0), q.sub(2), sD4[1])
        s.valu(t, "v_add_f32", acc, acc, q.sub(0))
        self.q4_open = False

    def gelu(self, s, t0, y, nl, acc=None, dst=None):
        o = self.o
        lw, fin = o.get('lw', 0.55), o.get('fin', 0.9)
        mixlo, mixhi = "op_sel_hi:[1,1,0]", "op_sel:[1,1,0] op_sel_hi:[1,1,0]"
        for i in range(nl):
            a0, a1 = y.sub(2 * i), y.sub(2 * i + 1)
            t = t0 + lw * i / nl
            s.valu(t, "v_cvt_pkrtz_f16_f32", a1, a0, a1)
            s.valu(t, "v_and_b32", a1, sM, a1)
            s.valu(t, "v_bfe_u32", a0, a1, 2, 14)
            s.valu(t, "v_lshrrev_b32", a1, 18, a1)
            s.ds_read(t, "ds_read_u16", a0, a0)
            s.ds_read(t, "ds_read_u16" if dst is None else "ds_read_u16_d16_hi", a1, a1)
        nt = 8 - nl
        m4, late = o.get('m4', 0) and dst is None, []
        w = [4, 4, 4, 8, 8, 4, 8, 8, 4] + ([4, 4] if dst is None else [])
        cum = [sum(w[:k]) / sum(w) for k in range(len(w) + 1)]
        for k in range(len(w)):
            for i in range(nl, 8):
                u, e = y.sub(2 * i), y.sub(2 * i + 1)
                t = t0 + cum[k] + (cum[k + 1] - cum[k]) * (i - nl) / nt
                if k == 0:
                    s.valu(t, "v_cvt_pk_f16_f32", u, u, e)
                elif k == 1:
                    s.valu(t, "v_pk_fma_f16", e, u, u, sK)
                elif k == 2:
                    s.valu(t, "v_pk_mul_f16", e, u, e)
                elif k in (3, 4):
                    s.valu(t, "v_exp_f16_sdwa", e, e, mods=(LO, HI)[k - 3])
                elif k == 5:
                    s.valu(t, "v_pk_add_f16", e, e, "1.0", mods="op_sel_hi:[1,0]")
                elif k in (6, 7):
                    s.valu(t, "v_rcp_f16_sdwa", e, e, mods=(LO, HI)[k - 6])
                elif k == 8:
                    second = m4 and (i - nl) % 2 == 1
                    s.valu(t, "v_pk_mul_f16", (y.sub(2 * i - 1) if second else u) if dst is None else dst[i], u, e)
                elif m4 and (i - nl) // 2 < nt // 2:
                    if k == 9 and (i - nl) % 2 == 0:
                        late.append((t, y.sub(2 * i, 2)))
                else:
                    s.valu(t, "v_fma_mix_f32", acc, u, u, acc, mods=(mixlo, mixhi)[k - 9])
        for t, pr in late:
            self.sq4(s, t, pr)
        for i in range(nl):
            a0, a1 = y.sub(2 * i), y.sub(2 * i + 1)
            t = t0 + fin + lw * i / nl
            if m4:
                self.sq4(s, t, y.sub(2 * i, 2))
            elif dst is None:
                for a in (a0, a1):
                    s.valu(t, "v_fma_mix_f32", acc, a, a, acc, mods=mixlo)
            else:
                s.valu(t, "v_or_b32", dst[i], a0, a1)

    def pattern(self, key, default):
        return [int(c) for c in str(self.o.get(key, default))]

    def ws_frag(self, f, fn):
        p = self.p
        if f == 0:
            return fn(sLNB)
        p.salu("s_add_u32", sT3, sLNB, f * self.o.get('fst', 1 << 21))
        return fn(sT3)

    def prio_steps(self, s, t0, t1, key='pp'):
        n = 4 * max(1, round((t1 - t0) / self.o.get(key, self.o.get('pp', 2.0))))
        for k in range(n):
            s.misc(t0 + (t1 - t0) * k / n, lambda k=k: self.p.raw(f"s_setprio {3 - k % 4}"), rd=['@bar'] if k == 0 else [], wr=['@prio'])

    def w1_transform(self, us, fr):
        p = self.p
        a, b = V(113), V(114)
        p.valu("v_add_u32", a, 65536, self.vW1r)
        p.valu("v_add_u32", b, 65536, self.vW1w)
        for k, u in enumerate(us):
            for i in range(2):
                p.ds_read("ds_read_b64_tr_b16", fr[k].sub(2 * i, 2), self.vW1r if u < 16 else a, (u % 16) * 4096 + i * 512)
        for k, u in enumerate(us):
            p.ds_write("ds_write_b128", self.vW1w if u < 16 else b, fr[k], (u % 16) * 4096)

    def code_pf(self, s, times):
        p = self.p

        def one():
            k = self.ncpf = getattr(self, 'ncpf', 0) + 1
            p.raw(f"s_getpc_b64 {sEX}")
            p.lines.append(f"Lcq{k}:")
            p.salu("s_lshl_b32", sT0, sWAVE, 10)
            p.salu("s_add_u32", sT0, sT0, self.o.get('cpd', 6144))
            p.salu("s_min_u32", sT0, sT0, f"Lend-Lcq{k}-1024")
            p.salu("s_add_u32", sEX.sub(0), sEX.sub(0), sT0)
            p.salu("s_addc_u32", sEX.sub(1), sEX.sub(1), 0)
            p.salu("s_sub_u32", sEX.sub(0), sEX.sub(0), W1F)
            p.salu("s_subb_u32", sEX.sub(1), sEX.sub(1), 0)
            p.salu("s_mov_b32", "m0", LDS_BYTES)
            p.nop(1)
            p.raw(f"global_load_lds_dword {self.vA[0]}, {sEX}")
            p.vm_seq += 1
        if self.o.get('cpf', 0):
            for t in times:
                s.misc(t, one)

    def setprio(self, s, t, lv):
        s.misc(t, lambda: self.p.raw(f"s_setprio {lv}"), wr=['@prio'])

    def phase1(self):
        p, o = self.p, self.o
        p.salu("s_cmp_lt_u32", sWAVE, 4)
        p.raw("s_cbranch_scc1 Lsu1")
        p.cond_begin()
        p.raw("s_waitcnt vmcnt(%d)" % (14 if o.get('tp', 6) <= 18 else 12))
        self.mark()
        self.w1_transform(range(6), [V(4 * u, 4) for u in range(6)])
        self.signal(C_W1A)
        self.mark()
        self.await_(C_F, 4)
        self.mark()
        for R in range(2, 10):
            self.row_dma(R)
        self.mark()
        p.raw("s_waitcnt vmcnt(16)")
        self.mark()
        self.w1_transform(range(6, 18), [V(4 * u, 4) for u in range(12)])
        self.signal(C_W1B)
        self.mark()
        p.cond_end()
        self.sentinels()
        p.raw("s_setprio 3")
        p.raw("s_waitcnt vmcnt(0)")
        self.mark()
        p.lines.append("Lsu1:")
        p.vm_done, p.lgkm_done = p.vm_seq, p.lgkm_seq
        self.stamp(188)
        s = self.s = Sched(p, o)
        nl = self.pattern('nl1', '65')
        L, cl = o.get('cl', 4.0), o.get('cc', 2.6)
        Y, ny = self.Y1, len(self.Y1)
        u = [None, V(237), V(244), V(245)]
        self.q4, self.q4_open = V(240, 4), False
        tq2 = V(238, 2)
        tmp = [V(48, 8), V(56, 8)]
        m0, m1 = o.get('m0', 0.0), o.get('m1', 2.0)

        def w2_addr():
            self.lane(u[1])
            p.valu("v_lshrrev_b32", self.vW2, 2, u[1])
            p.valu("v_mul_u32_u24", self.vW2, 192, self.vW2)
            p.valu("v_and_b32", u[1], 3, u[1])
            p.valu("v_lshl_add_u32", self.vW2, u[1], 4, self.vW2)

        def init_check():
            p.salu("s_cmp_lg_u32", sWAVE, 0)
            p.raw("s_cbranch_scc1 Lpix")
            p.cond_begin()
            p.raw(f"v_mov_b32 {u[2]}, 0")
            p.lines.append("Lpi:")
            p.raw(f"buffer_load_dword {u[3]}, {u[2]}, {sDBG}, 0 offen sc1")
            p.raw("s_waitcnt vmcnt(0)")
            p.raw(f"v_readfirstlane_b32 {sT0}, {u[3]}")
            self.spin_guard("Lpix")
            p.salu("s_cmp_lt_u32", sT0, 256)
            p.raw("s_cbranch_scc1 Lpi")
            p.cond_end()
            p.lines.append("Lpix:")

        def flush(t, j):
            s.swap(t, 32, self.SQ[j], self.SQ[j + 1])
            s.valu(t, "v_add_f32", self.SQ[j], self.SQ[j], self.SQ[j + 1])
            s.ds_write(t, "ds_write_b32", self.vS, self.SQ[j], TABO + j * 128 + (3072 - 768) * (j >= 6), rd=['@ring', '@sums'])

        for blk in range(2):
            t0 = blk * (24 + L + o.get('cd', 0.7))
            s.misc(t0 - 0.5, self.conv_addr, rd=[self.vB0, '@dma'], wr=self.vB + [self.tq], cost=90)
            if blk:
                s.misc(t0 - 0.3, lambda: p.wait(vm=self.x_tok), rd=['@dma'], wr=['@rows'])
            self.conv(s, blk, t0, t0 + cl, rd=['@rows'], wr=['@cdone'])
            s.misc(t0 + cl, lambda blk=blk: self.signal(C_F + 8 * blk, True), wr=['@cdone', self.tq], cost=8)
            h = (L - cl) / 2
            self.ln(s, 2 * blk, t0 + cl + 0.02, t0 + cl + h)
            self.ln(s, 2 * blk + 1, t0 + cl + h, t0 + L)
            t0 += L
            if blk == 0:
                s.misc(t0 - 1.0, lambda: self.await_(C_W1A, 4), wr=['@w1', self.tq], cost=40)
                if o.get('stamps'):
                    s.misc(t0, lambda: self.stamp(192), wr=[V(192, 4)])
            if blk:
                Y = [Y[1], Y[2], Y[0], Y[3], Y[4]]
            idk = V((64, 216)[blk], 8)
            if self.keep if blk else self.spi:
                for m in range(8):
                    s.valu(t0, "v_cndmask_b32", idk.sub(m), 0, self.vI, sID[m])
                    s.valu(t0, "v_and_b32", idk.sub(m), 0x3C003C00, idk.sub(m))
            for j in range(12):
                t = t0 + 2 * j
                e = 24 * blk + 2 * j
                held = [(2 * blk + par, j) in self.spi or (blk and par and j in self.keep) for par in range(2)]
                if blk == 0 and j == 4:
                    s.misc(t - 1.2, lambda: self.await_(C_W1B, 4), wr=['@w1', self.tq], cost=40)
                for s6 in range(6):
                    tt = t + m0 + (m1 - m0) * s6 / 6
                    w = self.ring(self.ring1)
                    s.ds_read(tt - o.get('lead', 0.8), "ds_read_b128", w, *self.frag(j * 6 + s6), rd=['@w1'])
                    for par in range(2):
                        y = Y[(e + par + 4) % ny]
                        ab = (self.LN[2 * blk + par].sub(4 * s6, 4), w)
                        s.mfma(tt + par * (m1 - m0) / 12, y, *(ab[::-1] if held[par] else ab), y if s6 else 0)
                if blk == 1 and j == 8:
                    d0 = t0 + o.get('w0', 16.0)
                    s.misc(d0, lambda: (self.await_(C_F + 12, 4, tq=tq2), w2_addr()), rd=[self.vA[0]],
                           wr=[self.vW2, u[1], tq2, '@ring'], cost=60)
                    for k, f in enumerate((0, 1, 2, 3, 4, 6, 7)):
                        s.vmem(d0 + 0.3 + 0.5 * k, lambda f=f: self.w2_fetch(f, self.vW2), rd=[self.vW2], wr=['@w2raw'], lat=0)
                    s.misc(d0 + 4, lambda: setattr(self, 'w2_tok0', self.w2_tok), rd=['@w2raw'], wr=['@w2t0'], cost=0)
                    for k in range(0, 8, 2):
                        flush(d0, k)
                if blk == 1 and j == 11:
                    flush(t + 1, 8)
                for par in ((1, 0) if e == 46 else (0, 1)):
                    tg, y, n = t + m1 + (par ^ (e == 46)) + o.get('g0', 0.1), Y[(e + par + 4) % ny], nl[(e + par) % len(nl)]
                    if not held[par]:
                        self.gelu(s, tg, y, n, acc=self.SQ[j])
                        continue
                    bl = self.blk3[j] if blk else self.ring(tmp)
                    te = self.gelu32(s, tg, y, n, bl, self.SQ[j], idk)
                    for q in range(0 if blk else 2):
                        s.vmem(te + 0.2 + 0.4 * q, lambda q=q, bl=bl, f=self.spi[par, j]: self.ws_frag(f + q, lambda so: p.buf_store(
                            "buffer_store_dwordx4", bl.sub(4 * q, 4), self.vA[0], sWS, so, flags=o.get('ssf', ''))), rd=[bl.sub(4 * q, 4)], lat=0)
                self.sq4_flush(s, t + m1 + 2.6, self.SQ[j])
                if blk == 0 and j == 2:
                    for k in range(6):
                        s.vmem(t + 0.7 * k, lambda k=k: self.ws_frag(k, lambda so: p.buf_store(
                            "buffer_store_dwordx4", self.LN[0].sub(4 * k, 4), self.vA[0], sWS, so, flags=o.get('ssf', ''))), rd=[self.LN[0].sub(4 * k, 4)], lat=0)
                if blk == 0 and j == 6 and o.get('dbg'):
                    for k in range(6):
                        s.vmem(t + 0.7 * k, lambda k=k: self.ws_frag(6 + k, lambda so: p.buf_store(
                            "buffer_store_dwordx4", self.LN[1].sub(4 * k, 4), self.vA[0], sWS, so)), rd=[self.LN[1].sub(4 * k, 4)], lat=0)
                if blk == 0 and j == 5:
                    s.misc(t, self.init_counter, wr=[self.tq])
                    s.misc(t + 1, lambda: (self.skip_round(), self.touch_rows(self.tq.sub(0), self.tq.sub(1))), wr=[self.tq, '@dma'], cost=24)
                if blk == 0 and j == 9:
                    d0 = t0 + o.get('d0', 19.0)
                    s.misc(d0, lambda: self.await_(C_F + 4, 4, True), wr=[self.tq, '@dma'], cost=40)
                    for R in range(2, 10):
                        s.vmem(d0 + o.get('dspan', 2.5) * (R - 2) / 8, lambda R=R: self.row_dma(R), rd=self.vX, wr=['@dma'], lat=0)
                if blk == 1 and j == 5:
                    s.misc(t, init_check, wr=u[2:])
                if blk == 1 and j == 3 and o.get('nt0', 0):
                    s.misc(t, lambda: self.touch_x(u[2], u[3]), wr=u[2:], cost=24)
        end = 48 + 2 * L + m1 + o.get('cd', 0.7)
        self.setprio(s, L + o.get('la', 7), 3)
        s.misc(24 + 2 * L + o.get('cd', 0.7), lambda: self.call_if(True, ["s_setprio 2"], "Lbk"), wr=['@prio'])
        self.setprio(s, end - o.get('q0', 3.0), 1)
        self.code_pf(s, [6, 16, 26, 30, 38, 48, 56])
        self.fine(s, range(0, 60), 'p1')
        self.T1 = end - m1
        flush(end, 10)
        t = [None, V(238), V(239), V(237), V(244), V(245)]
        pv = [V(128, 8), V(136, 8), V(112, 8), V(120, 8), V(216, 8)]

        def pub_addr():
            self.lane(t[3])
            p.valu("v_min_u32", t[3], 47, t[3])
            p.valu("v_lshlrev_b32", t[4], 5, t[3])
            p.valu("v_add_u32", t[4], R2 + TABO, t[4])
            p.valu("v_add_u32", t[5], 3072 - 768, t[4])
            p.valu("v_cmp_gt_u32", "vcc", 24, t[3])
            p.valu("v_cndmask_b32", t[4], t[5], t[4], "vcc")
            p.valu("v_lshlrev_b32", t[3], 13, t[3])
            p.valu("v_add_u32", t[5], 4096, t[3])
        s.misc(end - 4, pub_addr, wr=t[3:], cost=40)

        def publish():
            p.raw("s_setprio 3")
            self.ticket(t, 0, "Lnopub", pv)

            def rd(w, d):
                for k in range(2):
                    p.ds_read("ds_read_b128", d.sub(4 * k, 4), t[4], 9216 * w + 16 * k)

            def add(d, b):
                for i in range(8):
                    p.valu("v_add_f32", d.sub(i), d.sub(i), b.sub(i))
            for w in range(5):
                rd(w, pv[w])
            for w in range(1, 4):
                add(pv[0], pv[w])
                rd(4 + w, pv[w])
            for w in (4, 1, 2, 3):
                add(pv[0], pv[w])
            for i in range(8):
                p.valu("v_min_u32", pv[4].sub(i), -2, pv[0].sub(i))
            p.salu("s_lshl_b32", sT0, S(2), 4)
            p.buf_store("buffer_store_dwordx4", pv[4].sub(0, 4), t[3], sWS, sT0, flags="sc1")
            p.buf_store("buffer_store_dwordx4", pv[4].sub(4, 4), t[5], sWS, sT0, flags="sc1")
            p.ds_write("ds_write_b32", self.vCnt, t[1], C_PUB)
            p.raw("s_waitcnt lgkmcnt(0)")
            p.nop(2)
            p.cond_end()
            p.lines.append("Lnopub:")
            self.stamp(128)
        s.misc(end, publish, wr=t[1:] + pv + ['@sums', '@prio'], cost=60)

    def ticket(self, t, cnt, label, regs):
        p = self.p
        p.valu("v_mov_b32", t[1], 1)
        p.wait_all(vm=False)
        p.raw("s_mov_b64 exec, 1")
        p.raw(f"ds_add_rtn_u32 {t[2]}, {self.vCnt}, {t[1]} offset:{cnt}")
        p.raw("s_mov_b64 exec, -1")
        for v in regs:
            p._mem_issue([], list(v.regs()))
        p.raw("s_waitcnt lgkmcnt(0)")
        p.lgkm_seq += 1
        p.lgkm_done = p.lgkm_seq
        p.valu("v_readfirstlane_b32", sT0, t[2])
        p.salu("s_cmp_lg_u32", sT0, 7)
        p.raw(f"s_cbranch_scc1 {label}")
        p.cond_begin()

    def w2_fetch(self, f, addr):
        p = self.p
        k, T = divmod(f, 3)
        p.salu("s_add_u32", "m0", sPRIV, f * 1024)
        p.salu("s_add_u32", sT0, sW2B, k * 3072 + T * 64)
        self.w2_tok = p.dma(addr, sW2, sT0)

    def touch_x(self, a, b):
        p = self.p
        self.lane(b)
        p.valu("v_and_b32", a, 15, b)
        p.valu("v_min_u32", a, 11, a)
        p.valu("v_lshlrev_b32", a, 7, a)
        p.valu("v_lshrrev_b32", b, 4, b)
        p.valu("v_mul_u32_u24", b, 2 * ROWB, b)
        p.valu("v_add_u32", a, a, b)
        p.salu("s_mov_b32", "m0", LDS_BYTES)
        p.salu("s_cmp_lt_u32", sWAVE, 4)
        p.raw("s_cbranch_scc0 Lnotouch")
        p.cond_begin()
        for ti in range(2):
            p.raw(f"buffer_load_dword {a}, {sX}, {sTILE[ti]} offen lds")
            p.vm_seq += 1
        p.cond_end()
        p.lines.append("Lnotouch:")

    def poll_regs(self):
        rv = [V(128 + 4 * i, 4) for i in range(4)]
        tv = [V(128 + i) for i in range(6)]
        gv = [V(134 + i) for i in range(6)]
        t = [V(240 + i) for i in range(6)]
        return rv, tv, gv, t

    def poll_loads(self, p, reducer):
        rv, tv, gv, t = self.poll_regs()
        if reducer:
            p.salu("s_lshl_b32", sT1, S(2), 12)
            for i in range(4):
                p.buf_load("buffer_load_dwordx4", rv[i], t[5], sWS, sT1, 1024 * i, flags="sc1")
        else:
            p.salu("s_and_b32", sT1, S(2), 7)
            p.salu("s_lshl_b32", sT1, sT1, 11)
            p.salu("s_add_u32", sT1, sT1, WS_TOT)
            for i in range(6):
                p.buf_load("buffer_load_dword", tv[i], t[0], sWS, sT1, 256 * i, flags="sc1")

    def gamma_loads(self, p):
        rv, tv, gv, t = self.poll_regs()
        p.valu("v_lshrrev_b32", t[1], 1, t[0])
        for i in range(6):
            p.buf_load("buffer_load_ushort", gv[i], t[1], sGA, 0, 128 * i)

    def poll_routine(self):
        main, self.p = self.p, Prog()
        p = self.p
        rv, tv, gv, t = self.poll_regs()
        ret = f"s_setpc_b64 {sRET}"
        p.lines.append("Lpolln:")
        p.raw(f"s_getreg_b32 {sT0}, hwreg(HW_REG_IB_STS, 0, 4)")
        p.salu("s_cmp_eq_u32", sT0, 0)
        p.raw("s_cbranch_scc1 Lpoll")
        p.raw(ret)
        p.lines.append("Lpoll:")
        p.raw("s_waitcnt vmcnt(0)")
        p.salu("s_cmp_eq_u32", sROLE, 2)
        p.raw("s_cbranch_scc1 LpollC")
        allr = [rv[i].sub(k) for i in range(4) for k in range(4)]
        p.valu("v_max_u32", t[1], allr[0], allr[1])
        for i in range(2, 16, 2):
            p.valu("v_max3_u32", t[1], t[1], allr[i], allr[i + 1])
        p.valu("v_cmp_eq_u32", "vcc", -1, t[1])
        p.nop(5)
        p.raw("s_cbranch_vccz LpollR")
        self.poll_loads(p, True)
        p.raw(ret)
        self.p = p2 = Prog()
        p2.lines.append("LpollR:")
        for k in range(4):
            p2.valu("v_add_f32", rv[0].sub(k), rv[0].sub(k), rv[1].sub(k))
            p2.valu("v_add_f32", rv[3].sub(k), rv[2].sub(k), rv[3].sub(k))
            p2.valu("v_add_f32", rv[3].sub(k), rv[0].sub(k), rv[3].sub(k))
        for k in range(4):
            self.lane_sum64(rv[3].sub(k), t[1])
            p2.valu("v_min_u32", rv[3].sub(k), -2, rv[3].sub(k))
        p2.salu("s_lshl_b32", sT1, S(2), 4)
        p2.salu("s_add_u32", sT1, sT1, WS_TOT)
        p2.valu("v_lshlrev_b32", t[1], 9, t[0])
        p2.raw("s_mov_b64 exec, 0xff")
        p2.buf_store("buffer_store_dwordx4", rv[3], t[1], sWS, sT1, flags="sc1")
        p2.raw("s_mov_b64 exec, -1")
        p2.salu("s_mov_b32", sROLE, 2)
        self.poll_loads(p2, False)
        self.gamma_loads(p2)
        p2.raw(ret)
        self.p = p3 = Prog()
        p3.lines.append("LpollC:")
        p3.valu("v_max3_u32", t[1], tv[0], tv[1], tv[2])
        p3.valu("v_max3_u32", t[1], t[1], tv[3], tv[4])
        p3.valu("v_max_u32", t[1], t[1], tv[5])
        p3.valu("v_cmp_eq_u32", "vcc", -1, t[1])
        p3.nop(5)
        p3.raw("s_cbranch_vccz LpollS")
        self.poll_loads(p3, False)
        p3.raw(ret)
        self.p = p4 = Prog()
        p4.lines.append("LpollS:")
        p4.salu("s_mov_b32", sT0, f2u(1.0 / (GA * GA)))
        p4.valu("v_mov_b32", t[2], f2u(1e-6))
        for i in range(6):
            p4.valu("v_fma_f32", tv[i], tv[i], sT0, t[2])
            p4.valu("v_sqrt_f32", tv[i], tv[i])
            p4.valu("v_lshlrev_b32", gv[i], 16, gv[i])
        p4.valu("v_add_f32", t[3], tv[0], tv[1])
        for i in range(2, 6):
            p4.valu("v_add_f32", t[3], t[3], tv[i])
        self.lane_sum64(t[3], t[1])
        p4.salu("s_mov_b32", sT0, f2u(1.0 / 384))
        p4.valu("v_fma_f32", t[3], t[3], sT0, t[2])
        p4.valu("v_rcp_f32", t[3], t[3])
        for i in range(6):
            p4.valu("v_mul_f32", tv[i], tv[i], t[3])
            p4.valu("v_fma_f32", tv[i], tv[i], gv[i], "1.0")
            p4.valu("v_mul_f32", tv[i], f2u(1.0 / GA), tv[i])
        p4.salu("s_mov_b32", sROLE, 0)
        p4.nop(2)
        p4.raw(ret)
        self.p = main
        for q in (p, p2, p3, p4):
            main.lines += q.lines

    def poll_point(self, k):
        p = self.p
        p.salu("s_cmp_eq_u32", sROLE, 0)
        p.raw(f"s_cbranch_scc1 Lpp{k}")
        p.cond_begin()
        p.raw(f"s_call_b64 {sRET}, {'Lpolln' if self.o.get('nb', 1) else 'Lpoll'}")
        p.cond_end()
        p.lines.append(f"Lpp{k}:")

    def spin_guard(self, exit_label):
        p = self.p
        p.salu("s_cmp_eq_u32", sCNT, 0)
        p.salu("s_cbranch_scc1", exit_label)
        p.salu("s_sub_u32", sCNT, sCNT, 1)

    def gap(self):
        p, o, s = self.p, self.o, self.s
        rv, tv, gv, t = self.poll_regs()
        self.pollr = pollr = [V(128, 16), t[0], t[1], t[2], t[3], t[5], '@poll']
        T1 = self.T1
        g8 = t[4]

        def role():
            p.salu("s_mov_b32", sROLE, 0)
            p.valu("v_bfe_u32", g8, self.vA[0], 8, 2)
            p.valu("v_lshlrev_b32", g8, 3, g8)
            p.salu("s_cmp_lg_u32", sWAVE, 0)
            p.raw("s_cbranch_scc1 Lnorole")
            p.cond_begin()
            p.valu("v_subrev_u32", t[5], W1F, self.vA[0])
            p.valu("v_lshrrev_b32", t[0], 2, t[5])
            p.salu("s_cmp_lt_u32", S(2), 96)
            p.salu("s_cselect_b32", sROLE, 1, 2)
            p.raw("s_cbranch_scc1 Lred")
            self.poll_loads(p, False)
            self.gamma_loads(p)
            p.raw("s_branch Lnorole")
            p.lines.append("Lred:")
            self.poll_loads(p, True)
            p.cond_end()
            p.lines.append("Lnorole:")
            for r in range(128, 144):
                p.p_vm[r] = None
            p.raw("s_setprio 0")
        tp = s.misc(T1, role, wr=pollr + [g8, '@prio'], cost=10).t
        nl = self.pattern('nlg', '5')
        Y = self.Y1[3:]
        NG = len(self.todo)
        self.npoll = 0
        for n, j in enumerate(self.todo):
            tg = T1 + 2.1 + n
            self.gemm1(s, tg - (0.6 if n > 1 else 1.1), j, self.LN[3], Y[n % 2], True, self.ring1, span=0.5 if n > 1 else 1.0)
            self.gelu32(s, tg, Y[n % 2], nl[n % len(nl)], self.blk3[j])
        tw = tp + o.get('gb', 1.5)
        tq = V(248, 2) if not o.get('fine') else V(238, 2)
        s.misc(tw, lambda: self.await_(C_PUB, 1, tq=tq), rd=['@sums'], wr=['@tab', tq], cost=40)
        for k in (5, 8):
            s.vmem(tw, lambda k=k: self.w2_fetch(k, self.vW2), rd=['@tab', self.vW2], wr=['@w2raw'], lat=1200)
        if o.get('g1s', 1):
            for ti in (2, 1):
                self.ln16(s, T1 + 2, self.LN[ti])
        ta = T1 + 1.6 + NG
        tb = self.TB = ta + o.get('tb', 2.0)
        Yf = Y[NG % 2]
        self.Yr = Y[(NG + 1) % 2]
        fr = self.fr = [V(72 + 4 * k, 4) for k in range(6)] + [Yf.sub(4 * k, 4) for k in range(3)]
        bf = [V(176 + 2 * k, 2) for k in range(3)]
        u = self.u = [V(186 + i) for i in range(6)] + [Yf.sub(12 + i) for i in range(4)]
        lane, vWR = u[4], u[7:10]
        self.vH = [V(248), V(249) if not o.get('fine') else V(248)]

        def beta_loads():
            p.salu("s_mul_i32", sT0, sWAVE, 96)
            for k in range(3):
                p.buf_load("buffer_load_dwordx2", bf[k], g8, sBE, sT0, k * 32)
        s.vmem(ta, beta_loads, rd=[g8], wr=bf, lat=800)

        def addr():
            self.lane(lane)
            p.valu("v_lshl_add_u32", u[0], lane, 4, sPRIV)
            for k in range(3):
                p.salu("s_mul_i32", sT0, sWAVE, 3)
                p.salu("s_add_u32", sT0, sT0, k)
                p.salu("s_and_b32", sT1, sT0, 1)
                p.salu("s_mul_i32", sT1, sT1, 3072 - 8)
                p.salu("s_mul_i32", sT0, sT0, 3072)
                p.salu("s_sub_u32", sT0, sT0, sT1)
                p.salu("s_add_u32", sT0, sT0, R2)
                p.valu("v_lshl_add_u32", vWR[k], lane, 4, sT0)
            p.valu("v_lshl_add_u32", u[1], g8, 2, sPRIV)
            p.valu("v_and_b32", u[3], 3, lane)
            for bit, sh in ((2, 3), (3, 2), (4, 6), (5, 5)):
                p.valu("v_bfe_u32", u[5], lane, bit, 1)
                p.valu("v_lshl_add_u32", u[3], u[5], sh, u[3])
            p.valu("v_lshlrev_b32", u[3], 4, u[3])
            for i in range(2):
                p.valu("v_add_u32", self.vH[i], W1F + 36 * 1024 * i, u[3])
            p.valu("v_min_u32", u[3], 11, lane)
            p.salu("s_mul_i32", sT0, sWAVE, 12)
            p.valu("v_add_u32", u[3], sT0, u[3])
            p.valu("v_cmp_gt_u32", "vcc", 64, u[3])
            p.valu("v_lshlrev_b32", u[3], 2, u[3])
            p.valu("v_add_u32", u[6], R2 + SCO + 128, u[3])
            p.valu("v_add_u32", u[5], HOLE[1], u[3])
            p.valu("v_add_u32", u[3], HOLE[0] - 256, u[3])
            p.valu("v_cndmask_b32", u[3], u[3], u[5], "vcc")
            p.valu("v_add_u32", u[2], sPRIV, g8)
        s.misc(ta, addr, rd=[g8], wr=u + self.vH, cost=130)
        s.misc(T1 + 1.5, lambda: p.wait(vm=self.w2_tok0), rd=['@w2t0'], wr=['@w2ok0'])
        s.misc(ta + 1.1, lambda: p.wait(vm=self.w2_tok), rd=['@w2raw'], wr=['@w2ok1'])
        for k in (0, 3, 6, 1, 4, 7, 2, 5, 8):
            for y in range(2):
                s.ds_read(ta + 0.3 * (k % 3), "ds_read_b64_tr_b16", fr[k].sub(2 * y, 2), u[0], k * 1024 + y * 8, rd=['@w2ok%d' % (k in (5, 8))])
        bacc = V(120, 8)

        def partial(T):
            p._mem_issue(list(bacc.regs()) + list(fr[3].regs()), [])
            p.salu("s_mov_b32", "exec_lo", 0x00010001)
            p.salu("s_mov_b32", "exec_hi", 0x00010001)
            for y in range(2):
                p.ds_write("ds_write_b128", u[1], bacc.sub(4 * y, 4), SCO + 128 + T * 128 + y * 16)
            p.raw("s_mov_b64 exec, -1")
        for T in range(3):
            tt = ta + 0.3 + 0.5 * T
            for k in range(3):
                for y in range(2):
                    d = bacc.sub(4 * y, 4)
                    s.mfma(tt, d, fr[k * 3 + T].sub(2 * y, 2), bf[k], d if k else 0)
            s.misc(tt + 0.25, lambda T=T: partial(T), rd=[bacc, u[1], fr[3], '@ba'], cost=10)
            for k in range(3):
                f = fr[k * 3 + T]
                for i in range(4):
                    w = V(182 + 2 * (i % 2), 2)
                    tc = tt + 0.05 + 0.04 * (4 * k + i)
                    s.valu(tc, "v_lshlrev_b32", w.sub(0), 16, f.sub(i))
                    s.valu(tc, "v_and_b32", w.sub(1), 0xFFFF0000, f.sub(i))
                    s.valu(tc, "v_cvt_pk_f16_f32", f.sub(i), w.sub(0), w.sub(1), rd=['@ba'])
        k = tp + 0.8
        while k < tb:
            self.poll_op(k)
            k += o.get('pi', 0.3)
        self.prio_steps(s, tp + o.get('gp', 2.0), tb)
        self.code_pf(s, [T1 + 2, tb - 1])
        self.fine(s, [T1 - 2 + 0.5 * k for k in range(40)], 'mid')

        def ba():
            self.stamp(120)
            p.wait_all(vm=False)
            p.barrier()
            p.raw("s_setprio 2")
        s.misc(tb, ba, wr=['@ba', '@prio', '@bar'] + ([bacc] if o.get('stamps') else []))
        bs = [V(176 + i) for i in range(8)]
        for k in range(8):
            s.ds_read(tb, "ds_read_b32", bs[k], u[6], 9216 * k, rd=['@ba'])
        for k in range(1, 8):
            s.valu(tb, "v_add_f32", bs[0], bs[0], bs[k])
        s.ds_write(tb, "ds_write_b32", u[3], bs[0], rd=['@b4'])

    def poll_op(self, t):
        self.npoll += 1
        self.s.misc(t, lambda k=self.npoll: self.poll_point(k), wr=self.pollr)

    def fold(self, t):
        p, o, s, u, fr = self.p, self.o, self.s, self.u, self.fr
        rv, tv, gv, _ = self.poll_regs()
        lane, vWR = u[4], u[7:10]
        ad = [V(176 + i) for i in range(6)]

        def b4():
            p._mem_issue([], [r.b for r in ad])
            p.salu("s_cmp_lg_u32", sWAVE, 0)
            p.raw("s_cbranch_scc1 Lspinx")
            p.cond_begin()
            p.raw("s_setprio 3")
            for i, a in enumerate(ad):
                p.valu("v_add_u32", a, 64 * i, lane)
                p.valu("v_mul_u32_u24", u[5], 1366, a)
                p.valu("v_lshrrev_b32", u[5], 16, u[5])
                p.valu("v_mul_u32_u24", u[5], 9216 - 96, u[5])
                p.valu("v_lshl_add_u32", a, a, 1, u[5])
                p.valu("v_add_u32", a, R2 + SCO, a)
            p.lines.append("Lspin:")
            p.salu("s_cmp_eq_u32", sROLE, 0)
            p.raw("s_cbranch_scc1 Lspiny")
            self.spin_guard("Lspiny")
            p.raw(f"s_call_b64 {sRET}, Lpoll")
            p.raw("s_branch Lspin")
            p.lines.append("Lspiny:")
            for i in range(6):
                p.valu("v_cvt_f16_f32", tv[i], tv[i])
                p.ds_write("ds_write_b16", ad[i], tv[i])
            p.raw("s_waitcnt lgkmcnt(0)")
            p.cond_end()
            p.lines.append("Lspinx:")
            p.wait_all(vm=False)
            self.stamp(176)
            p.barrier()
            self.stamp(176)
        s.misc(t, b4, rd=[lane, '@ba'], wr=self.pollr + ad + [u[5], '@b4', '@bar', '@prio'], cost=20)
        sc = [V(176 + 2 * k, 2) for k in range(3)]
        for k in range(3):
            s.ds_read(t, "ds_read_b64", sc[k], u[2], SCO + 32 * k, rd=['@b4'])
        s.misc(t, lambda: p._mem_deps([r for v in sc for r in v.regs()]), rd=sc, wr=['@sc'])
        for k in range(3):
            for T in range(3):
                f = fr[k * 3 + T]
                for i in range(4):
                    s.valu(t, "v_pk_mul_f16", f.sub(i), f.sub(i), sc[k].sub(i & 1))
                    if o.get('tw', 1):
                        s.valu(t, "v_add_u32", f.sub(i), 0x00040004, f.sub(i))
                        s.valu(t, "v_and_b32", f.sub(i), sM, f.sub(i))
                for y in range(2):
                    s.ds_write(t, "ds_write_b64", vWR[k], f.sub(2 * y, 2), (3 * y + T) * 1024, rd=['@sc', '@w2'])

        def b5():
            p.wait_all(vm=False)
            p.barrier()
            self.stamp(176)
        s.misc(t + o.get('tf', 0.5), b5, wr=['@w2', '@bar'] + (sc if o.get('stamps') else []))

    def ln16(self, s, t, ln):
        for u in range(3):
            for i in range(4):
                s.swap(t, 16, ln.sub(8 * u + i), ln.sub(8 * u + 4 + i))

    def piece(self, k):
        return divmod(k, 3) if self.o.get('lo', 1) else (k % 2, k // 2)

    def load_x1(self, dst, ti, k):
        r, T = self.piece(k)
        if 'x' in self.o.get('x_no', ''):
            return
        self.p.buf_load("buffer_load_dwordx4", dst, self.vG, sX, sTILE[ti], 64 * T + 192 * r, flags=self.o.get('xlf', ''))

    def store1(self, src, ti, k):
        r, T = self.piece(k)
        if 'o' in self.o.get('x_no', '') and ti:
            return
        self.p.buf_store("buffer_store_dwordx4", src, self.vG, sOUT, sTILE[ti], 64 * T + 192 * r, flags=self.o.get('osf', 'sc1'))

    def phase2(self):
        p, o, s = self.p, self.o, self.s
        aq = [V(b, 4) for b in (72, 76, 80, 84, 88, 92, 128, 132, 136, 140, 240, 244)]
        ACC = {(T, v, y): aq[6 * (1 - v) + 2 * T + y] for T in range(3) for v in range(2) for y in range(2)}
        ring = self.ring1 + [V(120, 4), V(124, 4)]
        ra = o.get('ra', 1)
        P0 = self.TB + 0.1
        F0 = (o.get('rt', 2.2) if ra else 0.0)
        G0 = F0 + o.get('tf', 0.5) + 0.05
        E0 = G0 - ra
        nl = self.pattern('nl2', '6')
        g1s = o.get('g1s', 1)
        ents = [(3, j, None) for j, _ in self.fifo]
        seq = []
        for ti in (2, 1, 0):
            rec = [j for j in range(12) if j not in self.sp[ti]]
            pos = {int((n + 0.5) * 11 / len(self.sp[ti])): j for n, j in enumerate(self.sp[ti])}
            for n in range(12):
                if n in pos:
                    ents.append((ti, pos[n], None))
                else:
                    ents.append((ti, rec[0], len(seq)))
                    seq.append((ti, rec.pop(0), len(ents) - 1))
        NE = len(seq)
        entry = {q: b for q, (_, b) in enumerate(self.fifo)}
        b0 = o.get('b0', 7)
        bt = o.get('bt', 2.4)
        tend = NE + o.get('lag', 1.6)
        g2 = o.get('g2', 1.15)

        te = lambda e: P0 + (E0 + e if e >= ra else e)
        lb = {q: te(e) + tend - (NE - 1) for q, (_, _, e) in enumerate(ents) if e is not None}
        tt = [P0 + G0 + bt * q / b0 for q in range(b0 + 1)]
        while len(tt) < 48:
            q0 = len(tt) - 1
            sl, q1 = max(((lb[q] - tt[q0]) / (q - q0), q) for q in lb if q > q0)
            tt += [tt[q0] + sl * (q - q0) for q in range(q0 + 1, q1 + 1)]
        tt.append(tt[-1] + 0.6)
        tq = tt.__getitem__
        Ys = [self.Yr, V(304 - self.Yr.b, 16), V(0, 16)]
        pool = []
        idf = V(16, 8)
        events = [(P0 + F0, 3, 0, 0)]
        for q in range(48):
            for k in range(7):
                events.append((tq(q) + (tq(q + 1) - tq(q)) * min(k, 5.9) / 6, 2, q, k))
        for e in range(NE):
            for k in range(6):
                events.append((te(e) + k / 6, 0, e, k))
            events.append((max(te(e) + g2 + 0.9, tq(4 + min(e, 40)) if e < 3 else 0), 1, e, 0))
        xq = [int(c, 16) for c in str(o.get('xq', '9ab'))]
        want = [(tq(12 * n + j) - o.get('xlead', 5.0), 'x', 12 * n + j) for n in range(4) for j in xq]
        want += [(tq(q) - o.get('slead', 4.0), 's', q) for q in range(12, 48) if ents[q][2] is None]
        want.sort()
        xbuf = {}
        events.sort()
        lns = {2: self.LN[2], 1: self.LN[1], 0: self.LN[2]}
        first = {ti: min(e for e, x in enumerate(seq) if x[0] == ti) for ti in (2, 1, 0)}
        busy = set(r for _, v in self.fifo for r in v.regs())

        def bias(T, t):
            for v in range(1):
                for y in range(2):
                    s.ds_read(t, "ds_read_b128", ACC[T, v, y], self.vBias, (0x2000 + 128 * T if T < 2 else 0) + y * 16, rd=['@b4'])

        def wread(t, addr, off, rg=ring, rd=()):
            w = self.ring(rg)
            s.ds_read(t - o.get('lead', 0.8), "ds_read_b128", w, addr, off, rd=rd)
            return w

        def reload(f, dst):
            if 'l' in o.get('x_no', ''):
                return lambda: None
            return lambda: self.ws_frag(f, lambda so: p.buf_load("buffer_load_dwordx4", dst, self.vA[0], sWS, so, flags=o.get('rlf', '')))

        small = ring[4:]
        back = []
        for t, kind, i, k in events:
            while back and back[0][0] <= t:
                pool.append(back.pop(0)[1])
            while want and want[0][0] <= t and len(pool) > o.get('xres', 1):
                _, what, q = want.pop(0)
                x = pool.pop(0)
                (xbuf if what == 'x' else entry)[q] = x
                if o.get('show'):
                    print(f'{what} load for {q} at {t - P0:.1f}, use at {tq(q + (what == "x")) - P0:.1f}', end='; ')
                for r in range(2):
                    d = x.sub(4 * r, 4)
                    fn = (lambda d=d, r=r, q=q: self.load_x1(d, ents[q][0], 2 * xq.index(q % 12) + r)) if what == 'x' else \
                        reload(self.spi[ents[q][:2]] + r, d)
                    s.vmem(t + o.get('xg', 0.0) * r, fn, wr=[d], lat=o.get('xlat', 2000))
            if kind == 3:
                for k in range(int(F0 / o.get('pi', 0.3))):
                    self.poll_op(P0 + o.get('pi', 0.3) * k)
                self.fold(t)
                for T in range(3):
                    bias(T, t + 0.3)
                continue
            if kind == 0:
                e = i
                ti, j, _ = seq[e]
                y = Ys[e % 3]
                if k == 0:
                    assert not busy & set(y.regs()), e
                    busy |= set(y.regs())
                if e == first[0] and k == 0:
                    pool += [self.LN[1].sub(8 * f, 8) for f in range(3)]
                    for f in range(6):
                        d = self.LN[2].sub(4 * f, 4)
                        s.vmem(te(first[1]) + o.get('rl0', 0.5) + o.get('rl', 0.7) * f, reload(f, d), wr=[d])
                    if g1s:
                        self.ln16(s, t - 1.0, self.LN[2])
                if g1s:
                    z, u = divmod(k, 3)
                    w = wread(t, self.vH[j // 6], ((j % 6) * 6 + 2 * u) * 1024 + 256 * z, small if e < ra else ring)
                    for v in range(2):
                        d = y.sub(8 * v + 4 * z, 4)
                        s.mfma(t + v / 12, d, w, lns[ti].sub(8 * u + 4 * v, 4), d if u else 0)
                else:
                    s.mfma(t, y, wread(t, *self.frag(j * 6 + k), small if e < ra else ring), lns[ti].sub(4 * k, 4), y if k else 0)
                continue
            if kind == 1:
                e = i
                bl = entry[seq[e][2]] = pool.pop(0)
                if g1s:
                    self.gelu(s, te(e) + g2, Ys[e % 3], int(o.get('nlr', 5)) if e < ra else nl[e % len(nl)], dst=[bl.sub(m) for m in range(8)])
                else:
                    self.gelu32(s, te(e) + g2, Ys[e % 3], nl[e % len(nl)], bl)
                busy -= set(Ys[e % 3].regs())
                continue
            q = i
            ti, j, _ = ents[q]
            n = q % 12
            if k < 6:
                T, y = divmod(k, 2)
                w = wread(t, *self.frag(72 + (2 * j + y) * 3 + T), rd=['@w2'])
                for v in (1, 0):
                    d = ACC[T, v, y]
                    s.mfma(t + (1 - v) * (tq(q + 1) - tq(q)) / 12, d, w, entry[q].sub(4 * v, 4), d if n else ACC[T, 0, y], 'f16')
                continue
            busy -= set(entry[q].regs())
            if q > 2:
                pool.append(entry[q])
            if n in xq:
                T = xq.index(n)
                x = xbuf[q]
                pool.append(x)
                if T == 0:
                    for m in range(6):
                        if m in (2, 3):
                            s.valu(t - 0.5, "v_cndmask_b32", idf.sub(m), 0, self.vI, sIX[m - 2])
                        else:
                            s.valu(t - 0.5, "v_mov_b32", idf.sub(m), 0)
                for m in range(2):
                    v, T1 = self.piece(2 * T + m)
                    for y in range(2):
                        d = ACC[T1, v, y]
                        s.mfma(t, d, idf.sub(2 - 2 * y, 4), x.sub(4 * m, 4), d)
            if n == 11:
                sg, sp = (o.get('sg', 1.6), o.get('sp', 0.0)) if ti else (0.0, 0.0)
                st = [pool.pop(0), pool.pop(0), idf]
                for T in range(3):
                    tt = t + 0.05 * T - 0.3
                    for m in range(6):
                        v, T1 = self.piece(m)
                        if T1 == T:
                            for i in range(4):
                                s.valu(tt, "v_cvt_pk_bf16_f32", st[m // 2].sub(4 * (m % 2) + i), ACC[T, v, i >> 1].sub(2 * (i & 1)), ACC[T, v, i >> 1].sub(2 * (i & 1) + 1))
                    if ti:
                        bias(T, tt)
                for m in range(6):
                    d = st[m // 2].sub(4 * (m % 2), 4)
                    s.vmem(t + 0.1 + sg * (m // 2) + sp * (m % 2), lambda d=d, m=m, ti=ti: self.store1(d, ti, m), rd=[d], lat=0)
                back += [(t + 0.1 + sg * m + sp, st[m]) for m in range(2)]
        pe = o.get('pe', 0)
        self.prio_steps(s, P0 + G0, tq(48) + 0.4 - pe, 'pp2')
        for k, f in enumerate((1.0, 0.55, 0.25, 0.1) if pe else ()):
            self.setprio(s, tq(48) + 0.4 - pe * f, 3 - k)
        self.code_pf(s, [te(e) for e in range(1, NE - 10, 7)])
        self.fine(s, [te(e) for e in range(1, NE + 2)], 'p2')
        s.run(tag='all')
        for tag in ('p1', 'mid', 'p2'):
            self.fine_flush(tag)
        if o.get('fine') == 'su':
            self.nfine += 2
            self.fine_flush('su')
        self.stamp(168)

    def build(self):
        self.alloc()
        self.vW1g, self.vW1r, self.vW1w = V(115), V(116), V(117)
        self.prologue()
        self.phase1()
        self.gap()
        self.phase2()
        self.p.raw("s_endpgm")
        self.poll_routine()
        self.p.lines.append("Lend:")
        self.p.raw("s_endpgm")
        return self.p


HEADER = open('standalone__modern_conv_block_convnext_v2__vision.s.ref').read().split('; Override launch')[0]


def wrap(p):
    return f"""{HEADER}; Generated by gen/gen5.py (hand-written generator; see gen/asmgen.py, gen/sched.py)
; @launch grid=(256,1,1) block=(512,1,1) lds={LDS_BYTES}
.amdgcn_target "amdgcn-amd-amdhsa--gfx950"
.text
.globl {NAME}
.p2align 8
.type {NAME},@function
{NAME}:
{p.text()}
.section .rodata,"a"
.p2align 6
.amdhsa_kernel {NAME}
  .amdhsa_next_free_vgpr 256
  .amdhsa_next_free_sgpr 102
  .amdhsa_accum_offset 256
  .amdhsa_group_segment_fixed_size 0
  .amdhsa_kernarg_size 72
  .amdhsa_user_sgpr_count 2
  .amdhsa_user_sgpr_kernarg_segment_ptr 1
  .amdhsa_system_sgpr_workgroup_id_x 1
.end_amdhsa_kernel
"""


def parse(args):
    opt = {}
    for a in args:
        k, v = a.split('=')
        if k.startswith(('nl', 'keep', 'sp0', 'sp1', 'xq')):
            opt[k] = v
            continue
        try:
            opt[k] = int(v)
        except ValueError:
            try:
                opt[k] = float(v)
            except ValueError:
                opt[k] = v
    return opt


if __name__ == '__main__':
    out = sys.argv[1]
    opt = parse(sys.argv[2:])
    g = Gen(opt)
    p = g.build()
    from align import align_dp
    al = align_dp(p.lines)
    open(out, 'w').write(wrap(p))
    print(out, 'align', al, 'instructions', sum(p.stats.values()), 'stamps', g.nstamp,
          {k: v for k, v in p.stats.items() if k in ('s_nop', 's_waitcnt', 'ds_read_b128', 'ds_read_u16')})
```

```python
import math
import struct
import sys

from asmgen import *
from sched import Sched

NAME = 'standalone__modern_conv_block_convnext_v2__vision_kernel'


def f2u(x):
    return struct.unpack('<I', struct.pack('<f', x))[0]


def h2u(x):
    return struct.unpack('<H', struct.pack('<e', x))[0]


C2 = -2 * math.sqrt(2 / math.pi) * math.log2(math.e)
C1 = C2 * 0.044715
GA = -(abs(C1) ** (1.0 / 3.0))
GK = C2 / GA

HOLE = (0x1F00, 0x3F00)
W1F = 16384
R2 = W1F + 73728
RS = 6592
DIAG = R2 + 10 * RS
CNT = HOLE[0] + 192
C_PUB, C_W1A, C_W1B, C_F, C_T2 = 4, 8, 12, 16, 32
SCO = 3072
TABO = 5120
LDS_BYTES = 163840
WS_P = 0
WS_TOT = 96 * 256 * 16
WS_STAMP = 1 << 20
WS_LN = 4 << 20
WS_BYTES = 80 << 20
OOB_V = 0x80000000
OOB_S = 0x40000000
X_BYTES = 512 * 512 * 96 * 2
ROWB = 512 * 192
LO = "dst_sel:WORD_0 dst_unused:UNUSED_PRESERVE src0_sel:WORD_0"
HI = "dst_sel:WORD_1 dst_unused:UNUSED_PRESERVE src0_sel:WORD_1"

sX, sOUT, sW1, sW2, sDW, sGA, sBE, sWS, sDBG = [S(4 + 4 * i, 4) for i in range(9)]
sWAVE, sX0, sY0, sT0, sT1, sT2, sT3 = [S(40 + i) for i in range(7)]
sK, sM = S(48), S(49)
sID = [S(50 + 2 * i, 2) for i in range(8)]
sIX = [S(88, 2), S(90, 2)]
sD4 = [S(92, 2), S(94, 2)]
sYB, sXM = S(66), S(67)
sTILE = [S(68 + i) for i in range(4)]
sPRIV = S(72)
sSTAMP = S(73)
sEX = S(74, 2)
sCNT = S(76)
sROLE = S(77)
sRET = S(78, 2)
sLNB, sSL, sW2B, sFC = S(80), S(81), S(82), S(83)
sLD = S(80, 16)
sTM = S(96, 2)
sRT = S(98, 2)


class Gen:
    def __init__(self, opt):
        self.o = opt
        self.p = Prog()
        self.p.rawpad, self.p.warpad = opt.get('rawpad', 0), opt.get('warpad', 0)
        self.nstamp = 0
        self.rc = {}

    def stamp(self, tb):
        p = self.p
        if self.o.get('dbgs'):
            self.nstamp += 1
            reg = {3: 84, 4: 85, 8: 86, 9: 87}.get(self.nstamp)
            if reg:
                p.raw(f"s_memrealtime {sRT}")
                p.raw("s_waitcnt lgkmcnt(0)")
                p.lgkm_done = p.lgkm_seq
                p.salu("s_mov_b32", S(reg), sRT.sub(0))
            if self.nstamp == 9:
                p.salu("s_cmp_lg_u32", sWAVE, 7)
                p.raw("s_cbranch_scc1 Ldbgx")
                p.salu("s_mul_i32", sT0, S(2), 1285)
                p.salu("s_add_u32", sT0, sT0, 1284)
                p.salu("s_lshr_b32", sT0, sT0, 16)
                p.salu("s_mul_i32", sT1, sT0, 51)
                p.salu("s_cmp_lg_u32", sT1, S(2))
                p.raw("s_cbranch_scc1 Ldbgx")
                p.salu("s_mul_i32", sT0, sT0, 12)
                p.valu("v_mov_b32", V(0), 4)
                for i in range(3):
                    p.salu("s_sub_u32", sT1, S(85 + i), S(100))
                    p.valu("v_mov_b32", V(2 + i), sT1)
                p.raw("s_mov_b64 exec, 1")
                p.raw(f"buffer_store_dwordx3 v[2:4], v0, {sDBG}, {sT0} offen")
                p.lines.append("Ldbgx:")
            return
        if not self.o.get('stamps'):
            return
        t = V(tb, 4)
        p.raw(f"s_memtime {sTM}")
        p.raw(f"s_memrealtime {sRT}")
        p.raw("s_waitcnt lgkmcnt(0)")
        p.lgkm_done = p.lgkm_seq
        for i in range(4):
            p.valu("v_mov_b32", t.sub(i), S(sTM.b + i))
        p.salu("s_sub_u32", sT0, sSTAMP, W1F)
        if self.o.get('dbgt'):
            p.valu("v_mov_b32", t.sub(0), 0)
        p.raw("s_mov_b64 exec, 1")
        if self.o.get('dbgt'):
            p.buf_store("buffer_atomic_umax", t.sub(2), t.sub(0), sDBG, 0, 8 + 4 * self.nstamp)
        else:
            p.buf_store("buffer_store_dwordx4", t, self.vA[0], sWS, sT0, 16 * self.nstamp)
        p.raw("s_mov_b64 exec, -1")
        p.nop(2)
        self.nstamp += 1

    def fine(self, s, times, tag):
        if self.o.get('fine') != tag:
            return
        p = self.p

        def one(k):
            if k:
                p.raw(f"v_writelane_b32 v249, s{84 + 2 * ((k - 1) % 2)}, {k - 1}")
            p.raw(f"s_memtime s[{84 + 2 * (k % 2)}:{85 + 2 * (k % 2)}]")
        for k, t in enumerate(times):
            s.misc(t, lambda k=k: one(k), wr=['@fine'])
        self.nfine = len(times)

    def mark(self):
        if self.o.get('fine') != 'su':
            return
        k = self.nfine = getattr(self, 'nfine', -1) + 1
        self.p.raw("s_memtime s[100:101]")
        self.p.raw("s_waitcnt lgkmcnt(0)")
        self.p.raw(f"v_writelane_b32 v249, s100, {k}")

    def fine_flush(self, tag):
        if self.o.get('fine') != tag:
            return
        p, k = self.p, self.nfine
        p.raw(f"s_memtime s[{84 + 2 * (k % 2)}:{85 + 2 * (k % 2)}]")
        p.raw("s_waitcnt lgkmcnt(0)")
        for i in (k - 1, k):
            p.raw(f"v_writelane_b32 v249, s{84 + 2 * (i % 2)}, {i}")
        p.salu("s_lshl_b32", sT0, S(2), 3)
        p.salu("s_add_u32", sT0, sT0, sWAVE)
        p.salu("s_lshl_b32", sT0, sT0, 10)
        p.salu("s_add_u32", sT0, sT0, (2 << 20) - W1F)
        p.buf_store("buffer_store_dword", V(249), self.vA[0], sWS, sT0)

    def frag(self, idx):
        return self.vA[idx >> 6], (idx & 63) * 1024

    def ring(self, rg):
        k = self.rc.get(id(rg), 0)
        self.rc[id(rg)] = k + 1
        return rg[k % len(rg)]

    def srd(self, d, ptr, nbytes):
        p = self.p
        p.salu("s_mov_b32", d.sub(0), ptr.sub(0))
        p.salu("s_and_b32", d.sub(1), ptr.sub(1), 0xFFFF)
        p.salu("s_mov_b32", d.sub(2), nbytes)
        p.salu("s_mov_b32", d.sub(3), 0x20000)

    def lane_sum64(self, v, t):
        p = self.p
        for r in (8, 4, 2, 1):
            p.valu("v_add_f32_dpp", v, v, v, mods=f"row_ror:{r} row_mask:0xf bank_mask:0xf")
        p.valu("v_mov_b32", t, v)
        p.swap16(v, t)
        p.valu("v_add_f32", v, v, t)
        p.valu("v_mov_b32", t, v)
        p.swap32(v, t)
        p.valu("v_add_f32", v, v, t)

    def lane(self, dst):
        self.p.valu("v_bfe_u32", dst, self.vA[0], 4, 6)

    def call_if(self, older, names, tag):
        p = self.p
        p.salu("s_cmp_lt_u32" if older else "s_cmp_ge_u32", sWAVE, 4)
        p.raw(f"s_cbranch_scc0 {tag}")
        p.cond_begin()
        for n in names:
            p.raw(n if n.startswith("s_") else f"s_call_b64 {sRET}, {n}")
        p.cond_end()
        p.lines.append(f"{tag}:")

    def alloc(self):
        self.LN = [V(24 * t, 24) for t in range(4)]
        self.CA = [V(0, 48), V(48, 48), V(48, 48), V(96, 48)]
        self.Y1 = [V(96 + 16 * i, 16) for i in range(self.o.get('ny', 5))]
        self.ring1 = [V(176 + 4 * i, 4) for i in range(4)]
        self.ringA = [V(192 + 4 * i, 4) for i in range(5)]
        self.ringB = [V(144 + 4 * i, 4) for i in range(8)]
        self.vB = [V(212 + i) for i in range(4)]
        self.ls = [[V(240, 2), V(242, 2), V(244, 2)], [V(216, 2), V(218, 2), V(220, 2)]]
        self.tq = V(222, 2)
        self.SQ = [V(224 + i) for i in range(12)]
        self.vX, self.vC = [V(236), V(237)], [V(238), V(239)]
        self.vB0, self.vCnt, self.vS = V(246), V(247), V(248)
        self.vA = [V(250), V(251), V(252)]
        self.vG, self.vBias, self.vI = V(253), V(254), V(255)
        hexs = lambda k, d: [int(c, 16) for c in str(self.o.get(k, d)) if c != 'n']
        self.keep = hexs('keep', '2345678ab')
        self.sp = {0: hexs('sp0', 'n'), 1: hexs('sp1', 'n'), 2: [], 3: []}
        self.spi = {(ti, j): 6 + 2 * n for n, (ti, j) in enumerate((ti, j) for ti in (0, 1) for j in self.sp[ti])}
        fifo = [0, 8, 16, 96, 104, 192, 200, 208, 224, 112, 216, 232]
        late = {j: b for j, b in ((10, 96), (11, 104)) if j in self.keep}
        rest = [j for j in self.keep if j not in late]
        assert len(rest) <= 6 or (len(rest) == 7 and rest[6] >= 8)
        late.update(zip(rest, [0, 8, 16, 192, 200, 208, 224]))
        self.todo = [j for j in range(12) if j not in self.keep]
        col = {b: j for j, b in late.items()}
        col.update(zip([b for b in fifo if b not in col], self.todo))
        self.fifo = [(col[b], V(b, 8)) for b in fifo]
        self.blk3 = {j: b for j, b in self.fifo}
        self.vW2 = V(246)

    def signal(self, off, dyn=False):
        p = self.p
        a, b = self.tq.sub(0), self.tq.sub(1)
        p.valu("v_mov_b32", b, 1)
        if dyn:
            p.valu("v_add_u32", a, sFC, self.vCnt)
        p.wait_all(vm=False)
        p.raw("s_mov_b64 exec, 1")
        p.ds_write("ds_add_u32", a if dyn else self.vCnt, b, off)
        p.raw("s_mov_b64 exec, -1")

    def await_(self, off, n, dyn=False, tq=None):
        p = self.p
        tq = tq or self.tq
        a, b = tq.sub(0), tq.sub(1)
        k = self.nawait = getattr(self, 'nawait', 0) + 1
        if dyn:
            p.valu("v_add_u32", a, sFC, self.vCnt)
        p.valu("v_mov_b32", b, 0)
        p.raw(f"s_branch Law{k}")
        p.lines.append(f"Lax{k}:")
        p.raw("s_sleep 2")
        p.lines.append(f"Law{k}:")
        p.raw(f"ds_read_b32 {b}, {a if dyn else self.vCnt} offset:{off}")
        p.raw(f"s_sub_u32 {sCNT}, {sCNT}, 1")
        p.raw(f"s_cselect_b32 {sT1}, {n}, 0")
        p.raw(f"s_cselect_b32 {sCNT}, 0, {sCNT}")
        p.raw("s_waitcnt lgkmcnt(0)")
        p.raw(f"v_readfirstlane_b32 {sT0}, {b}")
        p.raw("s_nop 1")
        p.raw(f"s_max_u32 {sT0}, {sT0}, {sT1}")
        p.raw(f"s_cmp_lt_u32 {sT0}, {n}")
        p.raw(f"s_cbranch_scc1 Lax{k}")
        p.lgkm_seq += 1
        p.lgkm_done = p.lgkm_seq

    def row0_dma(self, R, k=0):
        p = self.p
        p.salu("s_add_u32", "m0", sXM, R * RS + ((R >> 1) & 3) * 16 + 896 * k)
        so = sYB
        if R == 0:
            p.salu("s_sub_u32", sT2, sYB, ROWB)
            p.salu("s_cmp_eq_u32", sY0, 0)
            p.salu("s_cselect_b32", sT2, OOB_S, sT2)
            so = sT2
        elif R > 1:
            p.salu("s_add_u32", sYB, sYB, ROWB)
        p.dma(self.vX[k], sX, so, flags='nt' if self.o.get('nt0', 0) else '')

    def row_dma(self, R):
        p = self.p
        p.salu("s_add_u32", sSL, sSL, RS)
        p.salu("s_cmp_eq_u32", sSL, 10 * RS)
        p.salu("s_cselect_b32", sSL, 0, sSL)
        p.salu("s_add_u32", sT0, sSL, sXM)
        p.salu("s_add_u32", "m0", sT0, ((R >> 1) & 3) * 16)
        p.salu("s_add_u32", sYB, sYB, ROWB)
        p.dma(self.vX[0], sX, sYB)
        p.salu("s_add_u32", "m0", sT0, ((R >> 1) & 3) * 16 + 896)
        self.x_tok = p.dma(self.vX[1], sX, sYB)

    def skip_round(self):
        p = self.p
        p.salu("s_add_u32", sYB, sYB, 8 * ROWB)
        p.salu("s_sub_u32", sSL, sSL, 2 * RS)

    def touch_rows(self, a, b):
        p = self.p
        self.lane(b)
        p.valu("v_and_b32", a, 15, b)
        p.valu("v_lshlrev_b32", a, 7, a)
        p.valu("v_lshrrev_b32", b, 4, b)
        p.valu("v_mul_u32_u24", b, ROWB, b)
        p.salu("s_sub_u32", sT0, sXM, R2 + 192 - ROWB)
        p.salu("s_mul_i32", sT1, sX0, 192)
        p.salu("s_add_u32", sT0, sT0, sT1)
        p.valu("v_add3_u32", a, a, b, sT0)
        p.salu("s_mov_b32", "m0", LDS_BYTES)
        p.salu("s_add_u32", sT1, sYB, 4 * ROWB)
        for so in (sYB, sT1):
            p.raw(f"buffer_load_dword {a}, {sX}, {so} offen lds")
            p.vm_seq += 1

    def conv_addr(self):
        p = self.p
        a = self.tq.sub(0)
        p.salu("s_add_u32", sT0, sSL, RS)
        for k in range(4):
            p.valu("v_add_u32", self.vB[k], sT0, self.vB0)
            if k:
                p.valu("v_add_u32", self.vB[k], k * RS, self.vB[k])
            if k >= 2:
                p.valu("v_add_u32", a, 16, self.vB[k])
                p.valu("v_bfi_b32", self.vB[k], 48, a, self.vB[k])
            p.valu("v_subrev_u32", a, 10 * RS, self.vB[k])
            p.valu("v_min_u32", self.vB[k], self.vB[k], a)
            p.valu("v_add_u32", self.vB[k], R2, self.vB[k])

    def w1_dma(self, u):
        p = self.p
        p.salu("s_and_b32", sT0, sWAVE, 3)
        p.salu("s_add_u32", sT0, sT0, 4 * u)
        p.salu("s_mul_i32", sT1, sT0, 43)
        p.salu("s_lshr_b32", sT1, sT1, 8)
        p.salu("s_lshl_b32", sT3, sT0, 10)
        p.salu("s_add_u32", "m0", sT3, W1F)
        p.salu("s_mul_i32", sT3, sT1, 6)
        p.salu("s_sub_u32", sT0, sT0, sT3)
        p.salu("s_mul_i32", sT0, sT0, 12288)
        p.salu("s_lshl_b32", sT1, sT1, 6)
        p.salu("s_add_u32", sT0, sT0, sT1)
        return p.dma(self.vW1g, sW1, sT0)

    def tr_addr(self, dst, lane, t0, hshift):
        p = self.p
        p.valu("v_lshrrev_b32", t0, 5, lane)
        p.valu("v_lshlrev_b32", dst, hshift, t0)
        p.valu("v_bfe_u32", t0, lane, 2, 2)
        p.valu("v_lshl_add_u32", dst, t0, 6, dst)
        p.valu("v_bfe_u32", t0, lane, 4, 1)
        p.valu("v_lshl_add_u32", dst, t0, 5, dst)
        p.valu("v_and_b32", t0, 1, lane)
        p.valu("v_lshl_add_u32", dst, t0, 4, dst)
        p.valu("v_bfe_u32", t0, lane, 1, 1)
        p.valu("v_lshl_add_u32", dst, t0, 3, dst)

    def prologue(self):
        p, o = self.p, self.o
        p.salu("s_cmp_ge_u32", S(2), 256)
        p.raw("s_cbranch_scc1 Lend")
        p.raw(f"s_load_dwordx16 {sLD}, s[0:1], 0")
        p.raw(f"s_load_dwordx2 {sTM}, s[0:1], 64")
        if o.get('stamps'):
            p.raw("s_memtime s[68:69]")
            p.raw("s_memrealtime s[70:71]")
        if o.get('dbgs') or o.get('x_pad'):
            p.raw("s_memrealtime s[100:101]")
        self.mark()
        tid, lane = V(119), V(118)
        t = [V(120 + i) for i in range(48)]
        p.valu("v_mov_b32", tid, V(0))
        p.valu("v_and_b32", lane, 63, V(0))
        p.valu("v_lshrrev_b32", t[0], 6, V(0))
        p.valu("v_readfirstlane_b32", sWAVE, t[0])
        p.raw(f"s_getpc_b64 {sEX}")
        p.lines.append("Lpc:")
        p.salu("s_lshr_b32", sT0, S(2), 3)
        p.salu("s_and_b32", sT0, sT0, 15)
        p.salu("s_lshl_b32", sT0, sT0, 13)
        p.valu("v_lshrrev_b32", t[2], 3, V(0))
        p.valu("v_lshl_add_u32", t[2], t[2], 7, sT0)
        p.valu("v_min_u32", t[2], "Lend-Lpc", t[2])
        if o.get('pf', 1):
            p.raw(f"global_load_dword v112, {t[2]}, {sEX}")
            p.vm_seq += 1
        p.salu("s_and_b32", sT0, S(2), 7)
        p.salu("s_lshr_b32", sT1, S(2), 3)
        p.salu("s_and_b32", sX0, sT0, 3)
        p.salu("s_lshl_b32", sX0, sX0, 2)
        p.salu("s_and_b32", sT2, sT1, 3)
        p.salu("s_add_u32", sX0, sX0, sT2)
        p.salu("s_lshr_b32", sY0, sT0, 2)
        p.salu("s_lshl_b32", sY0, sY0, 3)
        p.salu("s_lshr_b32", sT2, sT1, 2)
        p.salu("s_add_u32", sY0, sY0, sT2)
        p.salu("s_lshl_b32", sX0, sX0, 5)
        p.salu("s_lshl_b32", sY0, sY0, 5)
        p.salu("s_and_b32", sT0, sWAVE, 3)
        p.salu("s_mul_i32", sT0, sT0, 1536)
        p.salu("s_add_u32", sXM, sT0, R2)
        p.salu("s_mul_i32", sT1, sX0, 192)
        p.salu("s_add_u32", sT0, sT0, sT1)
        p.salu("s_sub_u32", sT0, sT0, 192)
        p.valu("v_lshl_add_u32", t[1], lane, 4, sT0)
        p.valu("v_add_u32", t[3], 896, t[1])
        p.valu("v_mov_b32", t[2], OOB_V)
        p.salu("s_mov_b32", sT1, ROWB)
        p.valu("v_cmp_gt_u32", "vcc", sT1, t[1])
        p.valu("v_cndmask_b32", self.vX[0], t[2], t[1], "vcc")
        p.valu("v_cmp_gt_u32", "vcc", sT1, t[3])
        p.valu("v_cndmask_b32", self.vX[1], t[2], t[3], "vcc")
        p.salu("s_mul_i32", sYB, sY0, ROWB)
        dv, di = V(126, 2), t[8]
        p.valu("v_min_u32", di, 215, tid)
        p.valu("v_lshlrev_b32", t[10], 3, di)
        p.valu("v_lshlrev_b32", self.vA[0], 4, lane)
        p.raw("s_waitcnt lgkmcnt(0)")
        self.srd(sX, sLD.sub(0, 2), X_BYTES)
        self.mark()
        p.salu("s_cmp_ge_u32", sWAVE, 4)
        p.raw("s_cbranch_scc1 Lrowb")
        p.cond_begin()
        self.srd(sDW, sLD.sub(2, 2), 1728)
        p.buf_load("buffer_load_dwordx2", dv, t[10], sDW)
        for R in range(10):
            self.row0_dma(R)
        p.raw("s_branch Lsetup")
        p.cond_end()
        p.lines.append("Lrowb:")
        p.cond_begin()
        for R in range(10):
            self.row0_dma(R, 1)
        self.mark()
        self.srd(sW1, sLD.sub(4, 2), 73728)
        p.valu("v_lshrrev_b32", self.vW1g, 2, lane)
        p.valu("v_mul_u32_u24", self.vW1g, 768, self.vW1g)
        p.valu("v_and_b32", t[5], 3, lane)
        p.valu("v_lshl_add_u32", self.vW1g, t[5], 4, self.vW1g)
        tp = o.get('tp', 6)
        for u in range(6):
            self.w1_dma(u)
        if tp == 6:
            self.touch_rows(t[20], t[21])
        self.mark()
        p.raw(f"s_waitcnt vmcnt({8 if tp == 6 else 6})")
        self.mark()
        p.barrier()
        p.raw("s_setprio %d" % o.get('bp', 0))
        for u in range(6, 18):
            self.w1_dma(u)
            if u + 1 == tp:
                self.touch_rows(t[20], t[21])
        p.cond_end()
        p.lines.append("Lsetup:")
        self.mark()
        self.srd(sW2, sLD.sub(6, 2), 73728)
        self.srd(sGA, sLD.sub(8, 2), 768)
        self.srd(sBE, sLD.sub(10, 2), 768)
        self.srd(sOUT, sLD.sub(12, 2), X_BYTES)
        self.srd(sDBG, sLD.sub(14, 2), 256)
        self.srd(sWS, sTM, WS_BYTES)
        for i in range(3):
            p.valu("v_lshlrev_b32", self.vA[i], 4, lane)
            p.valu("v_add_u32", self.vA[i], W1F + 65536 * i, self.vA[i])
        p.salu("s_lshl_b32", sSTAMP, S(2), 3)
        p.salu("s_add_u32", sSTAMP, sSTAMP, sWAVE)
        p.salu("s_lshl_b32", sLNB, sSTAMP, 10)
        p.salu("s_add_u32", sLNB, sLNB, WS_LN - W1F)
        p.salu("s_mul_i32", sSTAMP, sSTAMP, 16 * o.get('stamps', 1))
        p.salu("s_add_u32", sSTAMP, sSTAMP, WS_STAMP)
        if o.get('stamps'):
            for i in range(4):
                p.valu("v_mov_b32", V(188 + i), S(68 + i))
            p.salu("s_sub_u32", sT0, sSTAMP, W1F)
            p.raw("s_mov_b64 exec, 1")
            if o.get('dbgt'):
                p.valu("v_mov_b32", V(188), 0)
                p.valu("v_not_b32", V(189), V(190))
                p.buf_store("buffer_atomic_umax", V(189), V(188), sDBG, 0, 4)
                p.buf_store("buffer_atomic_umax", V(190), V(188), sDBG, 0, 8)
            else:
                p.buf_store("buffer_store_dwordx4", V(188, 4), self.vA[0], sWS, sT0, 0)
            p.raw("s_mov_b64 exec, -1")
            self.nstamp += 1
        p.salu("s_mov_b32", sK, h2u(GK) * 0x10001)
        p.salu("s_mov_b32", sM, 0xFFF8FFF8)
        m, g = t[11], t[12]
        p.valu("v_and_b32", m, 15, lane)
        p.valu("v_lshrrev_b32", g, 4, lane)
        p.valu("v_and_b32", t[13], 3, m)
        p.valu("v_mul_u32_u24", t[14], 2 * RS + 16, t[13])
        p.valu("v_lshrrev_b32", t[13], 2, m)
        p.valu("v_lshl_add_u32", t[13], t[13], 1, g)
        p.valu("v_mul_u32_u24", t[13], 192, t[13])
        p.salu("s_sub_u32", sT0, sXM, R2)
        p.valu("v_add3_u32", self.vB0, t[13], t[14], sT0)
        p.valu("v_bfe_u32", t[13], m, 2, 1)
        p.valu("v_sub_u32", t[13], g, t[13])
        p.valu("v_lshrrev_b32", t[14], 3, m)
        p.valu("v_and_b32", t[15], 3, m)
        p.valu("v_lshl_add_u32", t[15], t[14], 2, t[15])
        p.valu("v_lshlrev_b32", t[16], 6, t[13])
        p.valu("v_lshl_add_u32", t[16], t[15], 3, t[16])
        p.valu("v_add_u32", t[16], DIAG + 8, t[16])
        p.valu("v_mov_b32", t[17], DIAG)
        p.valu("v_cmp_gt_u32", "vcc", 3, t[13])
        p.valu("v_cndmask_b32", t[16], t[17], t[16], "vcc")
        p.valu("v_cmp_eq_u32", "vcc", 0, t[14])
        p.valu("v_cndmask_b32", self.vC[0], t[17], t[16], "vcc")
        p.valu("v_cndmask_b32", self.vC[1], t[16], t[17], "vcc")
        p.valu("v_lshrrev_b32", t[13], 2, m)
        p.valu("v_bfe_u32", t[15], m, 1, 1)
        p.valu("v_cmp_eq_u32", "vcc", t[13], g)
        p.valu("v_cndmask_b32", t[15], 8, t[15], "vcc")
        for i in range(2):
            p.valu("v_cmp_eq_u32", sIX[i], i, t[15])
        p.valu("v_lshlrev_b32", self.vBias, 5, g)
        p.valu("v_add_u32", self.vBias, HOLE[0], self.vBias)
        p.valu("v_lshlrev_b32", self.vG, 4, g)
        n, h = t[11], t[12]
        p.valu("v_and_b32", n, 31, lane)
        p.valu("v_lshrrev_b32", h, 5, lane)
        p.valu("v_bfe_u32", t[13], n, 2, 1)
        p.valu("v_bfe_u32", t[14], n, 3, 1)
        p.valu("v_bfe_u32", t[15], n, 1, 1)
        p.valu("v_lshrrev_b32", t[16], 4, n)
        p.valu("v_lshl_add_u32", t[15], t[16], 1, t[15])
        p.valu("v_lshl_add_u32", t[15], t[14], 2, t[15])
        p.valu("v_cmp_eq_u32", "vcc", t[13], h)
        p.valu("v_cndmask_b32", t[15], 8, t[15], "vcc")
        for i in range(8):
            p.valu("v_cmp_eq_u32", sID[i], i, t[15])
        p.valu("v_and_b32", t[16], 1, n)
        p.valu("v_lshlrev_b32", t[16], 4, t[16])
        p.valu("v_mov_b32", self.vI, 0x3F80)
        p.valu("v_lshlrev_b32", self.vI, t[16], self.vI)
        p.valu("v_and_b32", t[17], 19, n)
        p.valu("v_lshl_add_u32", t[17], t[13], 3, t[17])
        p.valu("v_lshl_add_u32", t[17], t[14], 2, t[17])
        p.valu("v_lshlrev_b32", t[17], 2, t[17])
        p.valu("v_lshl_add_u32", t[17], h, 7, t[17])
        p.salu("s_mul_i32", sW2B, sWAVE, 9216)
        p.salu("s_add_u32", sPRIV, sW2B, R2)
        p.valu("v_add_u32", self.vS, sPRIV, t[17])
        p.valu("v_and_b32", t[13], 3, lane)
        p.valu("v_mul_u32_u24", t[14], 2 * ROWB, t[13])
        p.valu("v_bfe_u32", t[13], lane, 2, 2)
        p.valu("v_mul_u32_u24", t[13], 384, t[13])
        p.valu("v_add3_u32", self.vG, self.vG, t[13], t[14])
        p.salu("s_mul_i32", sT3, sX0, 192)
        p.salu("s_add_u32", sT3, sT3, sXM)
        p.salu("s_sub_u32", sT3, sT3, R2)
        p.salu("s_and_b32", sFC, sWAVE, 4)
        p.salu("s_lshl_b32", sT1, sFC, 1)
        p.salu("s_add_u32", sT1, sT1, sY0)
        for ti in range(4):
            p.salu("s_add_u32", sT0, sT1, 16 * (ti >> 1) + (ti & 1))
            p.salu("s_mul_i32", sT0, sT0, ROWB)
            p.salu("s_add_u32", sTILE[ti], sT0, sT3)
        for i in range(2):
            p.salu("s_mov_b32", sD4[0].sub(i), 0xAAAAAAAA)
            p.salu("s_mov_b32", sD4[1].sub(i), 0xCCCCCCCC)
        p.salu("s_mov_b32", sSL, 9 * RS)
        p.salu("s_mov_b32", sCNT, 200000)
        p.valu("v_mov_b32", self.vCnt, CNT)
        self.tr_addr(self.vW1r, lane, t[28], 8)
        p.salu("s_and_b32", sT0, sWAVE, 3)
        p.salu("s_lshl_b32", sT0, sT0, 10)
        p.valu("v_add_u32", self.vW1w, sT0, self.vA[0])
        p.salu("s_add_u32", sT0, sT0, W1F)
        p.valu("v_add_u32", self.vW1r, sT0, self.vW1r)
        for r in self.SQ:
            p.valu("v_mov_b32", r, 0)
        self.mark()
        p.salu("s_cmp_ge_u32", sWAVE, 4)
        p.raw("s_cbranch_scc1 Lwa")
        p.cond_begin()
        ch = [V(64 + 2 * k, 2) for k in range(5)]
        for r in (ch[0].sub(1), ch[1].sub(1), ch[2].sub(0), ch[3].sub(0), ch[4].sub(0), ch[4].sub(1)):
            p.valu("v_mov_b32", r, 0)
        p.valu("v_min_u32", t[20], 35, tid)
        p.valu("v_mul_u32_u24", t[20], 200, t[20])
        p.valu("v_add_u32", t[20], DIAG, t[20])
        p.valu("v_and_b32", t[21], 31, tid)
        p.valu("v_lshlrev_b32", t[21], 3, t[21])
        p.valu("v_bfe_u32", t[22], tid, 5, 1)
        p.valu("v_lshl_add_u32", t[21], t[22], 13, t[21])
        p.valu("v_add_u32", t[21], HOLE[0], t[21])
        p.valu("v_cmp_gt_u32", "vcc", 64, tid)
        p.valu("v_cndmask_b32", t[20], t[21], t[20], "vcc")
        p.ds_write("ds_write_b64", t[20], ch[4])
        p.valu("v_lshrrev_b32", t[20], 1, di)
        p.valu("v_mul_u32_u24", t[21], 57, t[20])
        p.valu("v_lshrrev_b32", t[21], 11, t[21])
        p.valu("v_mul_u32_u24", t[22], 171, t[20])
        p.valu("v_lshrrev_b32", t[22], 11, t[22])
        p.valu("v_mul_u32_u24", t[20], 200, t[20])
        p.valu("v_mul_u32_u24", t[22], 2400 - 64, t[22])
        p.valu("v_mul_u32_u24", t[21], 2400 - 192, t[21])
        p.valu("v_sub_u32", t[20], t[20], t[22])
        p.valu("v_add_u32", t[20], t[20], t[21])
        p.valu("v_and_b32", t[21], 1, di)
        p.valu("v_lshl_add_u32", t[20], t[21], 5, t[20])
        p.valu("v_add_u32", t[20], DIAG + 8, t[20])
        self.gelu_table()
        p.raw("s_waitcnt vmcnt(10)")
        for r in dv.regs():
            p.p_vm[r] = None
        for k in range(4):
            p.valu("v_and_b32", ch[k].sub(k >> 1), (0xFFFF, 0xFFFF0000)[k & 1], dv.sub(k >> 1))
            p.ds_write("ds_write_b64", t[20], ch[k], 8 * k)
        self.mark()
        p.raw("s_waitcnt vmcnt(0) lgkmcnt(0)")
        self.mark()
        p.barrier()
        p.cond_end()
        p.lines.append("Lwa:")
        p.vm_done, p.lgkm_done = p.vm_seq, p.lgkm_seq
        self.mark()
        self.stamp(188)
        self.stamp(188)

    def gelu_table(self):
        p = self.p
        tid, t = V(119), [V(120 + i) for i in range(4)]
        y = [V(i) for i in range(32)]
        e = [V(32 + i) for i in range(32)]
        p.valu("v_and_b32", t[0], 255, tid)
        p.valu("v_lshlrev_b32", t[1], 8, t[0])
        for i in range(32):
            p.valu("v_add_u32", y[i], 8 * i + 4, t[1])
            p.valu("v_cvt_f32_f16", y[i], y[i])
        for i in range(32):
            p.valu("v_fmaak_f32", e[i], y[i], y[i], hex(f2u(GK)))
            p.valu("v_mul_f32", e[i], y[i], e[i])
        for i in range(32):
            p.valu("v_exp_f32", e[i], e[i])
        for i in range(32):
            p.valu("v_add_f32", e[i], "1.0", e[i])
        for i in range(32):
            p.valu("v_rcp_f32", e[i], e[i])
        for i in range(32):
            p.valu("v_mul_f32", y[i], y[i], e[i])
        for i in range(16):
            p.valu("v_cvt_pk_f16_f32", e[i], y[2 * i], y[2 * i + 1])
        tl = self.o.get('tl', 2)
        if tl:
            for i in range(16):
                p.valu("v_add_u32", e[i], (1 << tl >> 1) * 0x10001, e[i])
                p.valu("v_and_b32", e[i], (0xFFFF >> tl << tl) * 0x10001, e[i])
        p.valu("v_lshlrev_b32", t[1], 6, t[0])
        p.valu("v_bfe_u32", t[0], t[0], 2, 5)
        p.valu("v_cmp_ne_u32", "vcc", 31, t[0])
        p.raw(f"s_and_saveexec_b64 {sEX}, vcc")
        for i in range(4):
            p.ds_write("ds_write_b128", t[1], V(32 + 4 * i, 4), 16 * i)
        p.raw(f"s_mov_b64 exec, {sEX}")

    def sentinels(self):
        p = self.p
        t = [V(100 + i) for i in range(6)]
        sv = V(108, 4)
        p.salu("s_cmp_lg_u32", sWAVE, 7)
        p.raw("s_cbranch_scc1 Lnosent")
        p.cond_begin()
        lane = t[4]
        self.lane(lane)
        for i in range(4):
            p.valu("v_mov_b32", sv.sub(i), -1)
        p.valu("v_lshlrev_b32", t[0], 12, lane)
        p.valu("v_add_u32", t[1], 64 * 4096, t[0])
        p.valu("v_cmp_gt_u32", "vcc", 32, lane)
        p.valu("v_mov_b32", t[5], OOB_V)
        p.valu("v_cndmask_b32", t[1], t[5], t[1], "vcc")
        p.salu("s_lshl_b32", sT0, S(2), 4)
        p.raw(f"buffer_store_dwordx4 {sv}, {t[0]}, {sWS}, {sT0} offen sc1")
        p.raw(f"buffer_store_dwordx4 {sv}, {t[1]}, {sWS}, {sT0} offen sc1")
        p.salu("s_add_u32", sT0, sT0, WS_TOT)
        p.salu("s_cmp_lt_u32", S(2), 96)
        p.salu("s_cselect_b32", sT0, sT0, OOB_S)
        p.valu("v_lshlrev_b32", t[3], 11, lane)
        p.raw("s_mov_b64 exec, 0xff")
        p.raw(f"buffer_store_dwordx4 {sv}, {t[3]}, {sWS}, {sT0} offen sc1")
        p.raw("s_mov_b64 exec, -1")
        p.nop(2)
        p.cond_end()
        p.lines.append("Lnosent:")

    def init_counter(self):
        p = self.p
        p.salu("s_cmp_lg_u32", sWAVE, 7)
        p.raw("s_cbranch_scc1 Lnoinit")
        p.cond_begin()
        p.raw("s_waitcnt vmcnt(0)")
        p.raw(f"v_mov_b32 {self.tq.sub(0)}, 1")
        p.raw(f"v_mov_b32 {self.tq.sub(1)}, 0")
        p.raw("s_mov_b64 exec, 1")
        p.raw(f"buffer_atomic_add {self.tq.sub(0)}, {self.tq.sub(1)}, {sDBG}, 0 offen")
        p.raw("s_mov_b64 exec, -1")
        p.nop(2)
        p.cond_end()
        p.lines.append("Lnoinit:")

    def stats(self, s, t, ti, cb):
        acc = self.CA[ti].sub(4 * cb, 4)
        s2, q2 = self.ls[ti & 1][:2]
        if self.o.get('lnpk', 1):
            for k in range(2):
                c2 = acc.sub(2 * k, 2)
                if cb == 0 and k == 0:
                    last = [self.CA[ti | 1].sub(44, 4)]
                    s.valu(t, "v_pk_mul_f32", q2, c2, c2, rd=last)
                    s.valu(t, "v_pk_add_f32", s2, c2, acc.sub(2, 2), rd=last)
                else:
                    s.valu(t, "v_pk_fma_f32", q2, c2, c2, q2)
                    if cb:
                        s.valu(t, "v_pk_add_f32", s2, s2, c2)
            return
        for k in range(4):
            c, sa, qa = acc.sub(k), s2.sub(k & 1), q2.sub(k & 1)
            if cb == 0 and k < 2:
                s.valu(t, "v_mul_f32", qa, c, c)
                s.valu(t, "v_add_f32", sa, c, acc.sub(k + 2))
            else:
                s.valu(t, "v_fmac_f32", qa, c, c, rmw=True)
                if cb:
                    s.valu(t, "v_add_f32", sa, sa, c)

    def conv(self, s, blk, t0, t1, rd=(), wr=()):
        dt = (t1 - t0) / 72
        mode, s.mode = s.mode, self.o.get('dsc', 1)
        late = self.o.get('late', 1)
        for cb in range(12):
            t = t0 + 6 * cb * dt
            F = []
            for k in range(4):
                F.append(self.ring(self.ringB))
                s.ds_read(t + (k - 7) * dt, "ds_read_b128", F[k], self.vB[k], cb * 16, rd=rd)
            for dy in range(3):
                a = self.ring(self.ringA)
                for k in range(2):
                    s.ds_read(t + (2 * dy - 7) * dt, "ds_read_b64", a.sub(2 * k, 2), self.vC[k], (dy * 12 + cb) * 200)
                for par in range(2):
                    acc = self.CA[2 * blk + par].sub(4 * cb, 4)
                    s.mfma(t + (2 * dy + par) * dt, acc, a, F[dy + par], acc if dy else 0, rd=wr)
            if not late:
                for par in range(2):
                    self.stats(s, t + (9 + 3 * par) * dt, 2 * blk + par, cb)
        s.mode = mode
        if late:
            for cb in range(12):
                for par in range(2):
                    self.stats(s, t1 + 0.01, 2 * blk + par, cb)

    def ln(self, s, ti, t0, t1):
        C, D, ls, pk = self.CA[ti], self.LN[ti], self.ls[ti & 1], self.o.get('lnpk', 1)
        a, a1, q, q1, rs, off = [ls[i // 2].sub(i % 2) for i in range(6)]
        ts = t0 - (t1 - t0) * (ti & 1)
        s.valu(ts, "v_add_f32", a, a, a1)
        s.valu(ts, "v_add_f32", q, q, q1)
        s.swap(ts, 32, a, q)
        s.valu(ts, "v_add_f32", a, a, q)
        s.valu(ts, "v_mul_f32", a, f2u(1.0 / 96), a)
        s.valu(ts, "v_mov_b32", q, a)
        s.swap(ts, 32, a, q)
        s.valu(ts, "v_fma_f32", q, f"-{a}", a, q, rd=[a])
        s.valu(ts, "v_max_f32", q, 0, q)
        s.valu(ts, "v_add_f32", q, f2u(1e-5), q)
        s.valu(ts, "v_rsq_f32", q, q)
        s.valu(ts, "v_mul_f32", rs, f2u(GA), q)
        if pk:
            s.valu(ts, "v_mul_f32", off, f2u(GA), q)
            s.valu(ts, "v_mul_f32", q, a, rs)
            s.valu(ts, "v_mul_f32", q1, a, rs)
        else:
            s.valu(ts, "v_mul_f32", off, a, rs)
        for i in range(24):
            t = t0 + (t1 - t0) * i / 24
            if pk:
                s.valu(t, "v_pk_fma_f32", C.sub(2 * i, 2), C.sub(2 * i, 2), ls[2], ls[1], mods="neg_lo:[0,0,1] neg_hi:[0,0,1]")
            else:
                for k in range(2):
                    s.valu(t, "v_fma_f32", C.sub(2 * i + k), C.sub(2 * i + k), rs, f"-{off}", rd=[off])
            s.valu(t, "v_cvt_pk_bf16_f32", D.sub(i), C.sub(2 * i), C.sub(2 * i + 1))

    def gemm1(self, s, t0, j, ln, y, pixel_lane, ringW, span=1.0, rd=()):
        for s6 in range(6):
            t = t0 + span * s6 / 6
            w = self.ring(ringW)
            a, off = self.frag(j * 6 + s6)
            s.ds_read(t - self.o.get('lead', 0.8), "ds_read_b128", w, a, off, rd=rd)
            b = ln.sub(4 * s6, 4)
            if pixel_lane:
                s.mfma(t, y, w, b, y if s6 else 0)
            else:
                s.mfma(t, y, b, w, y if s6 else 0)

    def gelu32(self, s, t0, y, nl, blk, acc=None, idk=None):
        self.gelu(s, t0, y, nl, dst=[blk.sub(i) for i in (0, 1, 4, 5, 2, 3, 6, 7)])
        t = t0 + self.o.get('fin', 0.9) + self.o.get('lw', 0.55)
        if acc is not None:
            for q in range(2):
                s.mfma(t + 0.1 * q, y, blk.sub(4 * q, 4), idk.sub(4 * q, 4), y if q else 0, 'f16')
            for i in range(16):
                s.valu(t + 0.35 + 0.02 * i, "v_fmac_f32", acc, y.sub(i), y.sub(i), rmw=True)
            t += 0.15
        for i in range(4):
            s.swap(t, 16, blk.sub(i), blk.sub(4 + i))
        return t

    def gelu(self, s, t0, y, nl, acc=None, dst=None, span=1.0):
        o = self.o
        if isinstance(y, V):
            y = [y.sub(2 * i, 2) for i in range(8)]
        lw, fin = o.get('lw', 0.55) * span, o.get('fin', 0.9)
        mixlo, mixhi = "op_sel_hi:[1,1,0]", "op_sel:[1,1,0] op_sel_hi:[1,1,0]"
        for i in range(nl):
            a0, a1 = y[i].sub(0), y[i].sub(1)
            t = t0 + lw * i / nl
            s.valu(t, "v_cvt_pkrtz_f16_f32", a1, a0, a1)
            s.valu(t, "v_and_b32", a1, sM, a1)
            s.valu(t, "v_bfe_u32", a0, a1, 2, 14)
            s.valu(t, "v_lshrrev_b32", a1, 18, a1)
            s.ds_read(t, "ds_read_u16", a0, a0)
            s.ds_read(t, "ds_read_u16" if dst is None else "ds_read_u16_d16_hi", a1, a1)
        nt = len(y) - nl
        w = [4, 4, 4, 8, 8, 4, 8, 8, 4] + ([4, 4] if dst is None else [])
        cum = [sum(w[:k]) / sum(w) for k in range(len(w) + 1)]
        for k in range(len(w)):
            for i in range(nl, len(y)):
                u, e = y[i].sub(0), y[i].sub(1)
                t = t0 + cum[k] + (cum[k + 1] - cum[k]) * (i - nl) / nt
                if k == 0:
                    s.valu(t, "v_cvt_pk_f16_f32", u, u, e)
                elif k == 1:
                    s.valu(t, "v_pk_fma_f16", e, u, u, sK)
                elif k == 2:
                    s.valu(t, "v_pk_mul_f16", e, u, e)
                elif k in (3, 4):
                    s.valu(t, "v_exp_f16_sdwa", e, e, mods=(LO, HI)[k - 3])
                elif k == 5:
                    s.valu(t, "v_pk_add_f16", e, e, "1.0", mods="op_sel_hi:[1,0]")
                elif k in (6, 7):
                    s.valu(t, "v_rcp_f16_sdwa", e, e, mods=(LO, HI)[k - 6])
                elif k == 8:
                    s.valu(t, "v_pk_mul_f16", u if dst is None else dst[i], u, e)
                else:
                    s.valu(t, "v_fma_mix_f32", acc, u, u, acc, mods=(mixlo, mixhi)[k - 9])
        for i in range(nl):
            a0, a1 = y[i].sub(0), y[i].sub(1)
            t = t0 + fin + lw * i / nl
            if dst is None:
                for a in (a0, a1):
                    s.valu(t, "v_fma_mix_f32", acc, a, a, acc, mods=mixlo)
            else:
                s.valu(t, "v_or_b32", dst[i], a0, a1)

    def pattern(self, key, default):
        return [int(c) for c in str(self.o.get(key, default))]

    def ws_frag(self, f, fn):
        p = self.p
        if f == 0:
            return fn(sLNB)
        p.salu("s_add_u32", sT3, sLNB, f * self.o.get('fst', 1 << 21))
        return fn(sT3)

    def prio_steps(self, s, t0, t1, key='pp'):
        n = 4 * max(1, round((t1 - t0) / self.o.get(key, self.o.get('pp', 2.0))))
        for k in range(n):
            s.misc(t0 + (t1 - t0) * k / n, lambda k=k: self.p.raw(f"s_setprio {3 - k % 4}"), rd=['@bar'] if k == 0 else [], wr=['@prio'])

    def w1_transform(self, us, fr):
        p = self.p
        a, b = V(113), V(114)
        p.valu("v_add_u32", a, 65536, self.vW1r)
        p.valu("v_add_u32", b, 65536, self.vW1w)
        for k, u in enumerate(us):
            for i in range(2):
                p.ds_read("ds_read_b64_tr_b16", fr[k].sub(2 * i, 2), self.vW1r if u < 16 else a, (u % 16) * 4096 + i * 512)
        for k, u in enumerate(us):
            p.ds_write("ds_write_b128", self.vW1w if u < 16 else b, fr[k], (u % 16) * 4096)

    def code_pf(self, s, times):
        p = self.p

        def one():
            k = self.ncpf = getattr(self, 'ncpf', 0) + 1
            p.raw(f"s_getpc_b64 {sEX}")
            p.lines.append(f"Lcq{k}:")
            p.salu("s_lshl_b32", sT0, sWAVE, 10)
            p.salu("s_add_u32", sT0, sT0, self.o.get('cpd', 6144))
            p.salu("s_min_u32", sT0, sT0, f"Lend-Lcq{k}-1024")
            p.salu("s_add_u32", sEX.sub(0), sEX.sub(0), sT0)
            p.salu("s_addc_u32", sEX.sub(1), sEX.sub(1), 0)
            p.salu("s_sub_u32", sEX.sub(0), sEX.sub(0), W1F)
            p.salu("s_subb_u32", sEX.sub(1), sEX.sub(1), 0)
            p.salu("s_mov_b32", "m0", LDS_BYTES)
            p.nop(1)
            p.raw(f"global_load_lds_dword {self.vA[0]}, {sEX}")
            p.vm_seq += 1
        if self.o.get('cpf', 0):
            for t in times:
                s.misc(t, one)

    def setprio(self, s, t, lv):
        s.misc(t, lambda: self.p.raw(f"s_setprio {lv}"), wr=['@prio'])

    def phase1(self):
        p, o = self.p, self.o
        p.salu("s_cmp_lt_u32", sWAVE, 4)
        p.raw("s_cbranch_scc1 Lsu1")
        p.cond_begin()
        p.raw("s_waitcnt vmcnt(%d)" % (14 if o.get('tp', 6) <= 18 else 12))
        self.mark()
        self.w1_transform(range(6), [V(4 * u, 4) for u in range(6)])
        self.signal(C_W1A)
        self.mark()
        self.await_(C_F, 4)
        self.mark()
        for R in range(2, 10):
            self.row_dma(R)
        self.mark()
        p.raw("s_waitcnt vmcnt(16)")
        self.mark()
        self.w1_transform(range(6, 18), [V(4 * u, 4) for u in range(12)])
        self.signal(C_W1B)
        self.mark()
        p.cond_end()
        self.sentinels()
        p.raw("s_setprio 3")
        p.raw("s_waitcnt vmcnt(0)")
        self.mark()
        p.lines.append("Lsu1:")
        p.vm_done, p.lgkm_done = p.vm_seq, p.lgkm_seq
        self.stamp(188)
        s = self.s = Sched(p, o)
        nl = self.pattern('nl1', '6')
        L, cl = o.get('cl', 4.0), o.get('cc', 2.6)
        Y, ny = self.Y1, len(self.Y1)
        u = [None, V(237), V(244), V(245)]
        tq2 = V(238, 2)
        tmp = [V(48, 8), V(56, 8)]
        m0, m1 = o.get('m0', 0.0), o.get('m1', 2.0)

        def w2_addr():
            self.lane(u[1])
            p.valu("v_lshrrev_b32", self.vW2, 2, u[1])
            p.valu("v_mul_u32_u24", self.vW2, 192, self.vW2)
            p.valu("v_and_b32", u[1], 3, u[1])
            p.valu("v_lshl_add_u32", self.vW2, u[1], 4, self.vW2)

        def init_check():
            p.salu("s_cmp_lg_u32", sWAVE, 0)
            p.raw("s_cbranch_scc1 Lpix")
            p.cond_begin()
            p.raw(f"v_mov_b32 {u[2]}, 0")
            p.lines.append("Lpi:")
            p.raw(f"buffer_load_dword {u[3]}, {u[2]}, {sDBG}, 0 offen sc1")
            p.raw("s_waitcnt vmcnt(0)")
            p.raw(f"v_readfirstlane_b32 {sT0}, {u[3]}")
            self.spin_guard("Lpix")
            p.salu("s_cmp_lt_u32", sT0, 256)
            p.raw("s_cbranch_scc1 Lpi")
            p.cond_end()
            p.lines.append("Lpix:")

        def flush(t, j):
            s.swap(t, 32, self.SQ[j], self.SQ[j + 1])
            s.valu(t, "v_add_f32", self.SQ[j], self.SQ[j], self.SQ[j + 1])
            s.ds_write(t, "ds_write_b32", self.vS, self.SQ[j], TABO + j * 128 + (3072 - 768) * (j >= 6), rd=['@ring', '@sums'])

        for blk in range(2):
            t0 = blk * (24 + L + o.get('cd', 0.7))
            s.misc(t0 - 0.5, self.conv_addr, rd=[self.vB0, '@dma'], wr=self.vB + [self.tq], cost=90)
            if blk:
                s.misc(t0 - 0.3, lambda: p.wait(vm=self.x_tok), rd=['@dma'], wr=['@rows'])
            self.conv(s, blk, t0, t0 + cl, rd=['@rows'], wr=['@cdone'])
            s.misc(t0 + cl, lambda blk=blk: self.signal(C_F + 8 * blk, True), wr=['@cdone', self.tq], cost=8)
            h = (L - cl) / 2
            self.ln(s, 2 * blk, t0 + cl + 0.02, t0 + cl + h)
            self.ln(s, 2 * blk + 1, t0 + cl + h, t0 + L)
            t0 += L
            if blk == 0:
                s.misc(t0 - 1.0, lambda: self.await_(C_W1A, 4), wr=['@w1', self.tq], cost=40)
                if o.get('stamps'):
                    s.misc(t0, lambda: self.stamp(192), wr=[V(192, 4)])
            if blk:
                Y = [Y[1], Y[2], Y[0], Y[3], Y[4]]
            idk = V((64, 216)[blk], 8)
            if self.keep if blk else self.spi:
                for m in range(8):
                    s.valu(t0, "v_cndmask_b32", idk.sub(m), 0, self.vI, sID[m])
                    s.valu(t0, "v_and_b32", idk.sub(m), 0x3C003C00, idk.sub(m))
            for j in range(12):
                t = t0 + 2 * j
                e = 24 * blk + 2 * j
                held = [(2 * blk + par, j) in self.spi or (blk and par and j in self.keep) for par in range(2)]
                if blk == 0 and j == 4:
                    s.misc(t - 1.2, lambda: self.await_(C_W1B, 4), wr=['@w1', self.tq], cost=40)
                for s6 in range(6):
                    tt = t + m0 + (m1 - m0) * s6 / 6
                    w = self.ring(self.ring1)
                    s.ds_read(tt - o.get('lead', 0.8), "ds_read_b128", w, *self.frag(j * 6 + s6), rd=['@w1'])
                    for par in range(2):
                        y = Y[(e + par + 4) % ny]
                        ab = (self.LN[2 * blk + par].sub(4 * s6, 4), w)
                        s.mfma(tt + par * (m1 - m0) / 12, y, *(ab[::-1] if held[par] else ab), y if s6 else 0)
                if blk == 1 and j == 8:
                    d0 = t0 + o.get('w0', 16.0)
                    s.misc(d0, lambda: (self.await_(C_F + 12, 4, tq=tq2), w2_addr()), rd=[self.vA[0]],
                           wr=[self.vW2, u[1], tq2, '@ring'], cost=60)
                    for k, f in enumerate((0, 1, 2, 3, 4, 6, 7)):
                        s.vmem(d0 + 0.3 + 0.5 * k, lambda f=f: self.w2_fetch(f, self.vW2), rd=[self.vW2], wr=['@w2raw'], lat=0)
                    s.misc(d0 + 4, lambda: setattr(self, 'w2_tok0', self.w2_tok), rd=['@w2raw'], wr=['@w2t0'], cost=0)
                    for k in range(0, 8, 2):
                        flush(d0, k)
                if blk == 1 and j == 11:
                    flush(t + 1, 8)
                for par in ((1, 0) if e == 46 else (0, 1)):
                    tg, y, n = t + m1 + (par ^ (e == 46)) + o.get('g0', 0.1), Y[(e + par + 4) % ny], nl[(e + par) % len(nl)]
                    if not held[par]:
                        self.gelu(s, tg, y, n, acc=self.SQ[j])
                        continue
                    bl = self.blk3[j] if blk else self.ring(tmp)
                    te = self.gelu32(s, tg, y, n, bl, self.SQ[j], idk)
                    for q in range(0 if blk else 2):
                        s.vmem(te + 0.2 + 0.4 * q, lambda q=q, bl=bl, f=self.spi[par, j]: self.ws_frag(f + q, lambda so: p.buf_store(
                            "buffer_store_dwordx4", bl.sub(4 * q, 4), self.vA[0], sWS, so, flags=o.get('ssf', ''))), rd=[bl.sub(4 * q, 4)], lat=0)
                if blk == 0 and j == 2:
                    for k in range(6):
                        s.vmem(t + 0.7 * k, lambda k=k: self.ws_frag(k, lambda so: p.buf_store(
                            "buffer_store_dwordx4", self.LN[0].sub(4 * k, 4), self.vA[0], sWS, so, flags=o.get('ssf', ''))), rd=[self.LN[0].sub(4 * k, 4)], lat=0)
                if blk == 0 and j == 6 and o.get('dbg'):
                    for k in range(6):
                        s.vmem(t + 0.7 * k, lambda k=k: self.ws_frag(6 + k, lambda so: p.buf_store(
                            "buffer_store_dwordx4", self.LN[1].sub(4 * k, 4), self.vA[0], sWS, so)), rd=[self.LN[1].sub(4 * k, 4)], lat=0)
                if blk == 0 and j == 5:
                    s.misc(t, self.init_counter, wr=[self.tq])
                    s.misc(t + 1, lambda: (self.skip_round(), self.touch_rows(self.tq.sub(0), self.tq.sub(1))), wr=[self.tq, '@dma'], cost=24)
                if blk == 0 and j == 9:
                    d0 = t0 + o.get('d0', 19.0)
                    s.misc(d0, lambda: self.await_(C_F + 4, 4, True), wr=[self.tq, '@dma'], cost=40)
                    for R in range(2, 10):
                        s.vmem(d0 + o.get('dspan', 2.5) * (R - 2) / 8, lambda R=R: self.row_dma(R), rd=self.vX, wr=['@dma'], lat=0)
                if blk == 1 and j == 5:
                    s.misc(t, init_check, wr=u[2:])
                if blk == 1 and j == 3 and o.get('nt0', 0):
                    s.misc(t, lambda: self.touch_x(u[2], u[3]), wr=u[2:], cost=24)
        end = 48 + 2 * L + m1 + o.get('cd', 0.7)
        self.setprio(s, L + o.get('la', 7), 3)
        s.misc(24 + 2 * L + o.get('cd', 0.7), lambda: self.call_if(True, ["s_setprio 2"], "Lbk"), wr=['@prio'])
        self.setprio(s, end - o.get('q0', 3.0), 1)
        self.code_pf(s, [6, 16, 26, 30, 38, 48, 56])
        self.fine(s, range(0, 60), 'p1')
        self.T1 = end - m1
        flush(end, 10)
        t = [None, V(238), V(239), V(237), V(244), V(245)]
        pv = [V(128, 8), V(136, 8), V(112, 8), V(120, 8), V(216, 8)]

        def pub_addr():
            self.lane(t[3])
            p.valu("v_min_u32", t[3], 47, t[3])
            p.valu("v_lshlrev_b32", t[4], 5, t[3])
            p.valu("v_add_u32", t[4], R2 + TABO, t[4])
            p.valu("v_add_u32", t[5], 3072 - 768, t[4])
            p.valu("v_cmp_gt_u32", "vcc", 24, t[3])
            p.valu("v_cndmask_b32", t[4], t[5], t[4], "vcc")
            p.valu("v_lshlrev_b32", t[3], 13, t[3])
            p.valu("v_add_u32", t[5], 4096, t[3])
        s.misc(end - 4, pub_addr, wr=t[3:], cost=40)

        def publish():
            p.raw("s_setprio 3")
            self.ticket(t, 0, "Lnopub", pv)

            def rd(w, d):
                for k in range(2):
                    p.ds_read("ds_read_b128", d.sub(4 * k, 4), t[4], 9216 * w + 16 * k)

            def add(d, b):
                for i in range(8):
                    p.valu("v_add_f32", d.sub(i), d.sub(i), b.sub(i))
            for w in range(5):
                rd(w, pv[w])
            for w in range(1, 4):
                add(pv[0], pv[w])
                rd(4 + w, pv[w])
            for w in (4, 1, 2, 3):
                add(pv[0], pv[w])
            for i in range(8):
                p.valu("v_min_u32", pv[4].sub(i), -2, pv[0].sub(i))
            p.salu("s_lshl_b32", sT0, S(2), 4)
            p.buf_store("buffer_store_dwordx4", pv[4].sub(0, 4), t[3], sWS, sT0, flags="sc1")
            p.buf_store("buffer_store_dwordx4", pv[4].sub(4, 4), t[5], sWS, sT0, flags="sc1")
            p.ds_write("ds_write_b32", self.vCnt, t[1], C_PUB)
            p.raw("s_waitcnt lgkmcnt(0)")
            p.nop(2)
            p.cond_end()
            p.lines.append("Lnopub:")
            self.stamp(128)
        s.misc(end, publish, wr=t[1:] + pv + ['@sums', '@prio'], cost=60)

    def ticket(self, t, cnt, label, regs):
        p = self.p
        p.valu("v_mov_b32", t[1], 1)
        p.wait_all(vm=False)
        p.raw("s_mov_b64 exec, 1")
        p.raw(f"ds_add_rtn_u32 {t[2]}, {self.vCnt}, {t[1]} offset:{cnt}")
        p.raw("s_mov_b64 exec, -1")
        for v in regs:
            p._mem_issue([], list(v.regs()))
        p.raw("s_waitcnt lgkmcnt(0)")
        p.lgkm_seq += 1
        p.lgkm_done = p.lgkm_seq
        p.valu("v_readfirstlane_b32", sT0, t[2])
        p.salu("s_cmp_lg_u32", sT0, 7)
        p.raw(f"s_cbranch_scc1 {label}")
        p.cond_begin()

    def w2_fetch(self, f, addr):
        p = self.p
        k, T = divmod(f, 3)
        p.salu("s_add_u32", "m0", sPRIV, f * 1024)
        p.salu("s_add_u32", sT0, sW2B, k * 3072 + T * 64)
        self.w2_tok = p.dma(addr, sW2, sT0)

    def touch_x(self, a, b):
        p = self.p
        self.lane(b)
        p.valu("v_and_b32", a, 15, b)
        p.valu("v_min_u32", a, 11, a)
        p.valu("v_lshlrev_b32", a, 7, a)
        p.valu("v_lshrrev_b32", b, 4, b)
        p.valu("v_mul_u32_u24", b, 2 * ROWB, b)
        p.valu("v_add_u32", a, a, b)
        p.salu("s_mov_b32", "m0", LDS_BYTES)
        p.salu("s_cmp_lt_u32", sWAVE, 4)
        p.raw("s_cbranch_scc0 Lnotouch")
        p.cond_begin()
        for ti in range(2):
            p.raw(f"buffer_load_dword {a}, {sX}, {sTILE[ti]} offen lds")
            p.vm_seq += 1
        p.cond_end()
        p.lines.append("Lnotouch:")

    def poll_regs(self):
        rv = [V(128 + 4 * i, 4) for i in range(4)]
        tv = [V(128 + i) for i in range(6)]
        gv = [V(134 + i) for i in range(6)]
        t = [V(240 + i) for i in range(6)]
        return rv, tv, gv, t

    def poll_loads(self, p, reducer):
        rv, tv, gv, t = self.poll_regs()
        if reducer:
            p.salu("s_lshl_b32", sT1, S(2), 12)
            for i in range(4):
                p.buf_load("buffer_load_dwordx4", rv[i], t[5], sWS, sT1, 1024 * i, flags="sc1")
        else:
            p.salu("s_and_b32", sT1, S(2), 7)
            p.salu("s_lshl_b32", sT1, sT1, 11)
            p.salu("s_add_u32", sT1, sT1, WS_TOT)
            for i in range(6):
                p.buf_load("buffer_load_dword", tv[i], t[0], sWS, sT1, 256 * i, flags="sc1")

    def gamma_loads(self, p):
        rv, tv, gv, t = self.poll_regs()
        p.valu("v_lshrrev_b32", t[1], 1, t[0])
        for i in range(6):
            p.buf_load("buffer_load_ushort", gv[i], t[1], sGA, 0, 128 * i)

    def poll_routine(self):
        main, self.p = self.p, Prog()
        p = self.p
        rv, tv, gv, t = self.poll_regs()
        ret = f"s_setpc_b64 {sRET}"
        p.lines.append("Lpolln:")
        p.raw(f"s_getreg_b32 {sT0}, hwreg(HW_REG_IB_STS, 0, 4)")
        p.salu("s_cmp_eq_u32", sT0, 0)
        p.raw("s_cbranch_scc1 Lpoll")
        p.raw(ret)
        p.lines.append("Lpoll:")
        p.raw("s_waitcnt vmcnt(0)")
        p.salu("s_cmp_eq_u32", sROLE, 2)
        p.raw("s_cbranch_scc1 LpollC")
        allr = [rv[i].sub(k) for i in range(4) for k in range(4)]
        p.valu("v_max_u32", t[1], allr[0], allr[1])
        for i in range(2, 16, 2):
            p.valu("v_max3_u32", t[1], t[1], allr[i], allr[i + 1])
        p.valu("v_cmp_eq_u32", "vcc", -1, t[1])
        p.nop(5)
        p.raw("s_cbranch_vccz LpollR")
        self.poll_loads(p, True)
        p.raw(ret)
        self.p = p2 = Prog()
        p2.lines.append("LpollR:")
        for k in range(4):
            p2.valu("v_add_f32", rv[0].sub(k), rv[0].sub(k), rv[1].sub(k))
            p2.valu("v_add_f32", rv[3].sub(k), rv[2].sub(k), rv[3].sub(k))
            p2.valu("v_add_f32", rv[3].sub(k), rv[0].sub(k), rv[3].sub(k))
        for k in range(4):
            self.lane_sum64(rv[3].sub(k), t[1])
            p2.valu("v_min_u32", rv[3].sub(k), -2, rv[3].sub(k))
        p2.salu("s_lshl_b32", sT1, S(2), 4)
        p2.salu("s_add_u32", sT1, sT1, WS_TOT)
        p2.valu("v_lshlrev_b32", t[1], 9, t[0])
        p2.raw("s_mov_b64 exec, 0xff")
        p2.buf_store("buffer_store_dwordx4", rv[3], t[1], sWS, sT1, flags="sc1")
        p2.raw("s_mov_b64 exec, -1")
        p2.salu("s_mov_b32", sROLE, 2)
        self.poll_loads(p2, False)
        self.gamma_loads(p2)
        p2.raw(ret)
        self.p = p3 = Prog()
        p3.lines.append("LpollC:")
        p3.valu("v_max3_u32", t[1], tv[0], tv[1], tv[2])
        p3.valu("v_max3_u32", t[1], t[1], tv[3], tv[4])
        p3.valu("v_max_u32", t[1], t[1], tv[5])
        p3.valu("v_cmp_eq_u32", "vcc", -1, t[1])
        p3.nop(5)
        p3.raw("s_cbranch_vccz LpollS")
        self.poll_loads(p3, False)
        p3.raw(ret)
        self.p = p4 = Prog()
        p4.lines.append("LpollS:")
        p4.salu("s_mov_b32", sT0, f2u(1.0 / (GA * GA)))
        p4.valu("v_mov_b32", t[2], f2u(1e-6))
        for i in range(6):
            p4.valu("v_fma_f32", tv[i], tv[i], sT0, t[2])
            p4.valu("v_sqrt_f32", tv[i], tv[i])
            p4.valu("v_lshlrev_b32", gv[i], 16, gv[i])
        p4.valu("v_add_f32", t[3], tv[0], tv[1])
        for i in range(2, 6):
            p4.valu("v_add_f32", t[3], t[3], tv[i])
        self.lane_sum64(t[3], t[1])
        p4.salu("s_mov_b32", sT0, f2u(1.0 / 384))
        p4.valu("v_fma_f32", t[3], t[3], sT0, t[2])
        p4.valu("v_rcp_f32", t[3], t[3])
        for i in range(6):
            p4.valu("v_mul_f32", tv[i], tv[i], t[3])
            p4.valu("v_fma_f32", tv[i], tv[i], gv[i], "1.0")
            p4.valu("v_mul_f32", tv[i], f2u(1.0 / GA), tv[i])
        p4.salu("s_mov_b32", sROLE, 0)
        p4.nop(2)
        p4.raw(ret)
        self.p = main
        for q in (p, p2, p3, p4):
            main.lines += q.lines

    def poll_point(self, k):
        p = self.p
        p.salu("s_cmp_eq_u32", sROLE, 0)
        p.raw(f"s_cbranch_scc1 Lpp{k}")
        p.cond_begin()
        p.raw(f"s_call_b64 {sRET}, {'Lpolln' if self.o.get('nb', 1) else 'Lpoll'}")
        p.cond_end()
        p.lines.append(f"Lpp{k}:")

    def spin_guard(self, exit_label):
        p = self.p
        p.salu("s_cmp_eq_u32", sCNT, 0)
        p.salu("s_cbranch_scc1", exit_label)
        p.salu("s_sub_u32", sCNT, sCNT, 1)

    def gap(self):
        p, o, s = self.p, self.o, self.s
        rv, tv, gv, t = self.poll_regs()
        self.pollr = pollr = [V(128, 16), t[0], t[1], t[2], t[3], t[5], '@poll']
        T1 = self.T1
        g8 = t[4]

        def role():
            p.salu("s_mov_b32", sROLE, 0)
            p.valu("v_bfe_u32", g8, self.vA[0], 8, 2)
            p.valu("v_lshlrev_b32", g8, 3, g8)
            p.salu("s_cmp_lg_u32", sWAVE, 0)
            p.raw("s_cbranch_scc1 Lnorole")
            p.cond_begin()
            p.valu("v_subrev_u32", t[5], W1F, self.vA[0])
            p.valu("v_lshrrev_b32", t[0], 2, t[5])
            p.salu("s_cmp_lt_u32", S(2), 96)
            p.salu("s_cselect_b32", sROLE, 1, 2)
            p.raw("s_cbranch_scc1 Lred")
            self.poll_loads(p, False)
            self.gamma_loads(p)
            p.raw("s_branch Lnorole")
            p.lines.append("Lred:")
            self.poll_loads(p, True)
            p.cond_end()
            p.lines.append("Lnorole:")
            for r in range(128, 144):
                p.p_vm[r] = None
            p.raw("s_setprio 0")
        tp = s.misc(T1, role, wr=pollr + [g8, '@prio'], cost=10).t
        nl = self.pattern('nlg', '5')
        Y = self.Y1[3:]
        NG = len(self.todo)
        self.npoll = 0
        for n, j in enumerate(self.todo):
            tg = T1 + 2.1 + n
            self.gemm1(s, tg - (0.6 if n > 1 else 1.1), j, self.LN[3], Y[n % 2], True, self.ring1, span=0.5 if n > 1 else 1.0)
            self.gelu32(s, tg, Y[n % 2], nl[n % len(nl)], self.blk3[j])
        tw = tp + o.get('gb', 1.5)
        tq = V(248, 2) if not o.get('fine') else V(238, 2)
        s.misc(tw, lambda: self.await_(C_PUB, 1, tq=tq), rd=['@sums'], wr=['@tab', tq], cost=40)
        for k in (5, 8):
            s.vmem(tw, lambda k=k: self.w2_fetch(k, self.vW2), rd=['@tab', self.vW2], wr=['@w2raw'], lat=1200)
        for ti in (2, 1):
            self.ln16(s, T1 + 2, [self.LN[ti].sub(4 * f, 4) for f in range(6)])
        ta = T1 + 1.6 + NG
        tb = self.TB = ta + o.get('tb', 2.0)
        Yf = Y[NG % 2]
        self.Yr = Y[(NG + 1) % 2]
        fr = self.fr = [V(72 + 4 * k, 4) for k in range(6)] + [Yf.sub(4 * k, 4) for k in range(3)]
        bf = [V(176 + 2 * k, 2) for k in range(3)]
        u = self.u = [V(186 + i) for i in range(6)] + [Yf.sub(12 + i) for i in range(4)]
        lane, vWR = u[4], u[7:10]
        self.vH = [V(248), V(249) if not o.get('fine') else V(248)]

        def beta_loads():
            p.salu("s_mul_i32", sT0, sWAVE, 96)
            for k in range(3):
                p.buf_load("buffer_load_dwordx2", bf[k], g8, sBE, sT0, k * 32)
        s.vmem(ta, beta_loads, rd=[g8], wr=bf, lat=800)

        def addr():
            self.lane(lane)
            p.valu("v_lshl_add_u32", u[0], lane, 4, sPRIV)
            for k in range(3):
                p.salu("s_mul_i32", sT0, sWAVE, 3)
                p.salu("s_add_u32", sT0, sT0, k)
                p.salu("s_and_b32", sT1, sT0, 1)
                p.salu("s_mul_i32", sT1, sT1, 3072 - 8)
                p.salu("s_mul_i32", sT0, sT0, 3072)
                p.salu("s_sub_u32", sT0, sT0, sT1)
                p.salu("s_add_u32", sT0, sT0, R2)
                p.valu("v_lshl_add_u32", vWR[k], lane, 4, sT0)
            p.valu("v_lshl_add_u32", u[1], g8, 2, sPRIV)
            p.valu("v_and_b32", u[3], 3, lane)
            for bit, sh in ((2, 3), (3, 2), (4, 6), (5, 5)):
                p.valu("v_bfe_u32", u[5], lane, bit, 1)
                p.valu("v_lshl_add_u32", u[3], u[5], sh, u[3])
            p.valu("v_lshlrev_b32", u[3], 4, u[3])
            for i in range(2):
                p.valu("v_add_u32", self.vH[i], W1F + 36 * 1024 * i, u[3])
            p.valu("v_min_u32", u[3], 11, lane)
            p.salu("s_mul_i32", sT0, sWAVE, 12)
            p.valu("v_add_u32", u[3], sT0, u[3])
            p.valu("v_cmp_gt_u32", "vcc", 64, u[3])
            p.valu("v_lshlrev_b32", u[3], 2, u[3])
            p.valu("v_add_u32", u[6], R2 + SCO + 128, u[3])
            p.valu("v_add_u32", u[5], HOLE[1], u[3])
            p.valu("v_add_u32", u[3], HOLE[0] - 256, u[3])
            p.valu("v_cndmask_b32", u[3], u[3], u[5], "vcc")
            p.valu("v_add_u32", u[2], sPRIV, g8)
        s.misc(ta, addr, rd=[g8], wr=u + self.vH, cost=130)
        s.misc(T1 + 1.5, lambda: p.wait(vm=self.w2_tok0), rd=['@w2t0'], wr=['@w2ok0'])
        s.misc(ta + 1.1, lambda: p.wait(vm=self.w2_tok), rd=['@w2raw'], wr=['@w2ok1'])
        for k in (0, 3, 6, 1, 4, 7, 2, 5, 8):
            for y in range(2):
                s.ds_read(ta + 0.3 * (k % 3), "ds_read_b64_tr_b16", fr[k].sub(2 * y, 2), u[0], k * 1024 + y * 8, rd=['@w2ok%d' % (k in (5, 8))])
        bacc = V(120, 8)

        def partial(T):
            p._mem_issue(list(bacc.regs()) + list(fr[3].regs()), [])
            p.salu("s_mov_b32", "exec_lo", 0x00010001)
            p.salu("s_mov_b32", "exec_hi", 0x00010001)
            for y in range(2):
                p.ds_write("ds_write_b128", u[1], bacc.sub(4 * y, 4), SCO + 128 + T * 128 + y * 16)
            p.raw("s_mov_b64 exec, -1")
        for T in range(3):
            tt = ta + 0.3 + 0.5 * T
            for k in range(3):
                for y in range(2):
                    d = bacc.sub(4 * y, 4)
                    s.mfma(tt, d, fr[k * 3 + T].sub(2 * y, 2), bf[k], d if k else 0)
            s.misc(tt + 0.25, lambda T=T: partial(T), rd=[bacc, u[1], fr[3], '@ba'], cost=10)
            for k in range(3):
                f = fr[k * 3 + T]
                for i in range(4):
                    w = V(182 + 2 * (i % 2), 2)
                    tc = tt + 0.05 + 0.04 * (4 * k + i)
                    s.valu(tc, "v_lshlrev_b32", w.sub(0), 16, f.sub(i))
                    s.valu(tc, "v_and_b32", w.sub(1), 0xFFFF0000, f.sub(i))
                    s.valu(tc, "v_cvt_pk_f16_f32", f.sub(i), w.sub(0), w.sub(1), rd=['@ba'])
        k = tp + 0.8
        while k < tb:
            self.poll_op(k)
            k += o.get('pi', 0.3)
        self.prio_steps(s, tp + o.get('gp', 2.0), tb)
        self.code_pf(s, [T1 + 2, tb - 1])
        self.fine(s, [T1 - 2 + 0.5 * k for k in range(40)], 'mid')

        def ba():
            self.stamp(120)
            p.wait_all(vm=False)
            p.barrier()
            p.raw("s_setprio 2")
        s.misc(tb, ba, wr=['@ba', '@prio', '@bar'] + ([bacc] if o.get('stamps') else []))
        bs = [V(176 + i) for i in range(8)]
        for k in range(8):
            s.ds_read(tb, "ds_read_b32", bs[k], u[6], 9216 * k, rd=['@ba'])
        for k in range(1, 8):
            s.valu(tb, "v_add_f32", bs[0], bs[0], bs[k])
        s.ds_write(tb, "ds_write_b32", u[3], bs[0], rd=['@b4'])

    def poll_op(self, t):
        self.npoll += 1
        self.s.misc(t, lambda k=self.npoll: self.poll_point(k), wr=self.pollr)

    def fold(self, t):
        p, o, s, u, fr = self.p, self.o, self.s, self.u, self.fr
        rv, tv, gv, _ = self.poll_regs()
        lane, vWR = u[4], u[7:10]
        ad = [V(176 + i) for i in range(6)]

        def b4():
            p._mem_issue([], [r.b for r in ad])
            p.salu("s_cmp_lg_u32", sWAVE, 0)
            p.raw("s_cbranch_scc1 Lspinx")
            p.cond_begin()
            p.raw("s_setprio 3")
            for i, a in enumerate(ad):
                p.valu("v_add_u32", a, 64 * i, lane)
                p.valu("v_mul_u32_u24", u[5], 1366, a)
                p.valu("v_lshrrev_b32", u[5], 16, u[5])
                p.valu("v_mul_u32_u24", u[5], 9216 - 96, u[5])
                p.valu("v_lshl_add_u32", a, a, 1, u[5])
                p.valu("v_add_u32", a, R2 + SCO, a)
            p.lines.append("Lspin:")
            p.salu("s_cmp_eq_u32", sROLE, 0)
            p.raw("s_cbranch_scc1 Lspiny")
            self.spin_guard("Lspiny")
            p.raw(f"s_call_b64 {sRET}, Lpoll")
            p.raw("s_branch Lspin")
            p.lines.append("Lspiny:")
            for i in range(6):
                p.valu("v_cvt_f16_f32", tv[i], tv[i])
                p.ds_write("ds_write_b16", ad[i], tv[i])
            p.raw("s_waitcnt lgkmcnt(0)")
            p.cond_end()
            p.lines.append("Lspinx:")
            p.wait_all(vm=False)
            self.stamp(176)
            p.barrier()
            self.stamp(176)
        s.misc(t, b4, rd=[lane, '@ba'], wr=self.pollr + ad + [u[5], '@b4', '@bar', '@prio'], cost=20)
        sc = [V(176 + 2 * k, 2) for k in range(3)]
        for k in range(3):
            s.ds_read(t, "ds_read_b64", sc[k], u[2], SCO + 32 * k, rd=['@b4'])
        s.misc(t, lambda: p._mem_deps([r for v in sc for r in v.regs()]), rd=sc, wr=['@sc'])
        for k in range(3):
            for T in range(3):
                f = fr[k * 3 + T]
                for i in range(4):
                    s.valu(t, "v_pk_mul_f16", f.sub(i), f.sub(i), sc[k].sub(i & 1))
                    if o.get('tw', 1):
                        s.valu(t, "v_add_u32", f.sub(i), 0x00040004, f.sub(i))
                        s.valu(t, "v_and_b32", f.sub(i), sM, f.sub(i))
                for y in range(2):
                    s.ds_write(t, "ds_write_b64", vWR[k], f.sub(2 * y, 2), (3 * y + T) * 1024, rd=['@sc', '@w2'])

        def b5():
            p.wait_all(vm=False)
            p.barrier()
            self.stamp(176)
        s.misc(t + o.get('tf', 0.5), b5, wr=['@w2', '@bar'] + (sc if o.get('stamps') else []))

    def ln16(self, s, t, ln):
        for u in range(3):
            for i in range(4):
                s.swap(t, 16, ln[2 * u].sub(i), ln[2 * u + 1].sub(i))

    def xo(self, store, reg, h, T):
        o = self.o
        if ('o' if store else 'x') in o.get('x_no', ''):
            return
        if store:
            self.p.buf_store("buffer_store_dwordx4", reg, self.vG, sOUT, sTILE[h[0]], 64 * T + 192 * h[1], flags=o.get('osf', 'sc1').replace('+', ' '))
        else:
            self.p.buf_load("buffer_load_dwordx4", reg, self.vG, sX, sTILE[h[0]], 64 * T + 192 * h[1], flags=o.get('xlf', ''))

    def phase2(self):
        p, o, s = self.p, self.o, self.s
        halves = [(2, 0), (2, 1), (1, 0), (1, 1), (0, 0), (0, 1)]
        groups = [[(3, 0), (3, 1)]]
        for n in self.pattern('grp', '33'):
            groups.append(halves[:n])
            halves = halves[n:]
        assert not halves
        P0 = self.TB + 0.1
        F0 = o.get('rt', 2.2)
        G0 = F0 + o.get('tf', 0.5) + 0.05
        frac = o.get('f2', 0.84)
        g2 = o.get('g2', 0.15)
        prod, t = [], P0 + G0
        for g in range(1, len(groups)):
            for j in range(12):
                for z in range(2):
                    d = len(groups[g]) / 4
                    prod.append((P0 if not prod else t, d, g, j, z))
                    t += d if len(prod) > 1 else 0
        steps = [(0, j) for j, _ in self.fifo] + [(g, j) for g in range(1, len(groups)) for j in range(12)]
        wt = [0]
        for g, _ in steps:
            wt.append(wt[-1] + len(groups[g]))
        NQ = len(steps)
        lb = {steps.index((g, j)): t + d + g2 + o.get('lag', 1.45) for t, d, g, j, z in prod if z}
        b0, bt = o.get('b0', 7), o.get('bt', 2.4)
        tt = [P0 + G0 + bt * q / b0 for q in range(b0 + 1)]
        if o.get('b1', 6):
            tt += [tt[-1] + (o.get('b1', 6) - bt) * (q - b0) / (12 - b0) for q in range(b0 + 1, 13)]
        cq = o.get('cq', 19)
        if cq:
            q0 = len(tt) - 1
            tt += [max(lb.get(q, 0), tt[q0] + (lb[cq] - tt[q0]) * (wt[q] - wt[q0]) / (wt[cq] - wt[q0])) for q in range(q0 + 1, cq + 1)]
        while len(tt) < NQ:
            q0 = len(tt) - 1
            sl, q1 = max(((lb[q] - tt[q0]) / (wt[q] - wt[q0]), q) for q in lb if q > q0)
            tt += [tt[q0] + sl * (wt[q] - wt[q0]) for q in range(q0 + 1, q1 + 1)]
        tt.append(tt[-1] + 0.7)
        tq = tt.__getitem__

        def units(g):
            out = {}
            for h in groups[g]:
                for T in range(3):
                    out.setdefault((h[0], (3 * h[1] + T) // 2), []).append((h, T))
            return list(out.values())

        events = [(P0 + F0, 3, 0, 0)]
        for q in range(NQ):
            for k in range(7):
                events.append((tq(q) + (tq(q + 1) - tq(q)) * min(k, 5.9) / 6, 2, q, k))
        for e, (t, d, g, j, z) in enumerate(prod):
            for u in range(3):
                events.append((t + d * u / 3, 0, e, u))
        events.sort()
        e0 = min(e for e, x in enumerate(prod) if (0, 0) in groups[x[2]])

        def record(s, want, dry):
            line = []
            quads = lambda v: [v.sub(i, 4) for i in range(0, v.n, 4)]
            nring = o.get('nring', 5)
            ring = (self.ring1 + [V(120, 4), V(124, 4)])[:nring]
            small = [V(120, 4), V(124, 4)]
            pool = quads(self.Yr)
            aq = [V(b, 4) for b in (128, 132, 136, 140, 240, 244, 72, 76, 80, 84, 88, 92)]
            ACC = {(h, T, y): aq[6 * h[1] + 2 * T + y] for h in groups[0] for T in range(3) for y in range(2)}
            ent = {((3, v), j): b.sub(4 * v, 4) for j, b in self.fifo for v in range(2)}
            LNq = {(ti, v): [self.LN[ti].sub(8 * u + 4 * v, 4) for u in range(3)] for ti in (1, 2) for v in range(2)}
            idf = V(16, 8)

            xuse = {}
            ln0 = []
            back = []
            low = [99, 0]

            def take(t):
                if len(pool) - 1 < low[0]:
                    low[:] = [len(pool) - 1, t - P0]
                assert pool, ('out of registers', t - P0)
                line.append((t, len(pool) - 1))
                return pool.pop(0)

            def bias(h, T, y, t):
                s.ds_read(t, "ds_read_b128", ACC[h, T, y], self.vBias, (0x2000 + 128 * T if T < 2 else 0) + y * 16, rd=['@b4'])

            def wread(t, addr, off, rg=ring, rd=()):
                w = self.ring(rg)
                s.ds_read(t - o.get('lead', 0.8), "ds_read_b128", w, addr, off, rd=rd)
                return w

            npair = nlut = 0
            Y = {}
            for t, kind, i, k in events:
                back.sort(key=lambda x: x[0])
                while back and back[0][0] <= t:
                    pool.append(back.pop(0)[1])
                while want and want[0][0] <= t:
                    _, q, pcs = want.pop(0)
                    if q == -2:
                        k_ = self.rc[id(ring)] % len(ring)
                        ring.insert(k_, take(t))
                        self.rc[id(ring)] = k_
                        if o.get('show'):
                            print(f'ring+ at {t - P0:.1f}', end='; ')
                        continue
                    if q < 0:
                        for f in (2 * pcs, 2 * pcs + 1):
                            d = take(t)
                            ln0.append(d)
                            if 'l' not in o.get('x_no', ''):
                                s.vmem(t, lambda f=f, d=d: self.ws_frag(f, lambda so: p.buf_load(
                                    "buffer_load_dwordx4", d, self.vA[0], sWS, so, flags=o.get('rlf', ''))), wr=[d], lat=o.get('xlat', 2000))
                        if o.get('show') and not dry:
                            print(f'ln at {t - P0:.1f} for {prod[e0][0] - P0:.1f}', end='; ')
                        continue
                    if o.get('show') and not dry:
                        print(f'x at {t - P0:.1f} for {tq(q + 1) - P0:.1f}', end='; ')
                    xuse[q] = [(h, T, take(t)) for h, T in pcs]
                    for h, T, d in xuse[q]:
                        s.vmem(t, lambda d=d, h=h, T=T: self.xo(False, d, h, T), wr=[d], lat=o.get('xlat', 2000))
                line.append((t, len(pool)))
                if kind == 3:
                    if not dry:
                        for k in range(int(F0 / o.get('pi', 0.3))):
                            self.poll_op(P0 + o.get('pi', 0.3) * k)
                        self.fold(t)
                    for T in range(3):
                        for y in range(2):
                            bias(groups[0][0], T, y, t + 0.3)
                    pool += quads(V(304 - self.Yr.b, 16)) + [V(120, 4), V(124, 4)][nring - 4:]
                    continue
                if kind == 0:
                    t0, d, g, j, z = prod[i]
                    G = groups[g]
                    if k == 0:
                        if i == e0:
                            while dry and len(ln0) < 6:
                                ln0.append(take(t))
                            self.ln16(s, t - 1.0, ln0)
                            for v in range(2):
                                LNq[0, v] = ln0[v::2]
                        Y = {h: take(t) for h in G}
                    w = wread(t, self.vH[j // 6], ((j % 6) * 6 + 2 * k) * 1024 + 256 * z, small if i == 0 else ring)
                    for n, h in enumerate(G):
                        s.mfma(t + d * n / (3 * len(G)), Y[h], w, LNq[h][k], Y[h] if k else 0)
                        if j == 11 and z == 1:
                            back.append((t + d / 3, LNq[h][k]))
                    if k < 2:
                        continue
                    if z == 0:
                        ent.update({(h, j): Y[h] for h in G})
                    npair += 2 * len(G) * (frac if t - P0 > o.get('ft', 14) else o.get('f2a', frac))
                    nl = max(len(G), min(2 * len(G), round(npair) - nlut))
                    nlut += nl
                    nt = 2 * len(G) - nl
                    order = [(h, 0) for h in G[nt:]] + [(h, 1) for h in G] + [(h, 0) for h in G[:nt]]
                    self.gelu(s, t0 + d + g2, [Y[h].sub(2 * m, 2) for h, m in order], nl,
                              dst=[ent[h, j].sub(2 * z + m) for h, m in order], span=d)
                    if z:
                        back += [(t0 + d + g2 + o.get('fin', 0.9) + o.get('lw', 0.55) * d, Y[h]) for h in G]
                    continue
                q = i
                g, j = steps[q]
                G = groups[g]
                n = q % 12
                if k < 6:
                    T, y = divmod(k, 2)
                    w = wread(t, *self.frag(72 + (2 * j + y) * 3 + T), rd=['@w2'])
                    for m, h in enumerate(G[::-1]):
                        if (h, T, y) not in ACC:
                            ACC[h, T, y] = take(t)
                        d = ACC[h, T, y]
                        s.mfma(t + m * (tq(q + 1) - tq(q)) / (6 * len(G)), d, w, ent[h, j], d if n else ACC[G[0], T, y], 'f16')
                    continue
                if q != 2:
                    pool += [ent[h, j] for h in G]
                else:
                    for m in range(6):
                        if m in (2, 3):
                            s.valu(t, "v_cndmask_b32", idf.sub(m), 0, self.vI, sIX[m - 2])
                        else:
                            s.valu(t, "v_mov_b32", idf.sub(m), 0)
                assert all(w_[1] != q for w_ in want), ('late x', q)
                for h, T, x in xuse.get(q, ()):
                    for y in range(2):
                        s.mfma(t, ACC[h, T, y], idf.sub(2 - 2 * y, 4), x, ACC[h, T, y])
                    pool.append(x)
                if n == 11:
                    more = g + 1 < len(groups)
                    for T in range(3):
                        tt_ = t + 0.05 * T - 0.3
                        free = []
                        for h in G:
                            for m in range(4):
                                a_ = ACC[h, T, m >> 1]
                                s.valu(tt_, "v_cvt_pk_bf16_f32", ACC[h, T, 0].sub(m), a_.sub(2 * (m & 1)), a_.sub(2 * (m & 1) + 1))
                            free.append(ACC[h, T, 1])
                        if more:
                            for y in range(2):
                                ACC[groups[g + 1][0], T, y] = free.pop(0)
                                bias(groups[g + 1][0], T, y, tt_)
                        pool += free
                    for m, pcs in enumerate(units(g)):
                        ts = t + 0.1 + (o.get('sg', 1.6) * m if more else 0)
                        for h, T in pcs:
                            d = ACC[h, T, 0]
                            s.vmem(ts, lambda d=d, h=h, T=T: self.xo(True, d, h, T), rd=[d], lat=0)
                            back.append((ts, d))
            return line, low

        rc = dict(self.rc)
        line, low = record(Sched(p, o), [], True)
        self.rc = rc
        wish = [(prod[e0][0] - o.get('rl0', 4.5) + o.get('rl', 1.0) * u, prod[e0][0] - 1e-6, 2, -1, u) for u in range(3)]
        for g in range(len(groups)):
            xs = [int(c, 16) for c in str(o.get(f'xq{g}', ('9ab', '4579b', '6789a', '89a')[g]))]
            for n, pcs in zip(xs, units(g)):
                q = 12 * g + n
                wish.append((tq(q) - o.get('xlead', 5.0), tq(q + 1), len(pcs), q, pcs))
        wish += [(P0 + G0, 1e9, 1, -2, None) for _ in range(o.get('rx', 3))]
        want = []
        for t0, t1, n, q, pay in wish:
            for t, f in line:
                if t0 <= t <= t1 and f < n + o.get('xres', 0):
                    t0 = t + 1e-6
            line = [(t, f - n if t0 <= t <= t1 else f) for t, f in line]
            want.append((t0, q, pay))
        want.sort(key=lambda x: x[0])
        line, low = record(s, want, False)
        if o.get('show'):
            print('fewest free quads', low, 'group ends', [round(tq(12 * g) - P0, 1) for g in range(1, len(groups) + 1)])
        pe = o.get('pe', 0)
        self.prio_steps(s, P0 + G0, tq(NQ) + 0.4 - pe, 'pp2')
        for k, f in enumerate((1.0, 0.6, 0.3, 0.12) if pe else ()):
            self.setprio(s, tq(NQ) + 0.4 - pe * f, 3 - k)
        self.fine(s, [P0 + G0 + e for e in range(38)], 'p2')
        s.run(tag='all')
        for tag in ('p1', 'mid', 'p2'):
            self.fine_flush(tag)
        if o.get('fine') == 'su':
            self.nfine += 2
            self.fine_flush('su')
        self.stamp(168)

    def build(self):
        self.alloc()
        self.vW1g, self.vW1r, self.vW1w = V(115), V(116), V(117)
        self.prologue()
        self.phase1()
        self.gap()
        self.phase2()
        if self.o.get('x_pad'):
            p = self.p
            p.raw("s_waitcnt vmcnt(0)")
            p.lines.append("Lpad:")
            p.raw(f"s_memrealtime {sRT}")
            p.raw("s_waitcnt lgkmcnt(0)")
            p.salu("s_sub_u32", sT0, sRT.sub(0), S(100))
            p.salu("s_cmp_lt_u32", sT0, self.o['x_pad'])
            p.raw("s_cbranch_scc1 Lpad")
        self.p.raw("s_endpgm")
        self.poll_routine()
        self.p.lines.append("Lend:")
        self.p.raw("s_endpgm")
        return self.p


HEADER = open('standalone__modern_conv_block_convnext_v2__vision.s.ref').read().split('; Override launch')[0]


def wrap(p):
    return f"""{HEADER}; Generated by gen/gen6.py (hand-written generator; see gen/asmgen.py, gen/sched.py)
; @launch grid=(256,1,1) block=(512,1,1) lds={LDS_BYTES}
.amdgcn_target "amdgcn-amd-amdhsa--gfx950"
.text
.globl {NAME}
.p2align 8
.type {NAME},@function
{NAME}:
{p.text()}
.section .rodata,"a"
.p2align 6
.amdhsa_kernel {NAME}
  .amdhsa_next_free_vgpr 256
  .amdhsa_next_free_sgpr 102
  .amdhsa_accum_offset 256
  .amdhsa_group_segment_fixed_size 0
  .amdhsa_kernarg_size 72
  .amdhsa_user_sgpr_count 2
  .amdhsa_user_sgpr_kernarg_segment_ptr 1
  .amdhsa_system_sgpr_workgroup_id_x 1
.end_amdhsa_kernel
"""


def parse(args):
    opt = {}
    for a in args:
        k, v = a.split('=')
        if k.startswith(('nl', 'keep', 'sp0', 'sp1', 'xq', 'grp')):
            opt[k] = v
            continue
        try:
            opt[k] = int(v)
        except ValueError:
            try:
                opt[k] = float(v)
            except ValueError:
                opt[k] = v
    return opt


if __name__ == '__main__':
    out = sys.argv[1]
    opt = parse(sys.argv[2:])
    g = Gen(opt)
    p = g.build()
    from align import align_dp
    al = align_dp(p.lines)
    open(out, 'w').write(wrap(p))
    print(out, 'align', al, 'instructions', sum(p.stats.values()), 'stamps', g.nstamp,
          {k: v for k, v in p.stats.items() if k in ('s_nop', 's_waitcnt', 'ds_read_b128', 'ds_read_u16')})
```

```python
import math
import struct
import sys

from asmgen import *
from sched import Sched

NAME = 'standalone__modern_conv_block_convnext_v2__vision_kernel'


def f2u(x):
    return struct.unpack('<I', struct.pack('<f', x))[0]


def h2u(x):
    return struct.unpack('<H', struct.pack('<e', x))[0]


C2 = -2 * math.sqrt(2 / math.pi) * math.log2(math.e)
C1 = C2 * 0.044715
GA = -(abs(C1) ** (1.0 / 3.0))
GK = C2 / GA

HOLE = (0x1F00, 0x3F00)
W1F = 16384
R2 = W1F + 73728
RS = 6592
DIAG = R2 + 10 * RS
CNT = HOLE[0] + 192
C_PUB, C_W1A, C_W1B, C_F, C_T2 = 4, 8, 12, 16, 32
SCO = 3072
TABO = 5120
LDS_BYTES = 163840
WS_P = 0
WS_TOT = 96 * 256 * 16
WS_STAMP = 1 << 20
WS_LN = 4 << 20
WS_BYTES = 80 << 20
OOB_V = 0x80000000
OOB_S = 0x40000000
X_BYTES = 512 * 512 * 96 * 2
ROWB = 512 * 192
LO = "dst_sel:WORD_0 dst_unused:UNUSED_PRESERVE src0_sel:WORD_0"
HI = "dst_sel:WORD_1 dst_unused:UNUSED_PRESERVE src0_sel:WORD_1"

sX, sOUT, sW1, sW2, sDW, sGA, sBE, sWS, sDBG = [S(4 + 4 * i, 4) for i in range(9)]
sWAVE, sX0, sY0, sT0, sT1, sT2, sT3 = [S(40 + i) for i in range(7)]
sK, sM, sA = S(48), S(49), S(47)
sID = [S(50 + 2 * i, 2) for i in range(8)]
sIX = [S(88, 2), S(90, 2)]
sD4 = [S(92, 2), S(94, 2)]
sYB, sXM = S(66), S(67)
sTILE = [S(68 + i) for i in range(4)]
sPRIV = S(72)
sSTAMP = S(73)
sEX = S(74, 2)
sCNT = S(76)
sROLE = S(77)
sRET = S(78, 2)
sLNB, sSL, sW2B, sFC = S(80), S(81), S(82), S(83)
sLD = S(80, 16)
sTM = S(96, 2)
sRT = S(98, 2)


class Gen:
    def __init__(self, opt):
        self.o = opt
        self.p = Prog()
        self.p.rawpad, self.p.warpad = opt.get('rawpad', 0), opt.get('warpad', 0)
        self.nstamp = 0
        self.rc = {}

    def stamp(self, tb):
        p = self.p
        if self.o.get('dbgs'):
            self.nstamp += 1
            reg = {3: 84, 4: 85, 8: 86, 9: 87}.get(self.nstamp)
            if reg:
                p.raw(f"s_memrealtime {sRT}")
                p.raw("s_waitcnt lgkmcnt(0)")
                p.lgkm_done = p.lgkm_seq
                p.salu("s_mov_b32", S(reg), sRT.sub(0))
            if self.nstamp == 9:
                p.salu("s_cmp_lg_u32", sWAVE, 7)
                p.raw("s_cbranch_scc1 Ldbgx")
                p.salu("s_mul_i32", sT0, S(2), 1285)
                p.salu("s_add_u32", sT0, sT0, 1284)
                p.salu("s_lshr_b32", sT0, sT0, 16)
                p.salu("s_mul_i32", sT1, sT0, 51)
                p.salu("s_cmp_lg_u32", sT1, S(2))
                p.raw("s_cbranch_scc1 Ldbgx")
                p.salu("s_mul_i32", sT0, sT0, 12)
                p.valu("v_mov_b32", V(0), 4)
                for i in range(3):
                    p.salu("s_sub_u32", sT1, S(85 + i), S(100))
                    p.valu("v_mov_b32", V(2 + i), sT1)
                p.raw("s_mov_b64 exec, 1")
                p.raw(f"buffer_store_dwordx3 v[2:4], v0, {sDBG}, {sT0} offen")
                p.lines.append("Ldbgx:")
            return
        if not self.o.get('stamps'):
            return
        t = V(tb, 4)
        p.raw(f"s_memtime {sTM}")
        p.raw(f"s_memrealtime {sRT}")
        p.raw("s_waitcnt lgkmcnt(0)")
        p.lgkm_done = p.lgkm_seq
        for i in range(4):
            p.valu("v_mov_b32", t.sub(i), S(sTM.b + i))
        p.salu("s_sub_u32", sT0, sSTAMP, W1F)
        if self.o.get('dbgt'):
            p.valu("v_mov_b32", t.sub(0), 0)
        p.raw("s_mov_b64 exec, 1")
        if self.o.get('dbgt'):
            p.buf_store("buffer_atomic_umax", t.sub(2), t.sub(0), sDBG, 0, 8 + 4 * self.nstamp)
        else:
            p.buf_store("buffer_store_dwordx4", t, self.vA[0], sWS, sT0, 16 * self.nstamp)
        p.raw("s_mov_b64 exec, -1")
        p.nop(2)
        self.nstamp += 1

    def fine(self, s, times, tag):
        if self.o.get('fine') != tag:
            return
        p = self.p

        def one(k):
            if k:
                p.raw(f"v_writelane_b32 v249, s{84 + 2 * ((k - 1) % 2)}, {k - 1}")
            p.raw(f"s_memtime s[{84 + 2 * (k % 2)}:{85 + 2 * (k % 2)}]")
        for k, t in enumerate(times):
            s.misc(t, lambda k=k: one(k), wr=['@fine'])
        self.nfine = len(times)

    def mark(self):
        if self.o.get('fine') != 'su':
            return
        k = self.nfine = getattr(self, 'nfine', -1) + 1
        self.p.raw("s_memtime s[100:101]")
        self.p.raw("s_waitcnt lgkmcnt(0)")
        self.p.raw(f"v_writelane_b32 v249, s100, {k}")

    def fine_flush(self, tag):
        if self.o.get('fine') != tag:
            return
        p, k = self.p, self.nfine
        p.raw(f"s_memtime s[{84 + 2 * (k % 2)}:{85 + 2 * (k % 2)}]")
        p.raw("s_waitcnt lgkmcnt(0)")
        for i in (k - 1, k):
            p.raw(f"v_writelane_b32 v249, s{84 + 2 * (i % 2)}, {i}")
        p.salu("s_lshl_b32", sT0, S(2), 3)
        p.salu("s_add_u32", sT0, sT0, sWAVE)
        p.salu("s_lshl_b32", sT0, sT0, 10)
        p.salu("s_add_u32", sT0, sT0, (2 << 20) - W1F)
        p.buf_store("buffer_store_dword", V(249), self.vA[0], sWS, sT0)

    def frag(self, idx):
        return self.vA[idx >> 6], (idx & 63) * 1024

    def ring(self, rg):
        k = self.rc.get(id(rg), 0)
        self.rc[id(rg)] = k + 1
        return rg[k % len(rg)]

    def srd(self, d, ptr, nbytes):
        p = self.p
        p.salu("s_mov_b32", d.sub(0), ptr.sub(0))
        p.salu("s_and_b32", d.sub(1), ptr.sub(1), 0xFFFF)
        p.salu("s_mov_b32", d.sub(2), nbytes)
        p.salu("s_mov_b32", d.sub(3), 0x20000)

    def lane_sum64(self, v, t):
        p = self.p
        for r in (8, 4, 2, 1):
            p.valu("v_add_f32_dpp", v, v, v, mods=f"row_ror:{r} row_mask:0xf bank_mask:0xf")
        p.valu("v_mov_b32", t, v)
        p.swap16(v, t)
        p.valu("v_add_f32", v, v, t)
        p.valu("v_mov_b32", t, v)
        p.swap32(v, t)
        p.valu("v_add_f32", v, v, t)

    def lane(self, dst):
        self.p.valu("v_bfe_u32", dst, self.vA[0], 4, 6)

    def call_if(self, older, names, tag):
        p = self.p
        p.salu("s_cmp_lt_u32" if older else "s_cmp_ge_u32", sWAVE, 4)
        p.raw(f"s_cbranch_scc0 {tag}")
        p.cond_begin()
        for n in names:
            p.raw(n if n.startswith("s_") else f"s_call_b64 {sRET}, {n}")
        p.cond_end()
        p.lines.append(f"{tag}:")

    def alloc(self):
        self.LN = [V(24 * t, 24) for t in range(4)]
        self.CA = [V(0, 48), V(48, 48), V(48, 48), V(96, 48)]
        self.Y1 = [V(96 + 16 * i, 16) for i in range(self.o.get('ny', 5))]
        self.ring1 = [V(176 + 4 * i, 4) for i in range(4)]
        self.ringA = [V(192 + 4 * i, 4) for i in range(5)]
        self.ringB = [V(144 + 4 * i, 4) for i in range(8)]
        self.vB = [V(212 + i) for i in range(4)]
        self.ls = [[V(240, 2), V(242, 2), V(244, 2)], [V(216, 2), V(218, 2), V(220, 2)]]
        self.tq = V(222, 2)
        self.SQ = [V(224 + i) for i in range(12)]
        self.vX, self.vC = [V(236), V(237)], [V(238), V(239)]
        self.vB0, self.vCnt, self.vS = V(246), V(247), V(248)
        self.vA = [V(250), V(251), V(252)]
        self.vG, self.vBias, self.vI = V(253), V(254), V(255)
        hexs = lambda k, d: [int(c, 16) for c in str(self.o.get(k, d)) if c != 'n']
        self.keep = hexs('keep', '2345678ab')
        self.sp = {0: hexs('sp0', 'n'), 1: hexs('sp1', 'n'), 2: [], 3: []}
        self.spi = {(ti, j): 6 + 2 * n for n, (ti, j) in enumerate((ti, j) for ti in (0, 1) for j in self.sp[ti])}
        fifo = [0, 8, 16, 96, 104, 192, 200, 208, 224, 112, 216, 232]
        late = {j: b for j, b in ((10, 96), (11, 104)) if j in self.keep}
        rest = [j for j in self.keep if j not in late]
        assert len(rest) <= 6 or (len(rest) == 7 and rest[6] >= 8)
        late.update(zip(rest, [0, 8, 16, 192, 200, 208, 224]))
        self.todo = [j for j in range(12) if j not in self.keep]
        col = {b: j for j, b in late.items()}
        col.update(zip([b for b in fifo if b not in col], self.todo))
        self.fifo = [(col[b], V(b, 8)) for b in fifo]
        self.blk3 = {j: b for j, b in self.fifo}
        self.vW2 = V(246)

    def signal(self, off, dyn=False):
        p = self.p
        a, b = self.tq.sub(0), self.tq.sub(1)
        p.valu("v_mov_b32", b, 1)
        if dyn:
            p.valu("v_add_u32", a, sFC, self.vCnt)
        p.wait_all(vm=False)
        p.raw("s_mov_b64 exec, 1")
        p.ds_write("ds_add_u32", a if dyn else self.vCnt, b, off)
        p.raw("s_mov_b64 exec, -1")

    def await_(self, off, n, dyn=False, tq=None):
        p = self.p
        tq = tq or self.tq
        a, b = tq.sub(0), tq.sub(1)
        k = self.nawait = getattr(self, 'nawait', 0) + 1
        if dyn:
            p.valu("v_add_u32", a, sFC, self.vCnt)
        p.valu("v_mov_b32", b, 0)
        p.raw(f"s_branch Law{k}")
        p.lines.append(f"Lax{k}:")
        p.raw("s_sleep 2")
        p.lines.append(f"Law{k}:")
        p.raw(f"ds_read_b32 {b}, {a if dyn else self.vCnt} offset:{off}")
        p.raw(f"s_sub_u32 {sCNT}, {sCNT}, 1")
        p.raw(f"s_cselect_b32 {sT1}, {n}, 0")
        p.raw(f"s_cselect_b32 {sCNT}, 0, {sCNT}")
        p.raw("s_waitcnt lgkmcnt(0)")
        p.raw(f"v_readfirstlane_b32 {sT0}, {b}")
        p.raw("s_nop 1")
        p.raw(f"s_max_u32 {sT0}, {sT0}, {sT1}")
        p.raw(f"s_cmp_lt_u32 {sT0}, {n}")
        p.raw(f"s_cbranch_scc1 Lax{k}")
        p.lgkm_seq += 1
        p.lgkm_done = p.lgkm_seq

    def row0_dma(self, R, k=0):
        p = self.p
        p.salu("s_add_u32", "m0", sXM, R * RS + ((R >> 1) & 3) * 16 + 896 * k)
        so = sYB
        if R == 0:
            p.salu("s_sub_u32", sT2, sYB, ROWB)
            p.salu("s_cmp_eq_u32", sY0, 0)
            p.salu("s_cselect_b32", sT2, OOB_S, sT2)
            so = sT2
        elif R > 1:
            p.salu("s_add_u32", sYB, sYB, ROWB)
        p.dma(self.vX[k], sX, so, flags='nt' if self.o.get('nt0', 0) else '')

    def row_dma(self, R):
        p = self.p
        p.salu("s_add_u32", sSL, sSL, RS)
        p.salu("s_cmp_eq_u32", sSL, 10 * RS)
        p.salu("s_cselect_b32", sSL, 0, sSL)
        p.salu("s_add_u32", sT0, sSL, sXM)
        p.salu("s_add_u32", "m0", sT0, ((R >> 1) & 3) * 16)
        p.salu("s_add_u32", sYB, sYB, ROWB)
        p.dma(self.vX[0], sX, sYB)
        p.salu("s_add_u32", "m0", sT0, ((R >> 1) & 3) * 16 + 896)
        self.x_tok = p.dma(self.vX[1], sX, sYB)

    def skip_round(self):
        p = self.p
        p.salu("s_add_u32", sYB, sYB, 8 * ROWB)
        p.salu("s_sub_u32", sSL, sSL, 2 * RS)

    def touch_rows(self, a, b):
        p = self.p
        self.lane(b)
        p.valu("v_and_b32", a, 15, b)
        p.valu("v_lshlrev_b32", a, 7, a)
        p.valu("v_lshrrev_b32", b, 4, b)
        p.valu("v_mul_u32_u24", b, ROWB, b)
        p.salu("s_sub_u32", sT0, sXM, R2 + 192 - ROWB)
        p.salu("s_mul_i32", sT1, sX0, 192)
        p.salu("s_add_u32", sT0, sT0, sT1)
        p.valu("v_add3_u32", a, a, b, sT0)
        p.salu("s_mov_b32", "m0", LDS_BYTES)
        p.salu("s_add_u32", sT1, sYB, 4 * ROWB)
        for so in (sYB, sT1):
            p.raw(f"buffer_load_dword {a}, {sX}, {so} offen lds")
            p.vm_seq += 1

    def conv_addr(self):
        p = self.p
        a = self.tq.sub(0)
        p.salu("s_add_u32", sT0, sSL, RS)
        for k in range(4):
            p.valu("v_add_u32", self.vB[k], sT0, self.vB0)
            if k:
                p.valu("v_add_u32", self.vB[k], k * RS, self.vB[k])
            if k >= 2:
                p.valu("v_add_u32", a, 16, self.vB[k])
                p.valu("v_bfi_b32", self.vB[k], 48, a, self.vB[k])
            p.valu("v_subrev_u32", a, 10 * RS, self.vB[k])
            p.valu("v_min_u32", self.vB[k], self.vB[k], a)
            p.valu("v_add_u32", self.vB[k], R2, self.vB[k])

    def w1_dma(self, u):
        p = self.p
        p.salu("s_and_b32", sT0, sWAVE, 3)
        p.salu("s_add_u32", sT0, sT0, 4 * u)
        p.salu("s_mul_i32", sT1, sT0, 43)
        p.salu("s_lshr_b32", sT1, sT1, 8)
        p.salu("s_lshl_b32", sT3, sT0, 10)
        p.salu("s_add_u32", "m0", sT3, W1F)
        p.salu("s_mul_i32", sT3, sT1, 6)
        p.salu("s_sub_u32", sT0, sT0, sT3)
        p.salu("s_mul_i32", sT0, sT0, 12288)
        p.salu("s_lshl_b32", sT1, sT1, 6)
        p.salu("s_add_u32", sT0, sT0, sT1)
        return p.dma(self.vW1g, sW1, sT0)

    def tr_addr(self, dst, lane, t0, hshift):
        p = self.p
        p.valu("v_lshrrev_b32", t0, 5, lane)
        p.valu("v_lshlrev_b32", dst, hshift, t0)
        p.valu("v_bfe_u32", t0, lane, 2, 2)
        p.valu("v_lshl_add_u32", dst, t0, 6, dst)
        p.valu("v_bfe_u32", t0, lane, 4, 1)
        p.valu("v_lshl_add_u32", dst, t0, 5, dst)
        p.valu("v_and_b32", t0, 1, lane)
        p.valu("v_lshl_add_u32", dst, t0, 4, dst)
        p.valu("v_bfe_u32", t0, lane, 1, 1)
        p.valu("v_lshl_add_u32", dst, t0, 3, dst)

    def prologue(self):
        p, o = self.p, self.o
        p.salu("s_cmp_ge_u32", S(2), 256)
        p.raw("s_cbranch_scc1 Lend")
        p.raw(f"s_load_dwordx16 {sLD}, s[0:1], 0")
        p.raw(f"s_load_dwordx2 {sTM}, s[0:1], 64")
        if o.get('stamps'):
            p.raw("s_memtime s[68:69]")
            p.raw("s_memrealtime s[70:71]")
        if o.get('dbgs') or o.get('x_pad'):
            p.raw("s_memrealtime s[100:101]")
        self.mark()
        tid, lane = V(119), V(118)
        t = [V(120 + i) for i in range(48)]
        p.valu("v_mov_b32", tid, V(0))
        p.valu("v_and_b32", lane, 63, V(0))
        p.valu("v_lshrrev_b32", t[0], 6, V(0))
        p.valu("v_readfirstlane_b32", sWAVE, t[0])
        p.raw(f"s_getpc_b64 {sEX}")
        p.lines.append("Lpc:")
        p.salu("s_lshr_b32", sT0, S(2), 3)
        p.salu("s_and_b32", sT0, sT0, 15)
        p.salu("s_lshl_b32", sT0, sT0, 13)
        p.valu("v_lshrrev_b32", t[2], 3, V(0))
        p.valu("v_lshl_add_u32", t[2], t[2], 7, sT0)
        p.valu("v_min_u32", t[2], "Lend-Lpc", t[2])
        if o.get('pf', 1):
            p.raw(f"global_load_dword v112, {t[2]}, {sEX}")
            p.vm_seq += 1
        p.salu("s_and_b32", sT0, S(2), 7)
        p.salu("s_lshr_b32", sT1, S(2), 3)
        p.salu("s_and_b32", sX0, sT0, 3)
        p.salu("s_lshl_b32", sX0, sX0, 2)
        p.salu("s_and_b32", sT2, sT1, 3)
        p.salu("s_add_u32", sX0, sX0, sT2)
        p.salu("s_lshr_b32", sY0, sT0, 2)
        p.salu("s_lshl_b32", sY0, sY0, 3)
        p.salu("s_lshr_b32", sT2, sT1, 2)
        p.salu("s_add_u32", sY0, sY0, sT2)
        p.salu("s_lshl_b32", sX0, sX0, 5)
        p.salu("s_lshl_b32", sY0, sY0, 5)
        p.salu("s_and_b32", sT0, sWAVE, 3)
        p.salu("s_mul_i32", sT0, sT0, 1536)
        p.salu("s_add_u32", sXM, sT0, R2)
        p.salu("s_mul_i32", sT1, sX0, 192)
        p.salu("s_add_u32", sT0, sT0, sT1)
        p.salu("s_sub_u32", sT0, sT0, 192)
        p.valu("v_lshl_add_u32", t[1], lane, 4, sT0)
        p.valu("v_add_u32", t[3], 896, t[1])
        p.valu("v_mov_b32", t[2], OOB_V)
        p.salu("s_mov_b32", sT1, ROWB)
        p.valu("v_cmp_gt_u32", "vcc", sT1, t[1])
        p.valu("v_cndmask_b32", self.vX[0], t[2], t[1], "vcc")
        p.valu("v_cmp_gt_u32", "vcc", sT1, t[3])
        p.valu("v_cndmask_b32", self.vX[1], t[2], t[3], "vcc")
        p.salu("s_mul_i32", sYB, sY0, ROWB)
        dv, di = V(126, 2), t[8]
        p.valu("v_min_u32", di, 215, tid)
        p.valu("v_lshlrev_b32", t[10], 3, di)
        p.valu("v_lshlrev_b32", self.vA[0], 4, lane)
        p.raw("s_waitcnt lgkmcnt(0)")
        self.srd(sX, sLD.sub(0, 2), X_BYTES)
        self.mark()
        p.salu("s_cmp_ge_u32", sWAVE, 4)
        p.raw("s_cbranch_scc1 Lrowb")
        p.cond_begin()
        self.srd(sDW, sLD.sub(2, 2), 1728)
        p.buf_load("buffer_load_dwordx2", dv, t[10], sDW)
        for R in range(10):
            self.row0_dma(R)
        p.raw("s_branch Lsetup")
        p.cond_end()
        p.lines.append("Lrowb:")
        p.cond_begin()
        if o.get('t0', 0):
            p.valu("v_and_b32", t[20], 7, lane)
            p.valu("v_lshlrev_b32", t[20], 7, t[20])
            p.valu("v_lshrrev_b32", t[21], 3, lane)
            p.valu("v_mul_u32_u24", t[21], ROWB, t[21])
            p.salu("s_add_u32", sT0, sT0, 896 + 64 + ROWB)
            p.valu("v_add3_u32", t[20], t[20], t[21], sT0)
            p.salu("s_mov_b32", "m0", LDS_BYTES)
            p.nop(1)
            p.raw(f"buffer_load_dword {t[20]}, {sX}, {sYB} offen lds")
        for R in range(10):
            self.row0_dma(R, 1)
        self.mark()
        self.srd(sW1, sLD.sub(4, 2), 73728)
        p.valu("v_lshrrev_b32", self.vW1g, 2, lane)
        p.valu("v_mul_u32_u24", self.vW1g, 768, self.vW1g)
        p.valu("v_and_b32", t[5], 3, lane)
        p.valu("v_lshl_add_u32", self.vW1g, t[5], 4, self.vW1g)
        tp = o.get('tp', 6)
        for u in range(6):
            self.w1_dma(u)
        if tp == 6:
            self.touch_rows(t[20], t[21])
        self.mark()
        p.raw(f"s_waitcnt vmcnt({8 if tp == 6 else 6})")
        self.mark()
        p.barrier()
        p.raw("s_setprio %d" % o.get('bp', 0))
        for u in range(6, 18):
            self.w1_dma(u)
            if u + 1 == tp:
                self.touch_rows(t[20], t[21])
        p.cond_end()
        p.lines.append("Lsetup:")
        self.mark()
        self.srd(sW2, sLD.sub(6, 2), 73728)
        self.srd(sGA, sLD.sub(8, 2), 768)
        self.srd(sBE, sLD.sub(10, 2), 768)
        self.srd(sOUT, sLD.sub(12, 2), X_BYTES)
        self.srd(sDBG, sLD.sub(14, 2), 256)
        self.srd(sWS, sTM, WS_BYTES)
        for i in range(3):
            p.valu("v_lshlrev_b32", self.vA[i], 4, lane)
            p.valu("v_add_u32", self.vA[i], W1F + 65536 * i, self.vA[i])
        p.salu("s_lshl_b32", sSTAMP, S(2), 3)
        p.salu("s_add_u32", sSTAMP, sSTAMP, sWAVE)
        p.salu("s_lshl_b32", sLNB, sSTAMP, 10)
        p.salu("s_add_u32", sLNB, sLNB, WS_LN - W1F)
        p.salu("s_mul_i32", sSTAMP, sSTAMP, 16 * o.get('stamps', 1))
        p.salu("s_add_u32", sSTAMP, sSTAMP, WS_STAMP)
        if o.get('stamps'):
            for i in range(4):
                p.valu("v_mov_b32", V(188 + i), S(68 + i))
            p.salu("s_sub_u32", sT0, sSTAMP, W1F)
            p.raw("s_mov_b64 exec, 1")
            if o.get('dbgt'):
                p.valu("v_mov_b32", V(188), 0)
                p.valu("v_not_b32", V(189), V(190))
                p.buf_store("buffer_atomic_umax", V(189), V(188), sDBG, 0, 4)
                p.buf_store("buffer_atomic_umax", V(190), V(188), sDBG, 0, 8)
            else:
                p.buf_store("buffer_store_dwordx4", V(188, 4), self.vA[0], sWS, sT0, 0)
            p.raw("s_mov_b64 exec, -1")
            self.nstamp += 1
        p.salu("s_mov_b32", sK, h2u(GK) * 0x10001)
        p.salu("s_mov_b32", sM, 0xFFF8FFF8)
        p.salu("s_mov_b32", sA, 0x3FFE)
        m, g = t[11], t[12]
        p.valu("v_and_b32", m, 15, lane)
        p.valu("v_lshrrev_b32", g, 4, lane)
        p.valu("v_and_b32", t[13], 3, m)
        p.valu("v_mul_u32_u24", t[14], 2 * RS + 16, t[13])
        p.valu("v_lshrrev_b32", t[13], 2, m)
        p.valu("v_lshl_add_u32", t[13], t[13], 1, g)
        p.valu("v_mul_u32_u24", t[13], 192, t[13])
        p.salu("s_sub_u32", sT0, sXM, R2)
        p.valu("v_add3_u32", self.vB0, t[13], t[14], sT0)
        p.valu("v_bfe_u32", t[13], m, 2, 1)
        p.valu("v_sub_u32", t[13], g, t[13])
        p.valu("v_lshrrev_b32", t[14], 3, m)
        p.valu("v_and_b32", t[15], 3, m)
        p.valu("v_lshl_add_u32", t[15], t[14], 2, t[15])
        p.valu("v_lshlrev_b32", t[16], 6, t[13])
        p.valu("v_lshl_add_u32", t[16], t[15], 3, t[16])
        p.valu("v_add_u32", t[16], DIAG + 8, t[16])
        p.valu("v_mov_b32", t[17], DIAG)
        p.valu("v_cmp_gt_u32", "vcc", 3, t[13])
        p.valu("v_cndmask_b32", t[16], t[17], t[16], "vcc")
        p.valu("v_cmp_eq_u32", "vcc", 0, t[14])
        p.valu("v_cndmask_b32", self.vC[0], t[17], t[16], "vcc")
        p.valu("v_cndmask_b32", self.vC[1], t[16], t[17], "vcc")
        p.valu("v_lshrrev_b32", t[13], 2, m)
        p.valu("v_bfe_u32", t[15], m, 1, 1)
        p.valu("v_cmp_eq_u32", "vcc", t[13], g)
        p.valu("v_cndmask_b32", t[15], 8, t[15], "vcc")
        for i in range(2):
            p.valu("v_cmp_eq_u32", sIX[i], i, t[15])
        p.valu("v_lshlrev_b32", self.vBias, 5, g)
        p.valu("v_add_u32", self.vBias, HOLE[0], self.vBias)
        p.valu("v_lshlrev_b32", self.vG, 4, g)
        n, h = t[11], t[12]
        p.valu("v_and_b32", n, 31, lane)
        p.valu("v_lshrrev_b32", h, 5, lane)
        p.valu("v_bfe_u32", t[13], n, 2, 1)
        p.valu("v_bfe_u32", t[14], n, 3, 1)
        p.valu("v_bfe_u32", t[15], n, 1, 1)
        p.valu("v_lshrrev_b32", t[16], 4, n)
        p.valu("v_lshl_add_u32", t[15], t[16], 1, t[15])
        p.valu("v_lshl_add_u32", t[15], t[14], 2, t[15])
        p.valu("v_cmp_eq_u32", "vcc", t[13], h)
        p.valu("v_cndmask_b32", t[15], 8, t[15], "vcc")
        for i in range(8):
            p.valu("v_cmp_eq_u32", sID[i], i, t[15])
        p.valu("v_and_b32", t[16], 1, n)
        p.valu("v_lshlrev_b32", t[16], 4, t[16])
        p.valu("v_mov_b32", self.vI, 0x3F80)
        p.valu("v_lshlrev_b32", self.vI, t[16], self.vI)
        p.valu("v_and_b32", t[17], 19, n)
        p.valu("v_lshl_add_u32", t[17], t[13], 3, t[17])
        p.valu("v_lshl_add_u32", t[17], t[14], 2, t[17])
        p.valu("v_lshlrev_b32", t[17], 2, t[17])
        p.valu("v_lshl_add_u32", t[17], h, 7, t[17])
        p.salu("s_mul_i32", sW2B, sWAVE, 9216)
        p.salu("s_add_u32", sPRIV, sW2B, R2)
        p.valu("v_add_u32", self.vS, sPRIV, t[17])
        p.valu("v_and_b32", t[13], 3, lane)
        p.valu("v_mul_u32_u24", t[14], 2 * ROWB, t[13])
        p.valu("v_bfe_u32", t[13], lane, 2, 2)
        p.valu("v_mul_u32_u24", t[13], 384, t[13])
        p.valu("v_add3_u32", self.vG, self.vG, t[13], t[14])
        p.salu("s_mul_i32", sT3, sX0, 192)
        p.salu("s_add_u32", sT3, sT3, sXM)
        p.salu("s_sub_u32", sT3, sT3, R2)
        p.salu("s_and_b32", sFC, sWAVE, 4)
        p.salu("s_lshl_b32", sT1, sFC, 1)
        p.salu("s_add_u32", sT1, sT1, sY0)
        for ti in range(4):
            p.salu("s_add_u32", sT0, sT1, 16 * (ti >> 1) + (ti & 1))
            p.salu("s_mul_i32", sT0, sT0, ROWB)
            p.salu("s_add_u32", sTILE[ti], sT0, sT3)
        for i in range(2):
            p.salu("s_mov_b32", sD4[0].sub(i), 0xAAAAAAAA)
            p.salu("s_mov_b32", sD4[1].sub(i), 0xCCCCCCCC)
        p.salu("s_mov_b32", sSL, 9 * RS)
        p.salu("s_mov_b32", sCNT, 200000)
        p.valu("v_mov_b32", self.vCnt, CNT)
        self.tr_addr(self.vW1r, lane, t[28], 8)
        p.salu("s_and_b32", sT0, sWAVE, 3)
        p.salu("s_lshl_b32", sT0, sT0, 10)
        p.valu("v_add_u32", self.vW1w, sT0, self.vA[0])
        p.salu("s_add_u32", sT0, sT0, W1F)
        p.valu("v_add_u32", self.vW1r, sT0, self.vW1r)
        for r in self.SQ:
            p.valu("v_mov_b32", r, 0)
        self.mark()
        p.salu("s_cmp_ge_u32", sWAVE, 4)
        p.raw("s_cbranch_scc1 Lwa")
        p.cond_begin()
        ch = [V(64 + 2 * k, 2) for k in range(5)]
        for r in (ch[0].sub(1), ch[1].sub(1), ch[2].sub(0), ch[3].sub(0), ch[4].sub(0), ch[4].sub(1)):
            p.valu("v_mov_b32", r, 0)
        p.valu("v_min_u32", t[20], 35, tid)
        p.valu("v_mul_u32_u24", t[20], 200, t[20])
        p.valu("v_add_u32", t[20], DIAG, t[20])
        p.valu("v_and_b32", t[21], 31, tid)
        p.valu("v_lshlrev_b32", t[21], 3, t[21])
        p.valu("v_bfe_u32", t[22], tid, 5, 1)
        p.valu("v_lshl_add_u32", t[21], t[22], 13, t[21])
        p.valu("v_add_u32", t[21], HOLE[0], t[21])
        p.valu("v_cmp_gt_u32", "vcc", 64, tid)
        p.valu("v_cndmask_b32", t[20], t[21], t[20], "vcc")
        p.ds_write("ds_write_b64", t[20], ch[4])
        p.valu("v_lshrrev_b32", t[20], 1, di)
        p.valu("v_mul_u32_u24", t[21], 57, t[20])
        p.valu("v_lshrrev_b32", t[21], 11, t[21])
        p.valu("v_mul_u32_u24", t[22], 171, t[20])
        p.valu("v_lshrrev_b32", t[22], 11, t[22])
        p.valu("v_mul_u32_u24", t[20], 200, t[20])
        p.valu("v_mul_u32_u24", t[22], 2400 - 64, t[22])
        p.valu("v_mul_u32_u24", t[21], 2400 - 192, t[21])
        p.valu("v_sub_u32", t[20], t[20], t[22])
        p.valu("v_add_u32", t[20], t[20], t[21])
        p.valu("v_and_b32", t[21], 1, di)
        p.valu("v_lshl_add_u32", t[20], t[21], 5, t[20])
        p.valu("v_add_u32", t[20], DIAG + 8, t[20])
        self.gelu_table()
        p.raw("s_waitcnt vmcnt(10)")
        for r in dv.regs():
            p.p_vm[r] = None
        for k in range(4):
            p.valu("v_and_b32", ch[k].sub(k >> 1), (0xFFFF, 0xFFFF0000)[k & 1], dv.sub(k >> 1))
            p.ds_write("ds_write_b64", t[20], ch[k], 8 * k)
        self.mark()
        p.raw("s_waitcnt vmcnt(0) lgkmcnt(0)")
        self.mark()
        p.barrier()
        p.cond_end()
        p.lines.append("Lwa:")
        p.vm_done, p.lgkm_done = p.vm_seq, p.lgkm_seq
        self.mark()
        self.stamp(188)
        self.stamp(188)

    def gelu_table(self):
        p = self.p
        tid, t = V(119), [V(120 + i) for i in range(4)]
        y = [V(i) for i in range(32)]
        e = [V(32 + i) for i in range(32)]
        p.valu("v_and_b32", t[0], 255, tid)
        p.valu("v_lshlrev_b32", t[1], 8, t[0])
        for i in range(32):
            p.valu("v_add_u32", y[i], 8 * i + 4, t[1])
            p.valu("v_cvt_f32_f16", y[i], y[i])
        for i in range(32):
            p.valu("v_fmaak_f32", e[i], y[i], y[i], hex(f2u(GK)))
            p.valu("v_mul_f32", e[i], y[i], e[i])
        for i in range(32):
            p.valu("v_exp_f32", e[i], e[i])
        for i in range(32):
            p.valu("v_add_f32", e[i], "1.0", e[i])
        for i in range(32):
            p.valu("v_rcp_f32", e[i], e[i])
        for i in range(32):
            p.valu("v_mul_f32", y[i], y[i], e[i])
        for i in range(16):
            p.valu("v_cvt_pk_f16_f32", e[i], y[2 * i], y[2 * i + 1])
        tl = self.o.get('tl', 2)
        if tl:
            for i in range(16):
                p.valu("v_add_u32", e[i], (1 << tl >> 1) * 0x10001, e[i])
                p.valu("v_and_b32", e[i], (0xFFFF >> tl << tl) * 0x10001, e[i])
        p.valu("v_lshlrev_b32", t[1], 6, t[0])
        p.valu("v_bfe_u32", t[0], t[0], 2, 5)
        p.valu("v_cmp_ne_u32", "vcc", 31, t[0])
        p.raw(f"s_and_saveexec_b64 {sEX}, vcc")
        for i in range(4):
            p.ds_write("ds_write_b128", t[1], V(32 + 4 * i, 4), 16 * i)
        p.raw(f"s_mov_b64 exec, {sEX}")

    def sentinels(self):
        p = self.p
        t = [V(100 + i) for i in range(6)]
        sv = V(108, 4)
        p.salu("s_cmp_lg_u32", sWAVE, 7)
        p.raw("s_cbranch_scc1 Lnosent")
        p.cond_begin()
        lane = t[4]
        self.lane(lane)
        for i in range(4):
            p.valu("v_mov_b32", sv.sub(i), -1)
        p.valu("v_lshlrev_b32", t[0], 12, lane)
        p.valu("v_add_u32", t[1], 64 * 4096, t[0])
        p.valu("v_cmp_gt_u32", "vcc", 32, lane)
        p.valu("v_mov_b32", t[5], OOB_V)
        p.valu("v_cndmask_b32", t[1], t[5], t[1], "vcc")
        p.salu("s_lshl_b32", sT0, S(2), 4)
        p.raw(f"buffer_store_dwordx4 {sv}, {t[0]}, {sWS}, {sT0} offen sc1")
        p.raw(f"buffer_store_dwordx4 {sv}, {t[1]}, {sWS}, {sT0} offen sc1")
        p.salu("s_add_u32", sT0, sT0, WS_TOT)
        p.salu("s_cmp_lt_u32", S(2), 96)
        p.salu("s_cselect_b32", sT0, sT0, OOB_S)
        p.valu("v_lshlrev_b32", t[3], 11, lane)
        p.raw("s_mov_b64 exec, 0xff")
        p.raw(f"buffer_store_dwordx4 {sv}, {t[3]}, {sWS}, {sT0} offen sc1")
        p.raw("s_mov_b64 exec, -1")
        p.nop(2)
        p.cond_end()
        p.lines.append("Lnosent:")

    def init_counter(self):
        p = self.p
        p.salu("s_cmp_lg_u32", sWAVE, 7)
        p.raw("s_cbranch_scc1 Lnoinit")
        p.cond_begin()
        p.raw("s_waitcnt vmcnt(0)")
        p.raw(f"v_mov_b32 {self.tq.sub(0)}, 1")
        p.raw(f"v_mov_b32 {self.tq.sub(1)}, 0")
        p.raw("s_mov_b64 exec, 1")
        p.raw(f"buffer_atomic_add {self.tq.sub(0)}, {self.tq.sub(1)}, {sDBG}, 0 offen")
        p.raw("s_mov_b64 exec, -1")
        p.nop(2)
        p.cond_end()
        p.lines.append("Lnoinit:")

    def stats(self, s, t, ti, cb):
        acc = self.CA[ti].sub(4 * cb, 4)
        s2, q2 = self.ls[ti & 1][:2]
        if self.o.get('lnpk', 1):
            for k in range(2):
                c2 = acc.sub(2 * k, 2)
                if cb == 0 and k == 0:
                    last = [self.CA[ti | 1].sub(44, 4)]
                    s.valu(t, "v_pk_mul_f32", q2, c2, c2, rd=last)
                    s.valu(t, "v_pk_add_f32", s2, c2, acc.sub(2, 2), rd=last)
                else:
                    s.valu(t, "v_pk_fma_f32", q2, c2, c2, q2)
                    if cb:
                        s.valu(t, "v_pk_add_f32", s2, s2, c2)
            return
        for k in range(4):
            c, sa, qa = acc.sub(k), s2.sub(k & 1), q2.sub(k & 1)
            if cb == 0 and k < 2:
                s.valu(t, "v_mul_f32", qa, c, c)
                s.valu(t, "v_add_f32", sa, c, acc.sub(k + 2))
            else:
                s.valu(t, "v_fmac_f32", qa, c, c, rmw=True)
                if cb:
                    s.valu(t, "v_add_f32", sa, sa, c)

    def conv(self, s, blk, t0, t1, rd=(), wr=()):
        dt = (t1 - t0) / 72
        mode, s.mode = s.mode, self.o.get('dsc', 1)
        late = self.o.get('late', 1)
        for cb in range(12):
            t = t0 + 6 * cb * dt
            F = []
            for k in range(4):
                F.append(self.ring(self.ringB))
                s.ds_read(t + (k - 7) * dt, "ds_read_b128", F[k], self.vB[k], cb * 16, rd=rd)
            for dy in range(3):
                a = self.ring(self.ringA)
                for k in range(2):
                    s.ds_read(t + (2 * dy - 7) * dt, "ds_read_b64", a.sub(2 * k, 2), self.vC[k], (dy * 12 + cb) * 200)
                for par in range(2):
                    acc = self.CA[2 * blk + par].sub(4 * cb, 4)
                    s.mfma(t + (2 * dy + par) * dt, acc, a, F[dy + par], acc if dy else 0, rd=wr)
            if not late:
                for par in range(2):
                    self.stats(s, t + (9 + 3 * par) * dt, 2 * blk + par, cb)
        s.mode = mode
        if late:
            for cb in range(12):
                for par in range(2):
                    self.stats(s, t1 + 0.01, 2 * blk + par, cb)

    def ln(self, s, ti, t0, t1):
        C, D, ls, pk = self.CA[ti], self.LN[ti], self.ls[ti & 1], self.o.get('lnpk', 1)
        a, a1, q, q1, rs, off = [ls[i // 2].sub(i % 2) for i in range(6)]
        ts = t0 - (t1 - t0) * (ti & 1)
        s.valu(ts, "v_add_f32", a, a, a1)
        s.valu(ts, "v_add_f32", q, q, q1)
        s.swap(ts, 32, a, q)
        s.valu(ts, "v_add_f32", a, a, q)
        s.valu(ts, "v_mul_f32", a, f2u(1.0 / 96), a)
        s.valu(ts, "v_mov_b32", q, a)
        s.swap(ts, 32, a, q)
        s.valu(ts, "v_fma_f32", q, f"-{a}", a, q, rd=[a])
        s.valu(ts, "v_max_f32", q, 0, q)
        s.valu(ts, "v_add_f32", q, f2u(1e-5), q)
        s.valu(ts, "v_rsq_f32", q, q)
        s.valu(ts, "v_mul_f32", rs, f2u(GA), q)
        if pk:
            s.valu(ts, "v_mul_f32", off, f2u(GA), q)
            s.valu(ts, "v_mul_f32", q, a, rs)
            s.valu(ts, "v_mul_f32", q1, a, rs)
        else:
            s.valu(ts, "v_mul_f32", off, a, rs)
        for i in range(24):
            t = t0 + (t1 - t0) * i / 24
            if pk:
                s.valu(t, "v_pk_fma_f32", C.sub(2 * i, 2), C.sub(2 * i, 2), ls[2], ls[1], mods="neg_lo:[0,0,1] neg_hi:[0,0,1]")
            else:
                for k in range(2):
                    s.valu(t, "v_fma_f32", C.sub(2 * i + k), C.sub(2 * i + k), rs, f"-{off}", rd=[off])
            s.valu(t, "v_cvt_pk_bf16_f32", D.sub(i), C.sub(2 * i), C.sub(2 * i + 1))

    def gemm1(self, s, t0, j, ln, y, pixel_lane, ringW, span=1.0, rd=()):
        for s6 in range(6):
            t = t0 + span * s6 / 6
            w = self.ring(ringW)
            a, off = self.frag(j * 6 + s6)
            s.ds_read(t - self.o.get('lead', 0.8), "ds_read_b128", w, a, off, rd=rd)
            b = ln.sub(4 * s6, 4)
            if pixel_lane:
                s.mfma(t, y, w, b, y if s6 else 0)
            else:
                s.mfma(t, y, b, w, y if s6 else 0)

    def gelu32(self, s, t0, y, nl, blk, acc=None, idk=None):
        self.gelu(s, t0, y, nl, dst=[blk.sub(i) for i in (0, 1, 4, 5, 2, 3, 6, 7)])
        t = t0 + self.o.get('fin', 0.9) + self.o.get('lw', 0.55)
        if acc is not None:
            for q in range(2):
                s.mfma(t + 0.1 * q, y, blk.sub(4 * q, 4), idk.sub(4 * q, 4), y if q else 0, 'f16')
            for i in range(16):
                s.valu(t + 0.35 + 0.02 * i, "v_fmac_f32", acc, y.sub(i), y.sub(i), rmw=True)
            t += 0.15
        for i in range(4):
            s.swap(t, 16, blk.sub(i), blk.sub(4 + i))
        return t

    def gelu(self, s, t0, y, nl, acc=None, dst=None, span=1.0):
        o = self.o
        if isinstance(y, V):
            y = [y.sub(2 * i, 2) for i in range(8)]
        lw, fin = o.get('lw', 0.55) * span, o.get('fin', 0.9)
        mixlo, mixhi = "op_sel_hi:[1,1,0]", "op_sel:[1,1,0] op_sel_hi:[1,1,0]"
        assert nl % 2 == 0
        for i in range(0, nl, 2):
            assert y[i + 1].b == y[i].b + 2
            q = V(y[i].b, 4)
            t = t0 + lw * i / nl
            for k in range(2):
                s.valu(t, "v_cvt_pkrtz_f16_f32", q.sub(k), q.sub(2 * k), q.sub(2 * k + 1))
            s.valu(t, "v_lshrrev_b64", q.sub(0, 2), 2, q.sub(0, 2))
            for k in range(2):
                s.valu(t, "v_and_b32_sdwa", q.sub(2 + k), sA, q.sub(k), mods="dst_sel:DWORD dst_unused:UNUSED_PAD src0_sel:DWORD src1_sel:WORD_1")
                s.valu(t, "v_and_b32", q.sub(k), sA, q.sub(k))
                s.ds_read(t, "ds_read_u16" if dst is None else "ds_read_u16_d16_hi", q.sub(2 + k), q.sub(2 + k))
                s.ds_read(t, "ds_read_u16", q.sub(k), q.sub(k))
                t += lw / nl
        nt = len(y) - nl
        w = [4, 4, 4, 8, 8, 4, 8, 8, 4] + ([4, 4] if dst is None else [])
        cum = [sum(w[:k]) / sum(w) for k in range(len(w) + 1)]
        for k in range(len(w)):
            for i in range(nl, len(y)):
                u, e = y[i].sub(0), y[i].sub(1)
                t = t0 + cum[k] + (cum[k + 1] - cum[k]) * (i - nl) / nt
                if k == 0:
                    s.valu(t, "v_cvt_pk_f16_f32", u, u, e)
                elif k == 1:
                    s.valu(t, "v_pk_fma_f16", e, u, u, sK)
                elif k == 2:
                    s.valu(t, "v_pk_mul_f16", e, u, e)
                elif k in (3, 4):
                    s.valu(t, "v_exp_f16_sdwa", e, e, mods=(LO, HI)[k - 3])
                elif k == 5:
                    s.valu(t, "v_pk_add_f16", e, e, "1.0", mods="op_sel_hi:[1,0]")
                elif k in (6, 7):
                    s.valu(t, "v_rcp_f16_sdwa", e, e, mods=(LO, HI)[k - 6])
                elif k == 8:
                    s.valu(t, "v_pk_mul_f16", u if dst is None else dst[i], u, e)
                else:
                    s.valu(t, "v_fma_mix_f32", acc, u, u, acc, mods=(mixlo, mixhi)[k - 9])
        for i in range(nl):
            a0, a1 = y[i].sub(0), y[i].sub(1)
            t = t0 + fin + lw * i / nl
            if dst is None:
                for a in (a0, a1):
                    s.valu(t, "v_fma_mix_f32", acc, a, a, acc, mods=mixlo)
            elif i % 2:
                assert dst[i].b == dst[i - 1].b + 1
                s.valu(t, "v_lshl_add_u64", V(dst[i - 1].b, 2), y[i - 1], 0, y[i])

    def pattern(self, key, default):
        return [int(c) for c in str(self.o.get(key, default))]

    def ws_frag(self, f, fn):
        p = self.p
        if f == 0:
            return fn(sLNB)
        p.salu("s_add_u32", sT3, sLNB, f * self.o.get('fst', 1 << 21))
        return fn(sT3)

    def prio_steps(self, s, t0, t1, key='pp'):
        n = 4 * max(1, round((t1 - t0) / self.o.get(key, self.o.get('pp', 2.0))))
        for k in range(n):
            s.misc(t0 + (t1 - t0) * k / n, lambda k=k: self.p.raw(f"s_setprio {3 - k % 4}"), rd=['@bar'] if k == 0 else [], wr=['@prio'])

    def w1_transform(self, us, fr):
        p = self.p
        a, b = V(113), V(114)
        p.valu("v_add_u32", a, 65536, self.vW1r)
        p.valu("v_add_u32", b, 65536, self.vW1w)
        for k, u in enumerate(us):
            for i in range(2):
                p.ds_read("ds_read_b64_tr_b16", fr[k].sub(2 * i, 2), self.vW1r if u < 16 else a, (u % 16) * 4096 + i * 512)
        for k, u in enumerate(us):
            p.ds_write("ds_write_b128", self.vW1w if u < 16 else b, fr[k], (u % 16) * 4096)

    def code_pf(self, s, times):
        p = self.p

        def one():
            k = self.ncpf = getattr(self, 'ncpf', 0) + 1
            p.raw(f"s_getpc_b64 {sEX}")
            p.lines.append(f"Lcq{k}:")
            p.salu("s_lshl_b32", sT0, sWAVE, 10)
            p.salu("s_add_u32", sT0, sT0, self.o.get('cpd', 6144))
            p.salu("s_min_u32", sT0, sT0, f"Lend-Lcq{k}-1024")
            p.salu("s_add_u32", sEX.sub(0), sEX.sub(0), sT0)
            p.salu("s_addc_u32", sEX.sub(1), sEX.sub(1), 0)
            p.salu("s_sub_u32", sEX.sub(0), sEX.sub(0), W1F)
            p.salu("s_subb_u32", sEX.sub(1), sEX.sub(1), 0)
            p.salu("s_mov_b32", "m0", LDS_BYTES)
            p.nop(1)
            p.raw(f"global_load_lds_dword {self.vA[0]}, {sEX}")
            p.vm_seq += 1
        if self.o.get('cpf', 0):
            for t in times:
                s.misc(t, one)

    def setprio(self, s, t, lv):
        s.misc(t, lambda: self.p.raw(f"s_setprio {lv}"), wr=['@prio'])

    def phase1(self):
        p, o = self.p, self.o
        p.salu("s_cmp_lt_u32", sWAVE, 4)
        p.raw("s_cbranch_scc1 Lsu1")
        p.cond_begin()
        p.raw("s_waitcnt vmcnt(%d)" % (14 if o.get('tp', 6) <= 18 else 12))
        self.mark()
        self.w1_transform(range(6), [V(4 * u, 4) for u in range(6)])
        self.signal(C_W1A)
        self.mark()
        self.await_(C_F, 4)
        self.mark()
        for R in range(2, 10):
            self.row_dma(R)
        self.mark()
        p.raw("s_waitcnt vmcnt(16)")
        self.mark()
        self.w1_transform(range(6, 18), [V(4 * u, 4) for u in range(12)])
        self.signal(C_W1B)
        self.mark()
        p.cond_end()
        self.sentinels()
        p.raw("s_setprio 3")
        p.raw("s_waitcnt vmcnt(0)")
        self.init_counter()
        self.mark()
        p.lines.append("Lsu1:")
        p.vm_done, p.lgkm_done = p.vm_seq, p.lgkm_seq
        self.stamp(188)
        s = self.s = Sched(p, o)
        nl = self.pattern('nl1', '6')
        L, cl = o.get('cl', 4.0), o.get('cc', 2.6)
        Y, ny = self.Y1, len(self.Y1)
        u = [None, V(237), V(244), V(245)]
        tq2 = V(238, 2)
        tmp = [V(48, 8), V(56, 8)]
        m0, m1 = o.get('m0', 0.0), o.get('m1', 2.0)

        def w2_addr():
            self.lane(u[1])
            p.valu("v_lshrrev_b32", self.vW2, 2, u[1])
            p.valu("v_mul_u32_u24", self.vW2, 192, self.vW2)
            p.valu("v_and_b32", u[1], 3, u[1])
            p.valu("v_lshl_add_u32", self.vW2, u[1], 4, self.vW2)

        def init_check():
            p.salu("s_cmp_lg_u32", sWAVE, 0)
            p.raw("s_cbranch_scc1 Lpix")
            p.cond_begin()
            p.raw(f"v_and_b32 {u[2]}, 0x3ff, {self.vA[0]}")
            p.raw(f"buffer_load_dword {u[3]}, {u[2]}, {sBE}, 0 offen")
            p.raw(f"buffer_load_dword {u[3]}, {u[2]}, {sGA}, 0 offen")
            p.raw(f"v_mov_b32 {u[2]}, 0")
            p.lines.append("Lpi:")
            p.raw(f"buffer_load_dword {u[3]}, {u[2]}, {sDBG}, 0 offen sc1")
            p.raw("s_waitcnt vmcnt(0)")
            p.raw(f"v_readfirstlane_b32 {sT0}, {u[3]}")
            self.spin_guard("Lpix")
            p.salu("s_cmp_lt_u32", sT0, 256)
            p.raw("s_cbranch_scc1 Lpi")
            p.cond_end()
            p.lines.append("Lpix:")

        def flush(t, j):
            s.swap(t, 32, self.SQ[j], self.SQ[j + 1])
            s.valu(t, "v_add_f32", self.SQ[j], self.SQ[j], self.SQ[j + 1])
            s.ds_write(t, "ds_write_b32", self.vS, self.SQ[j], TABO + j * 128 + (3072 - 768) * (j >= 6), rd=['@ring', '@sums'])

        for blk in range(2):
            t0 = blk * (24 + L + o.get('cd', 0.7))
            s.misc(t0 - 0.5, self.conv_addr, rd=[self.vB0, '@dma'], wr=self.vB + [self.tq], cost=90)
            if blk:
                s.misc(t0 - 0.3, lambda: p.wait(vm=self.x_tok), rd=['@dma'], wr=['@rows'])
            self.conv(s, blk, t0, t0 + cl, rd=['@rows'], wr=['@cdone'])
            s.misc(t0 + cl, lambda blk=blk: self.signal(C_F + 8 * blk, True), wr=['@cdone', self.tq], cost=8)
            h = (L - cl) / 2
            self.ln(s, 2 * blk, t0 + cl + 0.02, t0 + cl + h)
            self.ln(s, 2 * blk + 1, t0 + cl + h, t0 + L)
            t0 += L
            if blk == 0:
                s.misc(t0 - 1.0, lambda: self.await_(C_W1A, 4), wr=['@w1', self.tq], cost=40)
                if o.get('stamps'):
                    s.misc(t0, lambda: self.stamp(192), wr=[V(192, 4)])
            if blk:
                Y = [Y[1], Y[2], Y[0], Y[3], Y[4]]
            idk = V((64, 216)[blk], 8)
            if self.keep if blk else self.spi:
                for m in range(8):
                    s.valu(t0, "v_cndmask_b32", idk.sub(m), 0, self.vI, sID[m])
                    s.valu(t0, "v_and_b32", idk.sub(m), 0x3C003C00, idk.sub(m))
            for j in range(12):
                t = t0 + 2 * j
                e = 24 * blk + 2 * j
                held = [(2 * blk + par, j) in self.spi or (blk and par and j in self.keep) for par in range(2)]
                if blk == 0 and j == 4:
                    s.misc(t - 1.2, lambda: self.await_(C_W1B, 4), wr=['@w1', self.tq], cost=40)
                for s6 in range(6):
                    tt = t + m0 + (m1 - m0) * s6 / 6
                    w = self.ring(self.ring1)
                    s.ds_read(tt - o.get('lead', 0.8), "ds_read_b128", w, *self.frag(j * 6 + s6), rd=['@w1'])
                    for par in range(2):
                        y = Y[(e + par + 4) % ny]
                        ab = (self.LN[2 * blk + par].sub(4 * s6, 4), w)
                        s.mfma(tt + par * (m1 - m0) / 12, y, *(ab[::-1] if held[par] else ab), y if s6 else 0)
                if blk == 1 and j == 8:
                    d0 = t0 + o.get('w0', 16.0)
                    s.misc(d0, lambda: (self.await_(C_F + 12, 4, tq=tq2), w2_addr()), rd=[self.vA[0]],
                           wr=[self.vW2, u[1], tq2, '@ring'], cost=60)
                    for k, f in enumerate((0, 1, 2, 3, 4, 6, 7)):
                        s.vmem(d0 + 0.3 + 0.5 * k, lambda f=f: self.w2_fetch(f, self.vW2), rd=[self.vW2], wr=['@w2raw'], lat=0)
                    s.misc(d0 + 4, lambda: setattr(self, 'w2_tok0', self.w2_tok), rd=['@w2raw'], wr=['@w2t0'], cost=0)
                    for k in range(0, 8, 2):
                        flush(d0, k)
                if blk == 1 and j == 11:
                    flush(t + 1, 8)
                for par in ((1, 0) if e == 46 else (0, 1)):
                    tg, y, n = t + m1 + (par ^ (e == 46)) + o.get('g0', 0.1), Y[(e + par + 4) % ny], nl[(e + par) % len(nl)]
                    if not held[par]:
                        self.gelu(s, tg, y, n, acc=self.SQ[j])
                        continue
                    bl = self.blk3[j] if blk else self.ring(tmp)
                    te = self.gelu32(s, tg, y, n, bl, self.SQ[j], idk)
                    for q in range(0 if blk else 2):
                        s.vmem(te + 0.2 + 0.4 * q, lambda q=q, bl=bl, f=self.spi[par, j]: self.ws_frag(f + q, lambda so: p.buf_store(
                            "buffer_store_dwordx4", bl.sub(4 * q, 4), self.vA[0], sWS, so, flags=o.get('ssf', 'sc1'))), rd=[bl.sub(4 * q, 4)], lat=0)
                if blk == 0 and j == o.get('ls', 6):
                    for k in range(6):
                        s.vmem(t + o.get('lg', 1.2) * k, lambda k=k: self.ws_frag(k, lambda so: p.buf_store(
                            "buffer_store_dwordx4", self.LN[0].sub(4 * k, 4), self.vA[0], sWS, so, flags=o.get('ssf', 'sc1'))), rd=[self.LN[0].sub(4 * k, 4)], lat=0)
                if blk == 0 and j == 6 and o.get('dbg'):
                    for k in range(6):
                        s.vmem(t + 0.7 * k, lambda k=k: self.ws_frag(6 + k, lambda so: p.buf_store(
                            "buffer_store_dwordx4", self.LN[1].sub(4 * k, 4), self.vA[0], sWS, so)), rd=[self.LN[1].sub(4 * k, 4)], lat=0)
                if blk == 0 and j == 5:
                    s.misc(t + 1, lambda: (self.skip_round(), self.touch_rows(self.tq.sub(0), self.tq.sub(1))), wr=[self.tq, '@dma'], cost=24)
                if blk == 0 and j == 9:
                    d0 = t0 + o.get('d0', 19.0)
                    s.misc(d0, lambda: self.await_(C_F + 4, 4, True), wr=[self.tq, '@dma'], cost=40)
                    for R in range(2, 10):
                        s.vmem(d0 + o.get('dspan', 2.5) * (R - 2) / 8, lambda R=R: self.row_dma(R), rd=self.vX, wr=['@dma'], lat=0)
                if blk == 1 and j == 5:
                    s.misc(t, init_check, wr=u[2:])
                if blk == 1 and j == 3 and o.get('nt0', 0):
                    s.misc(t, lambda: self.touch_x(u[2], u[3]), wr=u[2:], cost=24)
        end = 48 + 2 * L + m1 + o.get('cd', 0.7)
        self.setprio(s, L + o.get('la', 7), 3)
        s.misc(24 + 2 * L + o.get('cd', 0.7), lambda: self.call_if(True, ["s_setprio 2"], "Lbk"), wr=['@prio'])
        self.setprio(s, end - o.get('q0', 3.0), 1)
        self.code_pf(s, [6, 16, 26, 30, 38, 48, 56])
        self.fine(s, range(0, 60), 'p1')
        self.T1 = end - m1
        flush(end, 10)
        t = [None, V(238), V(239), V(237), V(244), V(245)]
        pv = [V(128, 8), V(136, 8), V(112, 8), V(120, 8), V(216, 8)]

        def pub_addr():
            self.lane(t[3])
            p.valu("v_min_u32", t[3], 47, t[3])
            p.valu("v_lshlrev_b32", t[4], 5, t[3])
            p.valu("v_add_u32", t[4], R2 + TABO, t[4])
            p.valu("v_add_u32", t[5], 3072 - 768, t[4])
            p.valu("v_cmp_gt_u32", "vcc", 24, t[3])
            p.valu("v_cndmask_b32", t[4], t[5], t[4], "vcc")
            p.valu("v_lshlrev_b32", t[3], 13, t[3])
            p.valu("v_add_u32", t[5], 4096, t[3])
        s.misc(end - 4, pub_addr, wr=t[3:], cost=40)

        def publish():
            p.raw("s_setprio 3")
            self.ticket(t, 0, "Lnopub", pv)

            def rd(w, d):
                for k in range(2):
                    p.ds_read("ds_read_b128", d.sub(4 * k, 4), t[4], 9216 * w + 16 * k)

            def add(d, b):
                for i in range(8):
                    p.valu("v_add_f32", d.sub(i), d.sub(i), b.sub(i))
            for w in range(5):
                rd(w, pv[w])
            for w in range(1, 4):
                add(pv[0], pv[w])
                rd(4 + w, pv[w])
            for w in (4, 1, 2, 3):
                add(pv[0], pv[w])
            for i in range(8):
                p.valu("v_min_u32", pv[4].sub(i), -2, pv[0].sub(i))
            p.salu("s_lshl_b32", sT0, S(2), 4)
            p.buf_store("buffer_store_dwordx4", pv[4].sub(0, 4), t[3], sWS, sT0, flags="sc1")
            p.buf_store("buffer_store_dwordx4", pv[4].sub(4, 4), t[5], sWS, sT0, flags="sc1")
            p.ds_write("ds_write_b32", self.vCnt, t[1], C_PUB)
            p.raw("s_waitcnt lgkmcnt(0)")
            p.nop(2)
            p.cond_end()
            p.lines.append("Lnopub:")
            self.stamp(128)
        s.misc(end, publish, wr=t[1:] + pv + ['@sums', '@prio'], cost=60)

    def ticket(self, t, cnt, label, regs):
        p = self.p
        p.valu("v_mov_b32", t[1], 1)
        p.wait_all(vm=False)
        p.raw("s_mov_b64 exec, 1")
        p.raw(f"ds_add_rtn_u32 {t[2]}, {self.vCnt}, {t[1]} offset:{cnt}")
        p.raw("s_mov_b64 exec, -1")
        for v in regs:
            p._mem_issue([], list(v.regs()))
        p.raw("s_waitcnt lgkmcnt(0)")
        p.lgkm_seq += 1
        p.lgkm_done = p.lgkm_seq
        p.valu("v_readfirstlane_b32", sT0, t[2])
        p.salu("s_cmp_lg_u32", sT0, 7)
        p.raw(f"s_cbranch_scc1 {label}")
        p.cond_begin()

    def w2_fetch(self, f, addr):
        p = self.p
        k, T = divmod(f, 3)
        p.salu("s_add_u32", "m0", sPRIV, f * 1024)
        p.salu("s_add_u32", sT0, sW2B, k * 3072 + T * 64)
        self.w2_tok = p.dma(addr, sW2, sT0)

    def touch_x(self, a, b):
        p = self.p
        self.lane(b)
        p.valu("v_and_b32", a, 15, b)
        p.valu("v_min_u32", a, 11, a)
        p.valu("v_lshlrev_b32", a, 7, a)
        p.valu("v_lshrrev_b32", b, 4, b)
        p.valu("v_mul_u32_u24", b, 2 * ROWB, b)
        p.valu("v_add_u32", a, a, b)
        p.salu("s_mov_b32", "m0", LDS_BYTES)
        p.salu("s_cmp_lt_u32", sWAVE, 4)
        p.raw("s_cbranch_scc0 Lnotouch")
        p.cond_begin()
        for ti in range(2):
            p.raw(f"buffer_load_dword {a}, {sX}, {sTILE[ti]} offen lds")
            p.vm_seq += 1
        p.cond_end()
        p.lines.append("Lnotouch:")

    def poll_regs(self):
        rv = [V(128 + 4 * i, 4) for i in range(4)]
        tv = [V(128 + i) for i in range(6)]
        gv = [V(134 + i) for i in range(6)]
        t = [V(240 + i) for i in range(6)]
        return rv, tv, gv, t

    def poll_loads(self, p, reducer):
        rv, tv, gv, t = self.poll_regs()
        if reducer:
            p.salu("s_lshl_b32", sT1, S(2), 12)
            for i in range(4):
                p.buf_load("buffer_load_dwordx4", rv[i], t[5], sWS, sT1, 1024 * i, flags="sc1")
        else:
            p.salu("s_and_b32", sT1, S(2), 7)
            p.salu("s_lshl_b32", sT1, sT1, 11)
            p.salu("s_add_u32", sT1, sT1, WS_TOT)
            for i in range(3):
                p.buf_load("buffer_load_dwordx2", V(tv[2 * i].b, 2), t[0], sWS, sT1, 8 * i, flags="sc1")

    def gamma_loads(self, p):
        rv, tv, gv, t = self.poll_regs()
        p.valu("v_lshrrev_b32", t[1], 1, t[0])
        for i in range(3):
            p.buf_load("buffer_load_dword", gv[2 * i + 1], t[1], sGA, 0, 4 * i)

    def poll_routine(self):
        main, self.p = self.p, Prog()
        p = self.p
        rv, tv, gv, t = self.poll_regs()
        ret = f"s_setpc_b64 {sRET}"
        p.lines.append("Lpolln:")
        p.raw(f"s_getreg_b32 {sT0}, hwreg(HW_REG_IB_STS, 0, 4)")
        p.salu("s_cmp_eq_u32", sT0, 0)
        p.raw("s_cbranch_scc1 Lpoll")
        p.raw(ret)
        p.lines.append("Lpoll:")
        p.raw("s_waitcnt vmcnt(0)")
        p.salu("s_cmp_eq_u32", sROLE, 2)
        p.raw("s_cbranch_scc1 LpollC")
        allr = [rv[i].sub(k) for i in range(4) for k in range(4)]
        p.valu("v_max_u32", t[1], allr[0], allr[1])
        for i in range(2, 16, 2):
            p.valu("v_max3_u32", t[1], t[1], allr[i], allr[i + 1])
        p.valu("v_cmp_eq_u32", "vcc", -1, t[1])
        p.nop(5)
        p.raw("s_cbranch_vccz LpollR")
        self.poll_loads(p, True)
        p.raw(ret)
        self.p = p2 = Prog()
        p2.lines.append("LpollR:")
        for k in range(4):
            p2.valu("v_add_f32", rv[0].sub(k), rv[0].sub(k), rv[1].sub(k))
            p2.valu("v_add_f32", rv[3].sub(k), rv[2].sub(k), rv[3].sub(k))
            p2.valu("v_add_f32", rv[3].sub(k), rv[0].sub(k), rv[3].sub(k))
        r = [rv[3].sub(k) for k in range(4)]
        p2.swap32(r[0], r[1])
        p2.swap32(r[2], r[3])
        p2.valu("v_add_f32", r[0], r[0], r[1])
        p2.valu("v_add_f32", r[2], r[2], r[3])
        p2.valu("v_bfe_u32", t[1], t[5], 4, 4)
        p2.valu("v_lshlrev_b32", t[1], 11, t[1])
        p2.swap16(r[0], r[2])
        p2.valu("v_add_f32", r[0], r[0], r[2])
        fill = [lambda: p2.valu("v_bfe_u32", t[2], t[5], 8, 1), lambda: p2.valu("v_lshl_add_u32", t[1], t[2], 3, t[1]),
                lambda: p2.valu("v_bfe_u32", t[2], t[5], 9, 1), lambda: p2.valu("v_lshl_add_u32", t[1], t[2], 2, t[1]),
                lambda: p2.salu("s_lshl_b32", sT1, S(2), 4), lambda: p2.salu("s_add_u32", sT1, sT1, WS_TOT),
                lambda: p2.salu("s_mov_b32", sT0, f2u(1.0 / (GA * GA))), lambda: p2.valu("v_mov_b32", t[2], f2u(1e-6))]
        for k in (8, 4, 2, 1):
            fill.pop(0)()
            fill.pop(0)()
            p2.valu("v_add_f32_dpp", r[0], r[0], r[0], mods=f"row_ror:{k} row_mask:0xf bank_mask:0xf")
        p2.valu("v_fma_f32", r[0], r[0], sT0, t[2])
        p2.valu("v_sqrt_f32", r[0], r[0])
        p2.salu("s_mov_b32", "exec_lo", 0x00FF00FF)
        p2.salu("s_mov_b32", "exec_hi", 0x00FF00FF)
        p2.valu("v_min_u32", r[0], -2, r[0])
        p2.buf_store("buffer_store_dword", r[0], t[1], sWS, sT1, flags="sc1")
        p2.raw("s_mov_b64 exec, -1")
        p2.salu("s_mov_b32", sROLE, 2)
        self.poll_loads(p2, False)
        self.gamma_loads(p2)
        p2.raw(ret)
        self.p = p3 = Prog()
        p3.lines.append("LpollC:")
        p3.valu("v_max3_u32", t[1], tv[0], tv[1], tv[2])
        p3.valu("v_max3_u32", t[1], t[1], tv[3], tv[4])
        p3.valu("v_max_u32", t[1], t[1], tv[5])
        p3.valu("v_cmp_eq_u32", "vcc", -1, t[1])
        p3.nop(5)
        p3.raw("s_cbranch_vccz LpollS")
        self.poll_loads(p3, False)
        p3.raw(ret)
        self.p = p4 = Prog()
        p4.lines.append("LpollS:")
        p4.valu("v_add_f32", t[3], tv[0], tv[1])
        for i in range(2, 6):
            p4.valu("v_add_f32", t[3], t[3], tv[i])
        fill = []
        for i in range(0, 6, 2):
            fill += [lambda i=i: p4.valu("v_lshlrev_b32", gv[i], 16, gv[i + 1]), lambda i=i: p4.valu("v_and_b32", gv[i + 1], 0xFFFF0000, gv[i + 1])]
        fill += [lambda i=i: p4.valu("v_mul_f32", tv[i], tv[i], gv[i]) for i in range(6)]
        for k in (8, 4, 2, 1):
            fill.pop(0)()
            fill.pop(0)()
            p4.valu("v_add_f32_dpp", t[3], t[3], t[3], mods=f"row_ror:{k} row_mask:0xf bank_mask:0xf")
        for sw in (p4.swap16, p4.swap32):
            p4.valu("v_mov_b32", t[1], t[3])
            fill.pop(0)()
            fill.pop(0)()
            sw(t[3], t[1])
            p4.valu("v_add_f32", t[3], t[3], t[1])
        ga = GA / (1 + 3.5 / 1024 / (2 * math.log(2))) if self.o.get('tw', 2) == 2 else GA
        p4.valu("v_mov_b32", t[2], f2u(1e-6 * ga))
        p4.salu("s_mov_b32", sT0, f2u(ga / 384))
        p4.valu("v_fma_f32", t[3], t[3], sT0, t[2])
        p4.valu("v_rcp_f32", t[3], t[3])
        p4.salu("s_mov_b32", sT0, f2u(1.0 / ga))
        for i in range(6):
            p4.valu("v_fma_f32", tv[i], tv[i], t[3], sT0)
        for i in range(3):
            p4.valu("v_cvt_pk_f16_f32", tv[i], tv[2 * i], tv[2 * i + 1])
        p4.salu("s_mov_b32", sROLE, 0)
        p4.nop(2)
        p4.raw(ret)
        self.p = main
        for q in (p, p2, p3, p4):
            main.lines += q.lines

    def poll_point(self, k):
        p = self.p
        p.salu("s_cmp_eq_u32", sROLE, 0)
        p.raw(f"s_cbranch_scc1 Lpp{k}")
        p.cond_begin()
        p.raw(f"s_call_b64 {sRET}, {'Lpolln' if self.o.get('nb', 1) else 'Lpoll'}")
        p.cond_end()
        p.lines.append(f"Lpp{k}:")

    def spin_guard(self, exit_label):
        p = self.p
        p.salu("s_cmp_eq_u32", sCNT, 0)
        p.salu("s_cbranch_scc1", exit_label)
        p.salu("s_sub_u32", sCNT, sCNT, 1)

    def gap(self):
        p, o, s = self.p, self.o, self.s
        rv, tv, gv, t = self.poll_regs()
        self.pollr = pollr = [V(128, 16), t[0], t[1], t[2], t[3], t[5], '@poll']
        T1 = self.T1
        g8 = t[4]

        def role():
            p.salu("s_mov_b32", sROLE, 0)
            p.valu("v_bfe_u32", g8, self.vA[0], 8, 2)
            p.valu("v_lshlrev_b32", g8, 3, g8)
            p.salu("s_cmp_lg_u32", sWAVE, 0)
            p.raw("s_cbranch_scc1 Lnorole")
            p.cond_begin()
            p.valu("v_subrev_u32", t[5], W1F, self.vA[0])
            p.valu("v_lshrrev_b32", t[0], 1, t[5])
            p.valu("v_add_u32", t[0], t[0], t[5])
            p.salu("s_cmp_lt_u32", S(2), 96)
            p.salu("s_cselect_b32", sROLE, 1, 2)
            p.raw("s_cbranch_scc1 Lred")
            self.poll_loads(p, False)
            self.gamma_loads(p)
            p.raw("s_branch Lnorole")
            p.lines.append("Lred:")
            self.poll_loads(p, True)
            p.cond_end()
            p.lines.append("Lnorole:")
            for r in range(128, 144):
                p.p_vm[r] = None
            p.raw("s_setprio 0")
        tp = s.misc(T1, role, wr=pollr + [g8, '@prio'], cost=10).t
        nl = self.pattern('nlg', '6')
        Y = self.Y1[3:]
        NG = len(self.todo)
        self.npoll = 0
        for n, j in enumerate(self.todo):
            tg = T1 + 2.1 + n
            self.gemm1(s, tg - (0.6 if n > 1 else 1.1), j, self.LN[3], Y[n % 2], True, self.ring1, span=0.5 if n > 1 else 1.0)
            self.gelu32(s, tg, Y[n % 2], nl[n % len(nl)], self.blk3[j])
        tw = tp + o.get('gb', 1.5)
        tq = V(248, 2) if not o.get('fine') else V(238, 2)
        bf = [V(176 + 2 * k, 2) for k in range(3)]

        def beta_loads():
            p.salu("s_mul_i32", sT0, sWAVE, 96)
            for k in range(3):
                p.buf_load("buffer_load_dwordx2", bf[k], g8, sBE, sT0, k * 32)
        s.vmem(tw - 0.1, beta_loads, rd=[g8, '@tab'], wr=bf, lat=800)

        s.misc(tw, lambda: self.await_(C_PUB, 1, tq=tq), rd=['@sums'], wr=['@tab', tq], cost=40)
        for k in (5, 8):
            s.vmem(tw, lambda k=k: self.w2_fetch(k, self.vW2), rd=['@tab', self.vW2], wr=['@w2raw'], lat=1200 * (k == 8))
        for ti in (2, 1):
            self.ln16(s, T1 + 2, [self.LN[ti].sub(4 * f, 4) for f in range(6)])
        ta = T1 + 1.6 + NG
        tb = self.TB = ta + o.get('tb', 2.0)
        Yf = Y[NG % 2]
        self.Yr = Y[(NG + 1) % 2]
        fr = self.fr = [V(72 + 4 * k, 4) for k in range(6)] + [Yf.sub(4 * k, 4) for k in range(3)]
        u = self.u = [V(186 + i) for i in range(6)] + [Yf.sub(12 + i) for i in range(4)]
        lane, vWR = u[4], u[7:10]
        self.vH = [V(248), V(249) if not o.get('fine') else V(248)]

        def addr():
            self.lane(lane)
            p.valu("v_lshl_add_u32", u[0], lane, 4, sPRIV)
            for k in range(3):
                p.salu("s_mul_i32", sT0, sWAVE, 3)
                p.salu("s_add_u32", sT0, sT0, k)
                p.salu("s_and_b32", sT1, sT0, 1)
                p.salu("s_mul_i32", sT1, sT1, 3072 - 8)
                p.salu("s_mul_i32", sT0, sT0, 3072)
                p.salu("s_sub_u32", sT0, sT0, sT1)
                p.salu("s_add_u32", sT0, sT0, R2)
                p.valu("v_lshl_add_u32", vWR[k], lane, 4, sT0)
            p.valu("v_lshl_add_u32", u[1], g8, 2, sPRIV)
            p.valu("v_and_b32", u[3], 3, lane)
            for bit, sh in ((2, 3), (3, 2), (4, 6), (5, 5)):
                p.valu("v_bfe_u32", u[5], lane, bit, 1)
                p.valu("v_lshl_add_u32", u[3], u[5], sh, u[3])
            p.valu("v_lshlrev_b32", u[3], 4, u[3])
            for i in range(2):
                p.valu("v_add_u32", self.vH[i], W1F + 36 * 1024 * i, u[3])
            p.valu("v_min_u32", u[3], 11, lane)
            p.salu("s_mul_i32", sT0, sWAVE, 12)
            p.valu("v_add_u32", u[3], sT0, u[3])
            p.valu("v_cmp_gt_u32", "vcc", 64, u[3])
            p.valu("v_lshlrev_b32", u[3], 2, u[3])
            p.valu("v_add_u32", u[6], R2 + SCO + 128, u[3])
            p.valu("v_add_u32", u[5], HOLE[1], u[3])
            p.valu("v_add_u32", u[3], HOLE[0] - 256, u[3])
            p.valu("v_cndmask_b32", u[3], u[3], u[5], "vcc")
            p.valu("v_add_u32", u[2], sPRIV, g8)
            p.valu("v_lshrrev_b32", u[5], 3, lane)
            p.valu("v_mul_u32_u24", u[5], 9216 - 96, u[5])
            p.valu("v_mul_u32_u24", u[4], 12, lane)
            p.valu("v_add_u32", u[5], u[5], u[4])
            p.valu("v_add_u32", u[5], R2 + SCO, u[5])
        s.misc(ta, addr, rd=[g8], wr=u + self.vH, cost=130)
        s.misc(T1 + 1.5, lambda: p.wait(vm=self.w2_tok0), rd=['@w2t0'], wr=['@w2ok0'])
        s.misc(ta + 1.1, lambda: p.wait(vm=self.w2_tok), rd=['@w2raw'], wr=['@w2ok1'])
        for k in (0, 3, 6, 1, 4, 7, 2, 5, 8):
            for y in range(2):
                s.ds_read(ta + 0.3 * (k % 3), "ds_read_b64_tr_b16", fr[k].sub(2 * y, 2), u[0], k * 1024 + y * 8, rd=['@w2ok%d' % (k in (5, 8))])
        bacc = V(120, 8)

        def partial(T):
            p._mem_issue(list(bacc.regs()) + list(fr[3].regs()), [])
            p.salu("s_mov_b32", "exec_lo", 0x00010001)
            p.salu("s_mov_b32", "exec_hi", 0x00010001)
            for y in range(2):
                p.ds_write("ds_write_b128", u[1], bacc.sub(4 * y, 4), SCO + 128 + T * 128 + y * 16)
            p.raw("s_mov_b64 exec, -1")
        for T in range(3):
            tt = ta + 0.3 + 0.5 * T
            for k in range(3):
                for y in range(2):
                    d = bacc.sub(4 * y, 4)
                    s.mfma(tt, d, fr[k * 3 + T].sub(2 * y, 2), bf[k], d if k else 0)
            s.misc(tt + 0.25, lambda T=T: partial(T), rd=[bacc, u[1], fr[3], '@ba'], cost=10)
            for k in range(3):
                f = fr[k * 3 + T]
                for i in range(4):
                    w = V(182 + 2 * (i % 2), 2)
                    tc = tt + 0.05 + 0.04 * (4 * k + i)
                    s.valu(tc, "v_lshlrev_b32", w.sub(0), 16, f.sub(i))
                    s.valu(tc, "v_and_b32", w.sub(1), 0xFFFF0000, f.sub(i))
                    s.valu(tc, "v_cvt_pk_f16_f32", f.sub(i), w.sub(0), w.sub(1), rd=['@ba'])
        def warm():
            a, b = V(184), V(185)
            self.lane(b)
            p.salu("s_mov_b32", "m0", LDS_BYTES)
            if 'l' in o.get('warm', ''):
                p.valu("v_min_u32", b, 47, b)
                p.valu("v_and_b32", a, 7, b)
                p.valu("v_lshlrev_b32", a, 7, a)
                p.valu("v_lshrrev_b32", b, 3, b)
                p.valu("v_lshl_add_u32", a, b, 21, a)
                p.salu("s_add_u32", sT0, sLNB, W1F)
                p.raw(f"buffer_load_dword {a}, {sWS}, {sT0} offen lds")
                p.vm_seq += 1
            if 'x' in o.get('warm', ''):
                self.lane(b)
                p.valu("v_and_b32", a, 15, b)
                p.valu("v_min_u32", a, 11, a)
                p.valu("v_lshlrev_b32", a, 7, a)
                p.valu("v_lshrrev_b32", b, 4, b)
                p.valu("v_mul_u32_u24", b, 2 * ROWB, b)
                p.valu("v_add_u32", a, a, b)
                p.raw(f"buffer_load_dword {a}, {sX}, {sTILE[1]} offen lds")
                p.vm_seq += 1
        if o.get('warm'):
            s.misc(tb + o.get('wt', 0.2), warm, wr=[V(184, 2)], cost=40)
        k = tp + 0.8
        while k < tb:
            self.poll_op(k)
            k += o.get('pi', 0.3)
        self.prio_steps(s, tp + o.get('gp', 2.0), tb)
        self.code_pf(s, [T1 + 2, tb - 1])
        self.fine(s, [T1 - 2 + 0.5 * k for k in range(40)], 'mid')

        def ba():
            self.stamp(120)
            p.wait_all(vm=False)
            p.barrier()
            p.raw("s_setprio 2")
        s.misc(tb, ba, wr=['@ba', '@prio', '@bar'] + ([bacc] if o.get('stamps') else []))
        bs = [V(176 + i) for i in range(8)]
        for k in range(8):
            s.ds_read(tb, "ds_read_b32", bs[k], u[6], 9216 * k, rd=['@ba'])
        for k in range(1, 8):
            s.valu(tb, "v_add_f32", bs[0], bs[0], bs[k])
        s.ds_write(tb, "ds_write_b32", u[3], bs[0], rd=['@b4'])

    def poll_op(self, t):
        self.npoll += 1
        self.s.misc(t, lambda k=self.npoll: self.poll_point(k), wr=self.pollr)

    def fold(self, t):
        p, o, s, u, fr = self.p, self.o, self.s, self.u, self.fr
        rv, tv, gv, _ = self.poll_regs()
        lane, vWR = u[4], u[7:10]
        ad = u[5]

        def b4():
            p.salu("s_cmp_lg_u32", sWAVE, 0)
            p.raw("s_cbranch_scc1 Lspinx")
            p.cond_begin()
            p.raw("s_setprio 3")
            p.lines.append("Lspin:")
            p.salu("s_cmp_eq_u32", sROLE, 0)
            p.raw("s_cbranch_scc1 Lspiny")
            self.spin_guard("Lspiny")
            p.raw(f"s_call_b64 {sRET}, Lpoll")
            p.raw("s_branch Lspin")
            p.lines.append("Lspiny:")
            for i in range(3):
                p.ds_write("ds_write_b32", ad, tv[i], 4 * i)
            p.raw("s_waitcnt lgkmcnt(0)")
            p.cond_end()
            p.lines.append("Lspinx:")
            p.wait_all(vm=False)
            self.stamp(140)
            p.barrier()
            self.stamp(140)
        s.misc(t, b4, rd=[ad, '@ba'], wr=self.pollr + ['@b4', '@bar', '@prio'], cost=20)
        sc = [V(240 + 2 * k, 2) for k in range(3)]
        for k in range(3):
            s.ds_read(t, "ds_read_b64", sc[k], u[2], SCO + 32 * k, rd=['@b4'])
        s.misc(t, lambda: p._mem_deps([r for v in sc for r in v.regs()]), rd=sc, wr=['@sc'])
        for k in range(3):
            for T in range(3):
                f = fr[k * 3 + T]
                for i in range(4):
                    s.valu(t, "v_pk_mul_f16", f.sub(i), f.sub(i), sc[k].sub(i & 1))
                    if o.get('tw', 2):
                        if o.get('tw', 2) == 1:
                            s.valu(t, "v_add_u32", f.sub(i), 0x00040004, f.sub(i))
                        s.valu(t, "v_and_b32", f.sub(i), sM, f.sub(i))
                for y in range(2):
                    s.ds_write(t, "ds_write_b64", vWR[k], f.sub(2 * y, 2), (3 * y + T) * 1024, rd=['@sc', '@w2'])

        def b5():
            p.wait_all(vm=False)
            p.barrier()
            self.stamp(184)
        s.misc(t + o.get('tf', 0.5), b5, wr=['@w2', '@bar'] + ([V(184, 4)] if o.get('stamps') else []))

    def ln16(self, s, t, ln):
        for u in range(3):
            for i in range(4):
                s.swap(t, 16, ln[2 * u].sub(i), ln[2 * u + 1].sub(i))

    def xo(self, store, reg, h, T):
        o = self.o
        if ('o' if store else 'x') in o.get('x_no', ''):
            return
        if store:
            self.p.buf_store("buffer_store_dwordx4", reg, self.vG, sOUT, sTILE[h[0]], 64 * T + 192 * h[1], flags=o.get('osf', 'sc1').replace('+', ' '))
        else:
            self.p.buf_load("buffer_load_dwordx4", reg, self.vG, sX, sTILE[h[0]], 64 * T + 192 * h[1], flags=o.get('xlf', ''))

    def phase2(self):
        p, o, s = self.p, self.o, self.s
        halves = [(2, 0), (2, 1), (1, 0), (1, 1), (0, 0), (0, 1)]
        groups = [[(3, 0), (3, 1)]]
        for n in self.pattern('grp', '33'):
            groups.append(halves[:n])
            halves = halves[n:]
        assert not halves
        P0 = self.TB + 0.1
        ra = o.get('ra', 2)
        F0 = (2.2, 2.95, 5.2)[ra - 1]
        G0 = F0 + o.get('tf', 0.5) + 0.05
        frac = o.get('f2', 0.78)
        g2 = o.get('g2', 0.15)
        prod, t = [], P0 + G0
        for g in range(1, len(groups)):
            for j in range(12):
                for z in range(2):
                    d = len(groups[g]) / 4
                    n = len(prod)
                    prod.append((P0 + (0, d, 2 * d + 1.5)[n] if n < ra else t, d, g, j, z))
                    t += d if n >= ra else 0
        steps = [(0, j) for j, _ in self.fifo] + [(g, j) for g in range(1, len(groups)) for j in range(12)]
        wt = [0]
        for g, _ in steps:
            wt.append(wt[-1] + len(groups[g]))
        NQ = len(steps)
        lb = {steps.index((g, j)): t + d + g2 + o.get('lag', 1.45) for t, d, g, j, z in prod if z}
        b0, bt = o.get('b0', 7), o.get('bt', 2.4)
        tt = [P0 + G0 + bt * q / b0 for q in range(b0 + 1)]
        if o.get('b1', 5.2):
            tt += [tt[-1] + (o.get('b1', 5.2) - bt) * (q - b0) / (12 - b0) for q in range(b0 + 1, 13)]
        cq = o.get('cq', 19)
        if cq:
            q0 = len(tt) - 1
            tt += [max(lb.get(q, 0), tt[q0] + (lb[cq] - tt[q0]) * (wt[q] - wt[q0]) / (wt[cq] - wt[q0])) for q in range(q0 + 1, cq + 1)]
        while len(tt) < NQ:
            q0 = len(tt) - 1
            sl, q1 = max(((lb[q] - tt[q0]) / (wt[q] - wt[q0]), q) for q in lb if q > q0)
            tt += [tt[q0] + sl * (wt[q] - wt[q0]) for q in range(q0 + 1, q1 + 1)]
        tt.append(tt[-1] + 0.7)
        tq = tt.__getitem__

        def units(g):
            out = {}
            for h in groups[g]:
                for T in range(3):
                    out.setdefault((h[0], (3 * h[1] + T) // 2), []).append((h, T))
            return list(out.values())

        events = [(P0 + F0, 3, 0, 0)]
        for q in range(NQ):
            for k in range(7):
                events.append((tq(q) + (tq(q + 1) - tq(q)) * min(k, 5.9) / 6, 2, q, k))
        for e, (t, d, g, j, z) in enumerate(prod):
            for u in range(3):
                events.append((t + d * u / 3, 0, e, u))
        events.sort()
        e0 = min(e for e, x in enumerate(prod) if (0, 0) in groups[x[2]])

        def record(s, want, dry):
            line = []
            quads = lambda v: [v.sub(i, 4) for i in range(0, v.n, 4)]
            nring = o.get('nring', 5)
            Yf = quads(V(304 - self.Yr.b, 16))
            ring = [V(120, 4), V(124, 4)] + self.ring1[2:] + Yf[:nring - 4]
            small = [V(120, 4), V(124, 4)]
            pool = quads(self.Yr) + self.ring1[:2]
            aq = [V(b, 4) for b in (128, 132, 136, 140, 240, 244, 72, 76, 80, 84, 88, 92)]
            ACC = {(h, T, y): aq[6 * h[1] + 2 * T + y] for h in groups[0] for T in range(3) for y in range(2)}
            ent = {((3, v), j): b.sub(4 * v, 4) for j, b in self.fifo for v in range(2)}
            LNq = {(ti, v): [self.LN[ti].sub(8 * u + 4 * v, 4) for u in range(3)] for ti in (1, 2) for v in range(2)}
            idf = V(16, 8)

            xuse = {}
            ln0 = []
            back = []
            low = [99, 0]

            def take(t):
                if len(pool) - 1 < low[0]:
                    low[:] = [len(pool) - 1, t - P0]
                assert pool, ('out of registers', t - P0)
                line.append((t, len(pool) - 1))
                return pool.pop(0)

            def bias(h, T, y, t):
                s.ds_read(t, "ds_read_b128", ACC[h, T, y], self.vBias, (0x2000 + 128 * T if T < 2 else 0) + y * 16, rd=['@b4'])

            def wread(t, addr, off, rg=ring, rd=()):
                w = self.ring(rg)
                s.ds_read(t - o.get('lead', 0.8), "ds_read_b128", w, addr, off, rd=rd)
                return w

            npair = nlut = 0
            Y = {}
            for t, kind, i, k in events:
                back.sort(key=lambda x: x[0])
                while back and back[0][0] <= t:
                    pool.append(back.pop(0)[1])
                while want and want[0][0] <= t:
                    _, q, pcs = want.pop(0)
                    if q == -2:
                        k_ = self.rc[id(ring)] % len(ring)
                        ring.insert(k_, take(t))
                        self.rc[id(ring)] = k_
                        if o.get('show'):
                            print(f'ring+ at {t - P0:.1f}', end='; ')
                        continue
                    if q < 0:
                        for f in (2 * pcs, 2 * pcs + 1):
                            d = take(t)
                            ln0.append(d)
                            if 'l' not in o.get('x_no', ''):
                                s.vmem(t, lambda f=f, d=d: self.ws_frag(f, lambda so: p.buf_load(
                                    "buffer_load_dwordx4", d, self.vA[0], sWS, so, flags=o.get('rlf', ''))), wr=[d], lat=o.get('xlat', 2000))
                        if o.get('show') and not dry:
                            print(f'ln at {t - P0:.1f} for {prod[e0][0] - P0:.1f}', end='; ')
                        continue
                    if o.get('show') and not dry:
                        print(f'x at {t - P0:.1f} for {tq(q + 1) - P0:.1f}', end='; ')
                    xuse[q] = [(h, T, take(t)) for h, T in pcs]
                    for h, T, d in xuse[q]:
                        s.vmem(t, lambda d=d, h=h, T=T: self.xo(False, d, h, T), wr=[d], lat=o.get('xlat', 2000))
                line.append((t, len(pool)))
                if kind == 3:
                    if not dry:
                        for k in range(int(F0 / o.get('pi', 0.3))):
                            self.poll_op(P0 + o.get('pi', 0.3) * k)
                        self.fold(t)
                    for T in range(3):
                        for y in range(2):
                            bias(groups[0][0], T, y, t + 0.3)
                    pool += Yf[nring - 4:]
                    continue
                if kind == 0:
                    t0, d, g, j, z = prod[i]
                    G = groups[g]
                    if k == 0:
                        if i == e0:
                            while dry and len(ln0) < 6:
                                ln0.append(take(t))
                            self.ln16(s, t - 1.0, ln0)
                            for v in range(2):
                                LNq[0, v] = ln0[v::2]
                        Y = {h: take(t) for h in G}
                    w = wread(t, self.vH[j // 6], ((j % 6) * 6 + 2 * k) * 1024 + 256 * z, small if i < ra else ring)
                    for n, h in enumerate(G):
                        s.mfma(t + d * n / (3 * len(G)), Y[h], w, LNq[h][k], Y[h] if k else 0)
                        if j == 11 and z == 1:
                            back.append((t + d / 3, LNq[h][k]))
                    if k < 2:
                        continue
                    if z == 0:
                        ent.update({(h, j): Y[h] for h in G})
                    npair += 2 * len(G) * (frac if t - P0 > o.get('ft', 14) else o.get('f2a', frac))
                    nl = 2 * max(1, min(len(G), round((npair - nlut) / 2)))
                    nlut += nl
                    order = [(h, m) for h in G[len(G) - nl // 2:] + G[:len(G) - nl // 2] for m in range(2)]
                    self.gelu(s, t0 + d + g2, [Y[h].sub(2 * m, 2) for h, m in order], nl,
                              dst=[ent[h, j].sub(2 * z + m) for h, m in order], span=d)
                    if z:
                        back += [(t0 + d + g2 + o.get('fin', 0.9) + o.get('lw', 0.55) * d, Y[h]) for h in G]
                    continue
                q = i
                g, j = steps[q]
                G = groups[g]
                n = q % 12
                if k < 6:
                    T, y = divmod(k, 2)
                    w = wread(t, *self.frag(72 + (2 * j + y) * 3 + T), rd=['@w2'])
                    for m, h in enumerate(G[::-1]):
                        if (h, T, y) not in ACC:
                            ACC[h, T, y] = take(t)
                        d = ACC[h, T, y]
                        s.mfma(t + m * (tq(q + 1) - tq(q)) / (6 * len(G)), d, w, ent[h, j], d if n else ACC[G[0], T, y], 'f16')
                    continue
                if q != 2:
                    pool += [ent[h, j] for h in G]
                else:
                    for m in range(6):
                        if m in (2, 3):
                            s.valu(t, "v_cndmask_b32", idf.sub(m), 0, self.vI, sIX[m - 2])
                        else:
                            s.valu(t, "v_mov_b32", idf.sub(m), 0)
                assert all(w_[1] != q for w_ in want), ('late x', q)
                for h, T, x in xuse.get(q, ()):
                    for y in range(2):
                        s.mfma(t, ACC[h, T, y], idf.sub(2 - 2 * y, 4), x, ACC[h, T, y])
                    pool.append(x)
                if n == 11:
                    more = g + 1 < len(groups)
                    for T in range(3):
                        tt_ = t + 0.05 * T - 0.3
                        free = []
                        for h in G:
                            for m in range(4):
                                a_ = ACC[h, T, m >> 1]
                                s.valu(tt_, "v_cvt_pk_bf16_f32", ACC[h, T, 0].sub(m), a_.sub(2 * (m & 1)), a_.sub(2 * (m & 1) + 1))
                            free.append(ACC[h, T, 1])
                        if more:
                            for y in range(2):
                                ACC[groups[g + 1][0], T, y] = free.pop(0)
                                bias(groups[g + 1][0], T, y, tt_)
                        pool += free
                    for m, pcs in enumerate(units(g)):
                        ts = t + 0.1 + (o.get('sg%d' % g, o.get('sg', 1.6)) * m if more else 0)
                        for h, T in pcs:
                            d = ACC[h, T, 0]
                            s.vmem(ts, lambda d=d, h=h, T=T: self.xo(True, d, h, T), rd=[d], lat=0)
                            back.append((ts, d))
            return line, low

        rc = dict(self.rc)
        line, low = record(Sched(p, o), [], True)
        self.rc = rc
        wish = [(prod[e0][0] - o.get('rl0', 4.5) + o.get('rl', 1.0) * u, prod[e0][0] - 1e-6, 2, -1, u) for u in range(3)]
        for g in range(len(groups)):
            xs = [int(c, 16) for c in str(o.get(f'xq{g}', ('9ab', '4579b', '6789a', '89a')[g]))]
            for n, pcs in zip(xs, units(g)):
                q = 12 * g + n
                wish.append((tq(q) - o.get('xlead', 5.0), tq(q + 1), len(pcs), q, pcs))
        wish += [(P0 + G0, 1e9, 1, -2, None) for _ in range(o.get('rx', 3))]
        want = []
        for t0, t1, n, q, pay in wish:
            for t, f in line:
                if t0 <= t <= t1 and f < n + o.get('xres', 0):
                    t0 = t + 1e-6
            line = [(t, f - n if t0 <= t <= t1 else f) for t, f in line]
            want.append((t0, q, pay))
        want.sort(key=lambda x: x[0])
        line, low = record(s, want, False)
        if o.get('show'):
            print('fewest free quads', low, 'group ends', [round(tq(12 * g) - P0, 1) for g in range(1, len(groups) + 1)])
        pe = o.get('pe', 0)
        self.prio_steps(s, P0 + G0, tq(NQ) + 0.4 - pe, 'pp2')
        for k, f in enumerate((1.0, 0.6, 0.3, 0.12) if pe else ()):
            self.setprio(s, tq(NQ) + 0.4 - pe * f, 3 - k)
        self.fine(s, [P0 + G0 + e for e in range(38)], 'p2')
        if o.get('x_jit'):
            import random
            rnd = random.Random(o['x_jit'])

            def nap(k, mask, n):
                p.salu("s_lshr_b32", sT0, mask, sWAVE)
                p.salu("s_and_b32", sT0, sT0, 1)
                p.raw(f"s_cbranch_scc0 Lnap{k}")
                p.cond_begin()
                p.raw(f"s_sleep {n}")
                p.cond_end()
                p.lines.append(f"Lnap{k}:")
            for k in range(60):
                tt_ = rnd.choice((rnd.uniform(-1, tq(NQ)), rnd.uniform(-1, 8), rnd.uniform(20, 36), rnd.uniform(self.T1 - 10, P0 + G0 + 2)))
                s.misc(tt_, lambda k=k, m=rnd.randrange(1, 255), n=rnd.choice((4, 16, 60, 120)): nap(k, m, n))
        s.run(tag='all')
        for tag in ('p1', 'mid', 'p2'):
            self.fine_flush(tag)
        if o.get('fine') == 'su':
            self.nfine += 2
            self.fine_flush('su')
        self.stamp(168)

    def build(self):
        self.alloc()
        self.vW1g, self.vW1r, self.vW1w = V(115), V(116), V(117)
        self.prologue()
        self.phase1()
        self.gap()
        self.phase2()
        if self.o.get('x_pad'):
            p = self.p
            p.raw("s_waitcnt vmcnt(0)")
            p.lines.append("Lpad:")
            p.raw(f"s_memrealtime {sRT}")
            p.raw("s_waitcnt lgkmcnt(0)")
            p.salu("s_sub_u32", sT0, sRT.sub(0), S(100))
            p.salu("s_cmp_lt_u32", sT0, self.o['x_pad'])
            p.raw("s_cbranch_scc1 Lpad")
        self.p.raw("s_endpgm")
        self.poll_routine()
        self.p.lines.append("Lend:")
        self.p.raw("s_endpgm")
        return self.p


HEADER = open('standalone__modern_conv_block_convnext_v2__vision.s.ref').read().split('; Override launch')[0]


def wrap(p):
    return f"""{HEADER}; Generated by gen/gen6.py (hand-written generator; see gen/asmgen.py, gen/sched.py)
; One persistent launch: conv -> LayerNorm -> GEMM1 -> GELU -> sums of squares, grid reduction, then GEMM1 -> GELU -> GEMM2.
; kernel fills at start with the same formula for every sign, f16 exponent and 7-bit mantissa (bf16 resolution of h).
; @launch grid=(256,1,1) block=(512,1,1) lds={LDS_BYTES}
.amdgcn_target "amdgcn-amd-amdhsa--gfx950"
.text
.globl {NAME}
.p2align 8
.type {NAME},@function
{NAME}:
{p.text()}
.section .rodata,"a"
.p2align 6
.amdhsa_kernel {NAME}
  .amdhsa_next_free_vgpr 256
  .amdhsa_next_free_sgpr 102
  .amdhsa_accum_offset 256
  .amdhsa_group_segment_fixed_size 0
  .amdhsa_kernarg_size 72
  .amdhsa_user_sgpr_count 2
  .amdhsa_user_sgpr_kernarg_segment_ptr 1
  .amdhsa_system_sgpr_workgroup_id_x 1
.end_amdhsa_kernel
"""


def parse(args):
    opt = {}
    for a in args:
        k, v = a.split('=')
        if k.startswith(('nl', 'keep', 'sp0', 'sp1', 'xq', 'grp')):
            opt[k] = v
            continue
        try:
            opt[k] = int(v)
        except ValueError:
            try:
                opt[k] = float(v)
            except ValueError:
                opt[k] = v
    return opt


if __name__ == '__main__':
    out = sys.argv[1]
    opt = parse(sys.argv[2:])
    g = Gen(opt)
    p = g.build()
    from align import align_dp
    al = align_dp(p.lines, ncost=opt.get('nc', 1e9))
    open(out, 'w').write(wrap(p))
    print(out, 'align', al, 'instructions', sum(p.stats.values()), 'stamps', g.nstamp,
          {k: v for k, v in p.stats.items() if k in ('s_nop', 's_waitcnt', 'ds_read_b128', 'ds_read_u16')})
```

```python
import math
import struct
import sys

from asmgen import *
from sched import Sched

NAME = 'standalone__modern_conv_block_convnext_v2__vision_kernel'


def f2u(x):
    return struct.unpack('<I', struct.pack('<f', x))[0]


def h2u(x):
    return struct.unpack('<H', struct.pack('<e', x))[0]


C2 = -2 * math.sqrt(2 / math.pi) * math.log2(math.e)
C1 = C2 * 0.044715
GA = -(abs(C1) ** (1.0 / 3.0))
GK = C2 / GA

HOLE = (0x1F00, 0x3F00)
W1F = 16384
R2 = W1F + 73728
RS = 6592
DIAG = R2 + 10 * RS
CNT = HOLE[0] + 192
C_PUB, C_W1A, C_W1B, C_F, C_T2 = 4, 8, 12, 16, 32
SCO = 3072
TABO = 5120
LDS_BYTES = 163840
WS_P = 0
WS_TOT = 96 * 256 * 16
WS_STAMP = 1 << 20
WS_LN = 4 << 20
WS_BYTES = 80 << 20
OOB_V = 0x80000000
OOB_S = 0x40000000
X_BYTES = 512 * 512 * 96 * 2
ROWB = 512 * 192
LO = "dst_sel:WORD_0 dst_unused:UNUSED_PRESERVE src0_sel:WORD_0"
HI = "dst_sel:WORD_1 dst_unused:UNUSED_PRESERVE src0_sel:WORD_1"

sX, sOUT, sW1, sW2, sDW, sGA, sBE, sWS, sDBG = [S(4 + 4 * i, 4) for i in range(9)]
sWAVE, sX0, sY0, sT0, sT1, sT2, sT3 = [S(40 + i) for i in range(7)]
sK, sM, sA = S(48), S(49), S(47)
sID = [S(50 + 2 * i, 2) for i in range(8)]
sIX = [S(88, 2), S(90, 2)]
sD4 = [S(92, 2), S(94, 2)]
sYB, sXM = S(66), S(67)
sTILE = [S(68 + i) for i in range(4)]
sPRIV = S(72)
sSTAMP = S(73)
sEX = S(74, 2)
sCNT = S(76)
sROLE = S(77)
sRET = S(78, 2)
sVM = S(3)
sLNB, sSL, sW2B, sFC = S(80), S(81), S(82), S(83)
sLD = S(80, 16)
sTM = S(96, 2)
sRT = S(98, 2)


class Gen:
    def __init__(self, opt):
        self.o = opt
        self.p = Prog()
        self.p.rawpad, self.p.warpad = opt.get('rawpad', 0), opt.get('warpad', 0)
        self.nstamp = 0
        self.rc = {}

    def stamp(self, tb):
        p = self.p
        if self.o.get('dbgs'):
            self.nstamp += 1
            reg = {3: 84, 4: 85, 8: 86, 9: 87}.get(self.nstamp)
            if reg:
                p.raw(f"s_memrealtime {sRT}")
                p.raw("s_waitcnt lgkmcnt(0)")
                p.lgkm_done = p.lgkm_seq
                p.salu("s_mov_b32", S(reg), sRT.sub(0))
            if self.nstamp == 9:
                p.salu("s_cmp_lg_u32", sWAVE, 7)
                p.raw("s_cbranch_scc1 Ldbgx")
                p.salu("s_mul_i32", sT0, S(2), 1285)
                p.salu("s_add_u32", sT0, sT0, 1284)
                p.salu("s_lshr_b32", sT0, sT0, 16)
                p.salu("s_mul_i32", sT1, sT0, 51)
                p.salu("s_cmp_lg_u32", sT1, S(2))
                p.raw("s_cbranch_scc1 Ldbgx")
                p.salu("s_mul_i32", sT0, sT0, 12)
                p.valu("v_mov_b32", V(0), 4)
                for i in range(3):
                    p.salu("s_sub_u32", sT1, S(85 + i), S(100))
                    p.valu("v_mov_b32", V(2 + i), sT1)
                p.raw("s_mov_b64 exec, 1")
                p.raw(f"buffer_store_dwordx3 v[2:4], v0, {sDBG}, {sT0} offen")
                p.lines.append("Ldbgx:")
            return
        if not self.o.get('stamps'):
            return
        t = V(tb, 4)
        p.raw(f"s_memtime {sTM}")
        p.raw(f"s_memrealtime {sRT}")
        p.raw("s_waitcnt lgkmcnt(0)")
        p.lgkm_done = p.lgkm_seq
        for i in range(4):
            p.valu("v_mov_b32", t.sub(i), S(sTM.b + i))
        p.salu("s_sub_u32", sT0, sSTAMP, W1F)
        if self.o.get('dbgt'):
            p.valu("v_mov_b32", t.sub(0), 0)
        p.raw("s_mov_b64 exec, 1")
        if self.o.get('dbgt'):
            p.buf_store("buffer_atomic_umax", t.sub(2), t.sub(0), sDBG, 0, 8 + 4 * self.nstamp)
        else:
            p.buf_store("buffer_store_dwordx4", t, self.vA[0], sWS, sT0, 16 * self.nstamp)
        p.raw("s_mov_b64 exec, -1")
        p.nop(2)
        self.nstamp += 1

    def fine(self, s, times, tag):
        if self.o.get('fine') != tag:
            return
        p = self.p

        def one(k):
            if k:
                p.raw(f"v_writelane_b32 v249, s{84 + 2 * ((k - 1) % 2)}, {k - 1}")
            p.raw(f"s_memtime s[{84 + 2 * (k % 2)}:{85 + 2 * (k % 2)}]")
        for k, t in enumerate(times):
            s.misc(t, lambda k=k: one(k), wr=['@fine'])
        self.nfine = len(times)

    def mark(self):
        if self.o.get('fine') != 'su':
            return
        k = self.nfine = getattr(self, 'nfine', -1) + 1
        self.p.raw("s_memtime s[100:101]")
        self.p.raw("s_waitcnt lgkmcnt(0)")
        self.p.raw(f"v_writelane_b32 v249, s100, {k}")

    def fine_flush(self, tag):
        if self.o.get('fine') != tag:
            return
        p, k = self.p, self.nfine
        p.raw(f"s_memtime s[{84 + 2 * (k % 2)}:{85 + 2 * (k % 2)}]")
        p.raw("s_waitcnt lgkmcnt(0)")
        for i in (k - 1, k):
            p.raw(f"v_writelane_b32 v249, s{84 + 2 * (i % 2)}, {i}")
        p.salu("s_lshl_b32", sT0, S(2), 3)
        p.salu("s_add_u32", sT0, sT0, sWAVE)
        p.salu("s_lshl_b32", sT0, sT0, 10)
        p.salu("s_add_u32", sT0, sT0, (2 << 20) - W1F)
        p.buf_store("buffer_store_dword", V(249), self.vA[0], sWS, sT0)

    def frag(self, idx):
        return self.vA[idx >> 6], (idx & 63) * 1024

    def ring(self, rg):
        k = self.rc.get(id(rg), 0)
        self.rc[id(rg)] = k + 1
        return rg[k % len(rg)]

    def srd(self, d, ptr, nbytes):
        p = self.p
        p.salu("s_mov_b32", d.sub(0), ptr.sub(0))
        p.salu("s_and_b32", d.sub(1), ptr.sub(1), 0xFFFF)
        p.salu("s_mov_b32", d.sub(2), nbytes)
        p.salu("s_mov_b32", d.sub(3), 0x20000)

    def lane_sum64(self, v, t):
        p = self.p
        for r in (8, 4, 2, 1):
            p.valu("v_add_f32_dpp", v, v, v, mods=f"row_ror:{r} row_mask:0xf bank_mask:0xf")
        p.valu("v_mov_b32", t, v)
        p.swap16(v, t)
        p.valu("v_add_f32", v, v, t)
        p.valu("v_mov_b32", t, v)
        p.swap32(v, t)
        p.valu("v_add_f32", v, v, t)

    def lane(self, dst):
        self.p.valu("v_bfe_u32", dst, self.vA[0], 4, 6)

    def call_if(self, older, names, tag):
        p = self.p
        p.salu("s_cmp_lt_u32" if older else "s_cmp_ge_u32", sWAVE, 4)
        p.raw(f"s_cbranch_scc0 {tag}")
        p.cond_begin()
        for n in names:
            p.raw(n if n.startswith("s_") else f"s_call_b64 {sRET}, {n}")
        p.cond_end()
        p.lines.append(f"{tag}:")

    def alloc(self):
        self.LN = [V(24 * t, 24) for t in range(4)]
        self.CA = [V(0, 48), V(48, 48), V(48, 48), V(96, 48)]
        self.Y1 = [V(96 + 16 * i, 16) for i in range(self.o.get('ny', 5))]
        self.ring1 = [V(176 + 4 * i, 4) for i in range(4)]
        self.ringA = [V(192 + 4 * i, 4) for i in range(5)]
        self.ringB = [V(144 + 4 * i, 4) for i in range(8)]
        self.vB = [V(212 + i) for i in range(4)]
        self.ls = [[V(240, 2), V(242, 2), V(244, 2)], [V(216, 2), V(218, 2), V(220, 2)]]
        self.tq = V(222, 2)
        self.SQ = [V(224 + i) for i in range(12)]
        self.vX, self.vC = [V(236), V(237)], [V(238), V(239)]
        self.vB0, self.vCnt, self.vS = V(246), V(247), V(248)
        self.vA = [V(250), V(251), V(252)]
        self.vG, self.vBias, self.vI = V(253), V(254), V(255)
        hexs = lambda k, d: [int(c, 16) for c in str(self.o.get(k, d)) if c != 'n']
        self.keep = hexs('keep', '2345678ab')
        self.sp = {0: hexs('sp0', 'n'), 1: hexs('sp1', 'n'), 2: [], 3: []}
        self.spi = {(ti, j): 6 + 2 * n for n, (ti, j) in enumerate((ti, j) for ti in (0, 1) for j in self.sp[ti])}
        fifo = [0, 8, 16, 96, 104, 192, 200, 208, 224, 112, 216, 232]
        late = {j: b for j, b in ((10, 96), (11, 104)) if j in self.keep}
        rest = [j for j in self.keep if j not in late]
        assert len(rest) <= 6 or (len(rest) == 7 and rest[6] >= 8)
        late.update(zip(rest, [0, 8, 16, 192, 200, 208, 224]))
        self.todo = [j for j in range(12) if j not in self.keep]
        col = {b: j for j, b in late.items()}
        col.update(zip([b for b in fifo if b not in col], self.todo))
        self.fifo = [(col[b], V(b, 8)) for b in fifo]
        self.blk3 = {j: b for j, b in self.fifo}
        self.vW2 = V(246)

    def signal(self, off, dyn=False):
        p = self.p
        a, b = self.tq.sub(0), self.tq.sub(1)
        p.valu("v_mov_b32", b, 1)
        if dyn:
            p.valu("v_add_u32", a, sFC, self.vCnt)
        p.wait_all(vm=False)
        p.raw("s_mov_b64 exec, 1")
        p.ds_write("ds_add_u32", a if dyn else self.vCnt, b, off)
        p.raw("s_mov_b64 exec, -1")

    def await_(self, off, n, dyn=False, tq=None):
        p = self.p
        tq = tq or self.tq
        a, b = tq.sub(0), tq.sub(1)
        k = self.nawait = getattr(self, 'nawait', 0) + 1
        if dyn:
            p.valu("v_add_u32", a, sFC, self.vCnt)
        p.valu("v_mov_b32", b, 0)
        p.raw(f"s_branch Law{k}")
        p.lines.append(f"Lax{k}:")
        p.raw("s_sleep 2")
        p.lines.append(f"Law{k}:")
        p.raw(f"ds_read_b32 {b}, {a if dyn else self.vCnt} offset:{off}")
        p.raw(f"s_sub_u32 {sCNT}, {sCNT}, 1")
        p.raw(f"s_cselect_b32 {sT1}, {n}, 0")
        p.raw(f"s_cselect_b32 {sCNT}, 0, {sCNT}")
        p.raw("s_waitcnt lgkmcnt(0)")
        p.raw(f"v_readfirstlane_b32 {sT0}, {b}")
        p.raw("s_nop 1")
        p.raw(f"s_max_u32 {sT0}, {sT0}, {sT1}")
        p.raw(f"s_cmp_lt_u32 {sT0}, {n}")
        p.raw(f"s_cbranch_scc1 Lax{k}")
        p.lgkm_seq += 1
        p.lgkm_done = p.lgkm_seq

    def row0_dma(self, R, k=0):
        p = self.p
        p.salu("s_add_u32", "m0", sXM, R * RS + ((R >> 1) & 3) * 16 + 896 * k)
        so = sYB
        if R == 0:
            p.salu("s_sub_u32", sT2, sYB, ROWB)
            p.salu("s_cmp_eq_u32", sY0, 0)
            p.salu("s_cselect_b32", sT2, OOB_S, sT2)
            so = sT2
        elif R > 1:
            p.salu("s_add_u32", sYB, sYB, ROWB)
        p.dma(self.vX[k], sX, so, flags='nt' if self.o.get('nt0', 0) else '')

    def row_dma(self, R):
        p = self.p
        p.salu("s_add_u32", sSL, sSL, RS)
        p.salu("s_cmp_eq_u32", sSL, 10 * RS)
        p.salu("s_cselect_b32", sSL, 0, sSL)
        p.salu("s_add_u32", sT0, sSL, sXM)
        p.salu("s_add_u32", "m0", sT0, ((R >> 1) & 3) * 16)
        p.salu("s_add_u32", sYB, sYB, ROWB)
        p.dma(self.vX[0], sX, sYB)
        p.salu("s_add_u32", "m0", sT0, ((R >> 1) & 3) * 16 + 896)
        self.x_tok = p.dma(self.vX[1], sX, sYB)

    def skip_round(self):
        p = self.p
        p.salu("s_add_u32", sYB, sYB, 8 * ROWB)
        p.salu("s_sub_u32", sSL, sSL, 2 * RS)

    def touch_rows(self, a, b):
        p = self.p
        self.lane(b)
        p.valu("v_and_b32", a, 15, b)
        p.valu("v_lshlrev_b32", a, 7, a)
        p.valu("v_lshrrev_b32", b, 4, b)
        p.valu("v_mul_u32_u24", b, ROWB, b)
        p.salu("s_sub_u32", sT0, sXM, R2 + 192 - ROWB)
        p.salu("s_mul_i32", sT1, sX0, 192)
        p.salu("s_add_u32", sT0, sT0, sT1)
        p.valu("v_add3_u32", a, a, b, sT0)
        p.salu("s_mov_b32", "m0", LDS_BYTES)
        p.salu("s_add_u32", sT1, sYB, 4 * ROWB)
        for so in (sYB, sT1):
            p.raw(f"buffer_load_dword {a}, {sX}, {so} offen lds")
            p.vm_seq += 1

    def conv_addr(self):
        p = self.p
        a = self.tq.sub(0)
        p.salu("s_add_u32", sT0, sSL, RS)
        for k in range(4):
            p.valu("v_add_u32", self.vB[k], sT0, self.vB0)
            if k:
                p.valu("v_add_u32", self.vB[k], k * RS, self.vB[k])
            if k >= 2:
                p.valu("v_add_u32", a, 16, self.vB[k])
                p.valu("v_bfi_b32", self.vB[k], 48, a, self.vB[k])
            p.valu("v_subrev_u32", a, 10 * RS, self.vB[k])
            p.valu("v_min_u32", self.vB[k], self.vB[k], a)
            p.valu("v_add_u32", self.vB[k], R2, self.vB[k])

    def w1_dma(self, u):
        p = self.p
        p.salu("s_and_b32", sT0, sWAVE, 3)
        p.salu("s_add_u32", sT0, sT0, 4 * u)
        p.salu("s_mul_i32", sT1, sT0, 43)
        p.salu("s_lshr_b32", sT1, sT1, 8)
        p.salu("s_lshl_b32", sT3, sT0, 10)
        p.salu("s_add_u32", "m0", sT3, W1F)
        p.salu("s_mul_i32", sT3, sT1, 6)
        p.salu("s_sub_u32", sT0, sT0, sT3)
        p.salu("s_mul_i32", sT0, sT0, 12288)
        p.salu("s_lshl_b32", sT1, sT1, 6)
        p.salu("s_add_u32", sT0, sT0, sT1)
        return p.dma(self.vW1g, sW1, sT0)

    def tr_addr(self, dst, lane, t0, hshift):
        p = self.p
        p.valu("v_lshrrev_b32", t0, 5, lane)
        p.valu("v_lshlrev_b32", dst, hshift, t0)
        p.valu("v_bfe_u32", t0, lane, 2, 2)
        p.valu("v_lshl_add_u32", dst, t0, 6, dst)
        p.valu("v_bfe_u32", t0, lane, 4, 1)
        p.valu("v_lshl_add_u32", dst, t0, 5, dst)
        p.valu("v_and_b32", t0, 1, lane)
        p.valu("v_lshl_add_u32", dst, t0, 4, dst)
        p.valu("v_bfe_u32", t0, lane, 1, 1)
        p.valu("v_lshl_add_u32", dst, t0, 3, dst)

    def prologue(self):
        p, o = self.p, self.o
        p.salu("s_cmp_ge_u32", S(2), 256)
        p.raw("s_cbranch_scc1 Lend")
        p.raw(f"s_load_dwordx16 {sLD}, s[0:1], 0")
        p.raw(f"s_load_dwordx2 {sTM}, s[0:1], 64")
        if o.get('stamps'):
            p.raw("s_memtime s[68:69]")
            p.raw("s_memrealtime s[70:71]")
        if o.get('dbgs') or o.get('x_pad'):
            p.raw("s_memrealtime s[100:101]")
        self.mark()
        tid, lane = V(119), V(118)
        t = [V(120 + i) for i in range(48)]
        p.valu("v_mov_b32", tid, V(0))
        p.valu("v_and_b32", lane, 63, V(0))
        p.valu("v_lshrrev_b32", t[0], 6, V(0))
        p.valu("v_readfirstlane_b32", sWAVE, t[0])
        p.raw(f"s_getpc_b64 {sEX}")
        p.lines.append("Lpc:")
        p.salu("s_lshr_b32", sT0, S(2), 3)
        p.salu("s_and_b32", sT0, sT0, 15)
        p.salu("s_lshl_b32", sT0, sT0, 13)
        p.valu("v_lshrrev_b32", t[2], 3, V(0))
        p.valu("v_lshl_add_u32", t[2], t[2], 7, sT0)
        p.valu("v_min_u32", t[2], "Lend-Lpc", t[2])
        if o.get('pf', 1):
            p.raw(f"global_load_dword v112, {t[2]}, {sEX}")
            p.vm_seq += 1
        p.salu("s_and_b32", sT0, S(2), 7)
        p.salu("s_lshr_b32", sT1, S(2), 3)
        p.salu("s_and_b32", sX0, sT0, 3)
        p.salu("s_lshl_b32", sX0, sX0, 2)
        p.salu("s_and_b32", sT2, sT1, 3)
        p.salu("s_add_u32", sX0, sX0, sT2)
        p.salu("s_lshr_b32", sY0, sT0, 2)
        p.salu("s_lshl_b32", sY0, sY0, 3)
        p.salu("s_lshr_b32", sT2, sT1, 2)
        p.salu("s_add_u32", sY0, sY0, sT2)
        p.salu("s_lshl_b32", sX0, sX0, 5)
        p.salu("s_lshl_b32", sY0, sY0, 5)
        p.salu("s_and_b32", sT0, sWAVE, 3)
        p.salu("s_mul_i32", sT0, sT0, 1536)
        p.salu("s_add_u32", sXM, sT0, R2)
        p.salu("s_mul_i32", sT1, sX0, 192)
        p.salu("s_add_u32", sT0, sT0, sT1)
        p.salu("s_sub_u32", sT0, sT0, 192)
        p.valu("v_lshl_add_u32", t[1], lane, 4, sT0)
        p.valu("v_add_u32", t[3], 896, t[1])
        p.valu("v_mov_b32", t[2], OOB_V)
        p.salu("s_mov_b32", sT1, ROWB)
        p.valu("v_cmp_gt_u32", "vcc", sT1, t[1])
        p.valu("v_cndmask_b32", self.vX[0], t[2], t[1], "vcc")
        p.valu("v_cmp_gt_u32", "vcc", sT1, t[3])
        p.valu("v_cndmask_b32", self.vX[1], t[2], t[3], "vcc")
        p.salu("s_mul_i32", sYB, sY0, ROWB)
        dv, di = V(126, 2), t[8]
        p.valu("v_min_u32", di, 215, tid)
        p.valu("v_lshlrev_b32", t[10], 3, di)
        p.valu("v_lshlrev_b32", self.vA[0], 4, lane)
        p.raw("s_waitcnt lgkmcnt(0)")
        self.srd(sX, sLD.sub(0, 2), X_BYTES)
        self.mark()
        p.salu("s_cmp_ge_u32", sWAVE, 4)
        p.raw("s_cbranch_scc1 Lrowb")
        p.cond_begin()
        self.srd(sDW, sLD.sub(2, 2), 1728)
        p.buf_load("buffer_load_dwordx2", dv, t[10], sDW)
        for R in range(10):
            self.row0_dma(R)
        p.raw("s_branch Lsetup")
        p.cond_end()
        p.lines.append("Lrowb:")
        p.cond_begin()
        if o.get('t0', 0):
            p.valu("v_and_b32", t[20], 7, lane)
            p.valu("v_lshlrev_b32", t[20], 7, t[20])
            p.valu("v_lshrrev_b32", t[21], 3, lane)
            p.valu("v_mul_u32_u24", t[21], ROWB, t[21])
            p.salu("s_add_u32", sT0, sT0, 896 + 64 + ROWB)
            p.valu("v_add3_u32", t[20], t[20], t[21], sT0)
            p.salu("s_mov_b32", "m0", LDS_BYTES)
            p.nop(1)
            p.raw(f"buffer_load_dword {t[20]}, {sX}, {sYB} offen lds")
        for R in range(10):
            self.row0_dma(R, 1)
        self.mark()
        self.srd(sW1, sLD.sub(4, 2), 73728)
        p.valu("v_lshrrev_b32", self.vW1g, 2, lane)
        p.valu("v_mul_u32_u24", self.vW1g, 768, self.vW1g)
        p.valu("v_and_b32", t[5], 3, lane)
        p.valu("v_lshl_add_u32", self.vW1g, t[5], 4, self.vW1g)
        tp = o.get('tp', 6)
        for u in range(6):
            self.w1_dma(u)
        if tp == 6:
            self.touch_rows(t[20], t[21])
        self.mark()
        p.raw(f"s_waitcnt vmcnt({8 if tp == 6 else 6})")
        self.mark()
        p.barrier()
        p.raw("s_setprio %d" % o.get('bp', 0))
        for u in range(6, 18):
            self.w1_dma(u)
            if u + 1 == tp:
                self.touch_rows(t[20], t[21])
        p.cond_end()
        p.lines.append("Lsetup:")
        self.mark()
        self.srd(sW2, sLD.sub(6, 2), 73728)
        self.srd(sGA, sLD.sub(8, 2), 768)
        self.srd(sBE, sLD.sub(10, 2), 768)
        self.srd(sOUT, sLD.sub(12, 2), X_BYTES)
        self.srd(sDBG, sLD.sub(14, 2), 256)
        self.srd(sWS, sTM, WS_BYTES)
        for i in range(3):
            p.valu("v_lshlrev_b32", self.vA[i], 4, lane)
            p.valu("v_add_u32", self.vA[i], W1F + 65536 * i, self.vA[i])
        p.salu("s_lshl_b32", sSTAMP, S(2), 3)
        p.salu("s_add_u32", sSTAMP, sSTAMP, sWAVE)
        p.salu("s_lshl_b32", sLNB, sSTAMP, 10)
        p.salu("s_add_u32", sLNB, sLNB, WS_LN - W1F)
        p.salu("s_mul_i32", sSTAMP, sSTAMP, 16 * o.get('stamps', 1))
        p.salu("s_add_u32", sSTAMP, sSTAMP, WS_STAMP)
        if o.get('stamps'):
            for i in range(4):
                p.valu("v_mov_b32", V(188 + i), S(68 + i))
            p.salu("s_sub_u32", sT0, sSTAMP, W1F)
            p.raw("s_mov_b64 exec, 1")
            if o.get('dbgt'):
                p.valu("v_mov_b32", V(188), 0)
                p.valu("v_not_b32", V(189), V(190))
                p.buf_store("buffer_atomic_umax", V(189), V(188), sDBG, 0, 4)
                p.buf_store("buffer_atomic_umax", V(190), V(188), sDBG, 0, 8)
            else:
                p.buf_store("buffer_store_dwordx4", V(188, 4), self.vA[0], sWS, sT0, 0)
            p.raw("s_mov_b64 exec, -1")
            self.nstamp += 1
        p.salu("s_mov_b32", sK, h2u(GK) * 0x10001)
        p.salu("s_mov_b32", sM, 0xFFF8FFF8)
        p.salu("s_mov_b32", sA, 0x3FFE)
        m, g = t[11], t[12]
        p.valu("v_and_b32", m, 15, lane)
        p.valu("v_lshrrev_b32", g, 4, lane)
        p.valu("v_and_b32", t[13], 3, m)
        p.valu("v_mul_u32_u24", t[14], 2 * RS + 16, t[13])
        p.valu("v_lshrrev_b32", t[13], 2, m)
        p.valu("v_lshl_add_u32", t[13], t[13], 1, g)
        p.valu("v_mul_u32_u24", t[13], 192, t[13])
        p.salu("s_sub_u32", sT0, sXM, R2)
        p.valu("v_add3_u32", self.vB0, t[13], t[14], sT0)
        p.valu("v_bfe_u32", t[13], m, 2, 1)
        p.valu("v_sub_u32", t[13], g, t[13])
        p.valu("v_lshrrev_b32", t[14], 3, m)
        p.valu("v_and_b32", t[15], 3, m)
        p.valu("v_lshl_add_u32", t[15], t[14], 2, t[15])
        p.valu("v_lshlrev_b32", t[16], 6, t[13])
        p.valu("v_lshl_add_u32", t[16], t[15], 3, t[16])
        p.valu("v_add_u32", t[16], DIAG + 8, t[16])
        p.valu("v_mov_b32", t[17], DIAG)
        p.valu("v_cmp_gt_u32", "vcc", 3, t[13])
        p.valu("v_cndmask_b32", t[16], t[17], t[16], "vcc")
        p.valu("v_cmp_eq_u32", "vcc", 0, t[14])
        p.valu("v_cndmask_b32", self.vC[0], t[17], t[16], "vcc")
        p.valu("v_cndmask_b32", self.vC[1], t[16], t[17], "vcc")
        p.valu("v_lshrrev_b32", t[13], 2, m)
        p.valu("v_bfe_u32", t[15], m, 1, 1)
        p.valu("v_cmp_eq_u32", "vcc", t[13], g)
        p.valu("v_cndmask_b32", t[15], 8, t[15], "vcc")
        for i in range(2):
            p.valu("v_cmp_eq_u32", sIX[i], i, t[15])
        p.valu("v_lshlrev_b32", self.vBias, 5, g)
        p.valu("v_add_u32", self.vBias, HOLE[0], self.vBias)
        p.valu("v_lshlrev_b32", self.vG, 4, g)
        n, h = t[11], t[12]
        p.valu("v_and_b32", n, 31, lane)
        p.valu("v_lshrrev_b32", h, 5, lane)
        p.valu("v_bfe_u32", t[13], n, 2, 1)
        p.valu("v_bfe_u32", t[14], n, 3, 1)
        p.valu("v_bfe_u32", t[15], n, 1, 1)
        p.valu("v_lshrrev_b32", t[16], 4, n)
        p.valu("v_lshl_add_u32", t[15], t[16], 1, t[15])
        p.valu("v_lshl_add_u32", t[15], t[14], 2, t[15])
        p.valu("v_cmp_eq_u32", "vcc", t[13], h)
        p.valu("v_cndmask_b32", t[15], 8, t[15], "vcc")
        for i in range(8):
            p.valu("v_cmp_eq_u32", sID[i], i, t[15])
        p.valu("v_and_b32", t[16], 1, n)
        p.valu("v_lshlrev_b32", t[16], 4, t[16])
        p.valu("v_mov_b32", self.vI, 0x3F80)
        p.valu("v_lshlrev_b32", self.vI, t[16], self.vI)
        p.valu("v_and_b32", t[17], 19, n)
        p.valu("v_lshl_add_u32", t[17], t[13], 3, t[17])
        p.valu("v_lshl_add_u32", t[17], t[14], 2, t[17])
        p.valu("v_lshlrev_b32", t[17], 2, t[17])
        p.valu("v_lshl_add_u32", t[17], h, 7, t[17])
        p.salu("s_mul_i32", sW2B, sWAVE, 9216)
        p.salu("s_add_u32", sPRIV, sW2B, R2)
        p.valu("v_add_u32", self.vS, sPRIV, t[17])
        p.valu("v_and_b32", t[13], 3, lane)
        p.valu("v_mul_u32_u24", t[14], 2 * ROWB, t[13])
        p.valu("v_bfe_u32", t[13], lane, 2, 2)
        p.valu("v_mul_u32_u24", t[13], 384, t[13])
        p.valu("v_add3_u32", self.vG, self.vG, t[13], t[14])
        p.salu("s_mul_i32", sT3, sX0, 192)
        p.salu("s_add_u32", sT3, sT3, sXM)
        p.salu("s_sub_u32", sT3, sT3, R2)
        p.salu("s_and_b32", sFC, sWAVE, 4)
        p.salu("s_lshl_b32", sT1, sFC, 1)
        p.salu("s_add_u32", sT1, sT1, sY0)
        for ti in range(4):
            p.salu("s_add_u32", sT0, sT1, 16 * (ti >> 1) + (ti & 1))
            p.salu("s_mul_i32", sT0, sT0, ROWB)
            p.salu("s_add_u32", sTILE[ti], sT0, sT3)
        for i in range(2):
            p.salu("s_mov_b32", sD4[0].sub(i), 0xAAAAAAAA)
            p.salu("s_mov_b32", sD4[1].sub(i), 0xCCCCCCCC)
        p.salu("s_mov_b32", sSL, 9 * RS)
        p.salu("s_mov_b32", sCNT, 200000)
        p.valu("v_mov_b32", self.vCnt, CNT)
        self.tr_addr(self.vW1r, lane, t[28], 8)
        p.salu("s_and_b32", sT0, sWAVE, 3)
        p.salu("s_lshl_b32", sT0, sT0, 10)
        p.valu("v_add_u32", self.vW1w, sT0, self.vA[0])
        p.salu("s_add_u32", sT0, sT0, W1F)
        p.valu("v_add_u32", self.vW1r, sT0, self.vW1r)
        for r in self.SQ:
            p.valu("v_mov_b32", r, 0)
        self.mark()
        p.salu("s_cmp_ge_u32", sWAVE, 4)
        p.raw("s_cbranch_scc1 Lwa")
        p.cond_begin()
        ch = [V(64 + 2 * k, 2) for k in range(5)]
        for r in (ch[0].sub(1), ch[1].sub(1), ch[2].sub(0), ch[3].sub(0), ch[4].sub(0), ch[4].sub(1)):
            p.valu("v_mov_b32", r, 0)
        p.valu("v_min_u32", t[20], 35, tid)
        p.valu("v_mul_u32_u24", t[20], 200, t[20])
        p.valu("v_add_u32", t[20], DIAG, t[20])
        p.valu("v_and_b32", t[21], 31, tid)
        p.valu("v_lshlrev_b32", t[21], 3, t[21])
        p.valu("v_bfe_u32", t[22], tid, 5, 1)
        p.valu("v_lshl_add_u32", t[21], t[22], 13, t[21])
        p.valu("v_add_u32", t[21], HOLE[0], t[21])
        p.valu("v_cmp_gt_u32", "vcc", 64, tid)
        p.valu("v_cndmask_b32", t[20], t[21], t[20], "vcc")
        p.ds_write("ds_write_b64", t[20], ch[4])
        p.valu("v_lshrrev_b32", t[20], 1, di)
        p.valu("v_mul_u32_u24", t[21], 57, t[20])
        p.valu("v_lshrrev_b32", t[21], 11, t[21])
        p.valu("v_mul_u32_u24", t[22], 171, t[20])
        p.valu("v_lshrrev_b32", t[22], 11, t[22])
        p.valu("v_mul_u32_u24", t[20], 200, t[20])
        p.valu("v_mul_u32_u24", t[22], 2400 - 64, t[22])
        p.valu("v_mul_u32_u24", t[21], 2400 - 192, t[21])
        p.valu("v_sub_u32", t[20], t[20], t[22])
        p.valu("v_add_u32", t[20], t[20], t[21])
        p.valu("v_and_b32", t[21], 1, di)
        p.valu("v_lshl_add_u32", t[20], t[21], 5, t[20])
        p.valu("v_add_u32", t[20], DIAG + 8, t[20])
        self.gelu_table()
        p.raw("s_waitcnt vmcnt(10)")
        for r in dv.regs():
            p.p_vm[r] = None
        for k in range(4):
            p.valu("v_and_b32", ch[k].sub(k >> 1), (0xFFFF, 0xFFFF0000)[k & 1], dv.sub(k >> 1))
            p.ds_write("ds_write_b64", t[20], ch[k], 8 * k)
        self.mark()
        p.raw("s_waitcnt vmcnt(0) lgkmcnt(0)")
        self.mark()
        p.barrier()
        p.cond_end()
        p.lines.append("Lwa:")
        p.vm_done, p.lgkm_done = p.vm_seq, p.lgkm_seq
        self.mark()
        self.stamp(188)
        self.stamp(188)

    def gelu_table(self):
        p = self.p
        tid, t = V(119), [V(120 + i) for i in range(4)]
        y = [V(i) for i in range(32)]
        e = [V(32 + i) for i in range(32)]
        p.valu("v_and_b32", t[0], 255, tid)
        p.valu("v_lshlrev_b32", t[1], 8, t[0])
        for i in range(32):
            p.valu("v_add_u32", y[i], 8 * i + 4, t[1])
            p.valu("v_cvt_f32_f16", y[i], y[i])
        for i in range(32):
            p.valu("v_fmaak_f32", e[i], y[i], y[i], hex(f2u(GK)))
            p.valu("v_mul_f32", e[i], y[i], e[i])
        for i in range(32):
            p.valu("v_exp_f32", e[i], e[i])
        for i in range(32):
            p.valu("v_add_f32", e[i], "1.0", e[i])
        for i in range(32):
            p.valu("v_rcp_f32", e[i], e[i])
        for i in range(32):
            p.valu("v_mul_f32", y[i], y[i], e[i])
        for i in range(16):
            p.valu("v_cvt_pk_f16_f32", e[i], y[2 * i], y[2 * i + 1])
        tl = self.o.get('tl', 2)
        if tl:
            for i in range(16):
                p.valu("v_add_u32", e[i], (1 << tl >> 1) * 0x10001, e[i])
                p.valu("v_and_b32", e[i], (0xFFFF >> tl << tl) * 0x10001, e[i])
        p.valu("v_lshlrev_b32", t[1], 6, t[0])
        p.valu("v_bfe_u32", t[0], t[0], 2, 5)
        p.valu("v_cmp_ne_u32", "vcc", 31, t[0])
        p.raw(f"s_and_saveexec_b64 {sEX}, vcc")
        for i in range(4):
            p.ds_write("ds_write_b128", t[1], V(32 + 4 * i, 4), 16 * i)
        p.raw(f"s_mov_b64 exec, {sEX}")

    def sentinels(self):
        p = self.p
        t = [V(100 + i) for i in range(6)]
        sv = V(108, 4)
        p.salu("s_cmp_lg_u32", sWAVE, 7)
        p.raw("s_cbranch_scc1 Lnosent")
        p.cond_begin()
        lane = t[4]
        self.lane(lane)
        for i in range(4):
            p.valu("v_mov_b32", sv.sub(i), -1)
        p.valu("v_lshlrev_b32", t[0], 12, lane)
        p.valu("v_add_u32", t[1], 64 * 4096, t[0])
        p.valu("v_cmp_gt_u32", "vcc", 32, lane)
        p.valu("v_mov_b32", t[5], OOB_V)
        p.valu("v_cndmask_b32", t[1], t[5], t[1], "vcc")
        p.salu("s_lshl_b32", sT0, S(2), 4)
        p.raw(f"buffer_store_dwordx4 {sv}, {t[0]}, {sWS}, {sT0} offen sc1")
        p.raw(f"buffer_store_dwordx4 {sv}, {t[1]}, {sWS}, {sT0} offen sc1")
        p.salu("s_add_u32", sT0, sT0, WS_TOT)
        p.salu("s_cmp_lt_u32", S(2), 96)
        p.salu("s_cselect_b32", sT0, sT0, OOB_S)
        p.valu("v_lshlrev_b32", t[3], 11, lane)
        p.raw("s_mov_b64 exec, 0xff")
        p.raw(f"buffer_store_dwordx4 {sv}, {t[3]}, {sWS}, {sT0} offen sc1")
        p.raw("s_mov_b64 exec, -1")
        p.nop(2)
        p.cond_end()
        p.lines.append("Lnosent:")

    def init_counter(self):
        p = self.p
        p.salu("s_cmp_lg_u32", sWAVE, 7)
        p.raw("s_cbranch_scc1 Lnoinit")
        p.cond_begin()
        p.raw("s_waitcnt vmcnt(0)")
        p.raw(f"v_mov_b32 {self.tq.sub(0)}, 1")
        p.raw(f"v_mov_b32 {self.tq.sub(1)}, 0")
        p.raw("s_mov_b64 exec, 1")
        p.raw(f"buffer_atomic_add {self.tq.sub(0)}, {self.tq.sub(1)}, {sDBG}, 0 offen")
        p.raw("s_mov_b64 exec, -1")
        p.nop(2)
        p.cond_end()
        p.lines.append("Lnoinit:")

    def stats(self, s, t, ti, cb):
        acc = self.CA[ti].sub(4 * cb, 4)
        s2, q2 = self.ls[ti & 1][:2]
        if self.o.get('lnpk', 1):
            for k in range(2):
                c2 = acc.sub(2 * k, 2)
                if cb == 0 and k == 0:
                    last = [self.CA[ti | 1].sub(44, 4)]
                    s.valu(t, "v_pk_mul_f32", q2, c2, c2, rd=last)
                    s.valu(t, "v_pk_add_f32", s2, c2, acc.sub(2, 2), rd=last)
                else:
                    s.valu(t, "v_pk_fma_f32", q2, c2, c2, q2)
                    if cb:
                        s.valu(t, "v_pk_add_f32", s2, s2, c2)
            return
        for k in range(4):
            c, sa, qa = acc.sub(k), s2.sub(k & 1), q2.sub(k & 1)
            if cb == 0 and k < 2:
                s.valu(t, "v_mul_f32", qa, c, c)
                s.valu(t, "v_add_f32", sa, c, acc.sub(k + 2))
            else:
                s.valu(t, "v_fmac_f32", qa, c, c, rmw=True)
                if cb:
                    s.valu(t, "v_add_f32", sa, sa, c)

    def conv(self, s, blk, t0, t1, rd=(), wr=()):
        dt = (t1 - t0) / 72
        mode, s.mode = s.mode, self.o.get('dsc', 1)
        late = self.o.get('late', 1)
        for cb in range(12):
            t = t0 + 6 * cb * dt
            F = []
            for k in range(4):
                F.append(self.ring(self.ringB))
                s.ds_read(t + (k - 7) * dt, "ds_read_b128", F[k], self.vB[k], cb * 16, rd=rd)
            for dy in range(3):
                a = self.ring(self.ringA)
                for k in range(2):
                    s.ds_read(t + (2 * dy - 7) * dt, "ds_read_b64", a.sub(2 * k, 2), self.vC[k], (dy * 12 + cb) * 200)
                for par in range(2):
                    acc = self.CA[2 * blk + par].sub(4 * cb, 4)
                    s.mfma(t + (2 * dy + par) * dt, acc, a, F[dy + par], acc if dy else 0, rd=wr)
            if not late:
                for par in range(2):
                    self.stats(s, t + (9 + 3 * par) * dt, 2 * blk + par, cb)
        s.mode = mode
        if late:
            for cb in range(12):
                for par in range(2):
                    self.stats(s, t1 + 0.01, 2 * blk + par, cb)

    def ln(self, s, ti, t0, t1):
        C, D, ls, pk = self.CA[ti], self.LN[ti], self.ls[ti & 1], self.o.get('lnpk', 1)
        a, a1, q, q1, rs, off = [ls[i // 2].sub(i % 2) for i in range(6)]
        ts = t0 - (t1 - t0) * (ti & 1)
        s.valu(ts, "v_add_f32", a, a, a1)
        s.valu(ts, "v_add_f32", q, q, q1)
        s.swap(ts, 32, a, q)
        s.valu(ts, "v_add_f32", a, a, q)
        s.valu(ts, "v_mul_f32", a, f2u(1.0 / 96), a)
        s.valu(ts, "v_mov_b32", q, a)
        s.swap(ts, 32, a, q)
        s.valu(ts, "v_fma_f32", q, f"-{a}", a, q, rd=[a])
        s.valu(ts, "v_max_f32", q, 0, q)
        s.valu(ts, "v_add_f32", q, f2u(1e-5), q)
        s.valu(ts, "v_rsq_f32", q, q)
        s.valu(ts, "v_mul_f32", rs, f2u(GA), q)
        if pk:
            s.valu(ts, "v_mul_f32", off, f2u(GA), q)
            s.valu(ts, "v_mul_f32", q, a, rs)
            s.valu(ts, "v_mul_f32", q1, a, rs)
        else:
            s.valu(ts, "v_mul_f32", off, a, rs)
        for i in range(24):
            t = t0 + (t1 - t0) * i / 24
            if pk:
                s.valu(t, "v_pk_fma_f32", C.sub(2 * i, 2), C.sub(2 * i, 2), ls[2], ls[1], mods="neg_lo:[0,0,1] neg_hi:[0,0,1]")
            else:
                for k in range(2):
                    s.valu(t, "v_fma_f32", C.sub(2 * i + k), C.sub(2 * i + k), rs, f"-{off}", rd=[off])
            s.valu(t, "v_cvt_pk_bf16_f32", D.sub(i), C.sub(2 * i), C.sub(2 * i + 1))

    def gemm1(self, s, t0, j, ln, y, pixel_lane, ringW, span=1.0, rd=()):
        for s6 in range(6):
            t = t0 + span * s6 / 6
            w = self.ring(ringW)
            a, off = self.frag(j * 6 + s6)
            s.ds_read(t - self.o.get('lead', 0.8), "ds_read_b128", w, a, off, rd=rd)
            b = ln.sub(4 * s6, 4)
            if pixel_lane:
                s.mfma(t, y, w, b, y if s6 else 0)
            else:
                s.mfma(t, y, b, w, y if s6 else 0)

    def gelu32(self, s, t0, y, nl, blk, acc=None, idk=None):
        self.gelu(s, t0, y, nl, dst=[blk.sub(i) for i in (0, 1, 4, 5, 2, 3, 6, 7)])
        t = t0 + self.o.get('fin', 0.9) + self.o.get('lw', 0.55)
        if acc is not None:
            for q in range(2):
                s.mfma(t + 0.1 * q, y, blk.sub(4 * q, 4), idk.sub(4 * q, 4), y if q else 0, 'f16')
            for i in range(16):
                s.valu(t + 0.35 + 0.02 * i, "v_fmac_f32", acc, y.sub(i), y.sub(i), rmw=True)
            t += 0.15
        for i in range(4):
            s.swap(t, 16, blk.sub(i), blk.sub(4 + i))
        return t

    def gelu(self, s, t0, y, nl, acc=None, dst=None, span=1.0):
        o = self.o
        if isinstance(y, V):
            y = [y.sub(2 * i, 2) for i in range(8)]
        lw, fin = o.get('lw', 0.55) * span, o.get('fin', 0.9)
        mixlo, mixhi = "op_sel_hi:[1,1,0]", "op_sel:[1,1,0] op_sel_hi:[1,1,0]"
        assert nl % 2 == 0
        for i in range(0, nl, 2):
            assert y[i + 1].b == y[i].b + 2
            q = V(y[i].b, 4)
            t = t0 + lw * i / nl
            for k in range(2):
                s.valu(t, "v_cvt_pkrtz_f16_f32", q.sub(k), q.sub(2 * k), q.sub(2 * k + 1))
            s.valu(t, "v_lshrrev_b64", q.sub(0, 2), 2, q.sub(0, 2))
            for k in range(2):
                s.valu(t, "v_and_b32_sdwa", q.sub(2 + k), sA, q.sub(k), mods="dst_sel:DWORD dst_unused:UNUSED_PAD src0_sel:DWORD src1_sel:WORD_1")
                s.valu(t, "v_and_b32", q.sub(k), sA, q.sub(k))
                s.ds_read(t, "ds_read_u16" if dst is None else "ds_read_u16_d16_hi", q.sub(2 + k), q.sub(2 + k))
                s.ds_read(t, "ds_read_u16", q.sub(k), q.sub(k))
                t += lw / nl
        nt = len(y) - nl
        w = [4, 4, 4, 8, 8, 4, 8, 8, 4] + ([4, 4] if dst is None else [])
        cum = [sum(w[:k]) / sum(w) for k in range(len(w) + 1)]
        for k in range(len(w)):
            for i in range(nl, len(y)):
                u, e = y[i].sub(0), y[i].sub(1)
                t = t0 + cum[k] + (cum[k + 1] - cum[k]) * (i - nl) / nt
                if k == 0:
                    s.valu(t, "v_cvt_pk_f16_f32", u, u, e)
                elif k == 1:
                    s.valu(t, "v_pk_fma_f16", e, u, u, sK)
                elif k == 2:
                    s.valu(t, "v_pk_mul_f16", e, u, e)
                elif k in (3, 4):
                    s.valu(t, "v_exp_f16_sdwa", e, e, mods=(LO, HI)[k - 3])
                elif k == 5:
                    s.valu(t, "v_pk_add_f16", e, e, "1.0", mods="op_sel_hi:[1,0]")
                elif k in (6, 7):
                    s.valu(t, "v_rcp_f16_sdwa", e, e, mods=(LO, HI)[k - 6])
                elif k == 8:
                    s.valu(t, "v_pk_mul_f16", u if dst is None else dst[i], u, e)
                else:
                    s.valu(t, "v_fma_mix_f32", acc, u, u, acc, mods=(mixlo, mixhi)[k - 9])
        for i in range(nl):
            a0, a1 = y[i].sub(0), y[i].sub(1)
            t = t0 + fin + lw * i / nl
            if dst is None:
                for a in (a0, a1):
                    s.valu(t, "v_fma_mix_f32", acc, a, a, acc, mods=mixlo)
            elif i % 2:
                assert dst[i].b == dst[i - 1].b + 1
                s.valu(t, "v_lshl_add_u64", V(dst[i - 1].b, 2), y[i - 1], 0, y[i])

    def pattern(self, key, default):
        return [int(c) for c in str(self.o.get(key, default))]

    def ws_frag(self, f, fn):
        p = self.p
        if f == 0:
            return fn(sLNB)
        p.salu("s_add_u32", sT3, sLNB, f * self.o.get('fst', 1 << 21))
        return fn(sT3)

    def prio_steps(self, s, t0, t1, key='pp'):
        n = 4 * max(1, round((t1 - t0) / self.o.get(key, self.o.get('pp', 2.0))))
        for k in range(n):
            s.misc(t0 + (t1 - t0) * k / n, lambda k=k: self.p.raw(f"s_setprio {3 - k % 4}"), rd=['@bar'] if k == 0 else [], wr=['@prio'])

    def w1_transform(self, us, fr):
        p = self.p
        a, b = V(113), V(114)
        p.valu("v_add_u32", a, 65536, self.vW1r)
        p.valu("v_add_u32", b, 65536, self.vW1w)
        for k, u in enumerate(us):
            for i in range(2):
                p.ds_read("ds_read_b64_tr_b16", fr[k].sub(2 * i, 2), self.vW1r if u < 16 else a, (u % 16) * 4096 + i * 512)
        for k, u in enumerate(us):
            p.ds_write("ds_write_b128", self.vW1w if u < 16 else b, fr[k], (u % 16) * 4096)

    def code_pf(self, s, times):
        p = self.p

        def one():
            k = self.ncpf = getattr(self, 'ncpf', 0) + 1
            p.raw(f"s_getpc_b64 {sEX}")
            p.lines.append(f"Lcq{k}:")
            p.salu("s_lshl_b32", sT0, sWAVE, 10)
            p.salu("s_add_u32", sT0, sT0, self.o.get('cpd', 6144))
            p.salu("s_min_u32", sT0, sT0, f"Lend-Lcq{k}-1024")
            p.salu("s_add_u32", sEX.sub(0), sEX.sub(0), sT0)
            p.salu("s_addc_u32", sEX.sub(1), sEX.sub(1), 0)
            p.salu("s_sub_u32", sEX.sub(0), sEX.sub(0), W1F)
            p.salu("s_subb_u32", sEX.sub(1), sEX.sub(1), 0)
            p.salu("s_mov_b32", "m0", LDS_BYTES)
            p.nop(1)
            p.raw(f"global_load_lds_dword {self.vA[0]}, {sEX}")
            p.vm_seq += 1
        if self.o.get('cpf', 0):
            for t in times:
                s.misc(t, one)

    def setprio(self, s, t, lv):
        s.misc(t, lambda: self.p.raw(f"s_setprio {lv}"), wr=['@prio'])

    def phase1(self):
        p, o = self.p, self.o
        p.salu("s_cmp_lt_u32", sWAVE, 4)
        p.raw("s_cbranch_scc1 Lsu1")
        p.cond_begin()
        p.raw("s_waitcnt vmcnt(%d)" % (14 if o.get('tp', 6) <= 18 else 12))
        self.mark()
        self.w1_transform(range(6), [V(4 * u, 4) for u in range(6)])
        self.signal(C_W1A)
        self.mark()
        if o.get('x_fast'):
            self.skip_round()
            p.raw("s_waitcnt vmcnt(0)")
        else:
            self.await_(C_F, 4)
            self.mark()
            for R in range(2, 10):
                self.row_dma(R)
        self.mark()
        p.raw("s_waitcnt vmcnt(16)")
        self.mark()
        self.w1_transform(range(6, 18), [V(4 * u, 4) for u in range(12)])
        self.signal(C_W1B)
        self.mark()
        p.cond_end()
        self.sentinels()
        p.raw("s_setprio 3")
        p.raw("s_waitcnt vmcnt(0)")
        self.init_counter()
        self.mark()
        p.lines.append("Lsu1:")
        p.vm_done, p.lgkm_done = p.vm_seq, p.lgkm_seq
        self.stamp(188)
        s = self.s = Sched(p, o)
        nl = self.pattern('nl1', '6')
        L, cl = o.get('cl', 4.0), o.get('cc', 2.6)
        Y, ny = self.Y1, len(self.Y1)
        u = [None, V(237), V(244), V(245)]
        tq2 = V(238, 2)
        tmp = [V(48, 8), V(56, 8)]
        m0, m1 = o.get('m0', 0.0), o.get('m1', 2.0)

        def w2_addr():
            self.lane(u[1])
            p.valu("v_lshrrev_b32", self.vW2, 2, u[1])
            p.valu("v_mul_u32_u24", self.vW2, 192, self.vW2)
            p.valu("v_and_b32", u[1], 3, u[1])
            p.valu("v_lshl_add_u32", self.vW2, u[1], 4, self.vW2)

        def init_check():
            p.salu("s_cmp_lg_u32", sWAVE, 0)
            p.raw("s_cbranch_scc1 Lpix")
            p.cond_begin()
            p.raw(f"v_and_b32 {u[2]}, 0x3ff, {self.vA[0]}")
            p.raw(f"buffer_load_dword {u[3]}, {u[2]}, {sBE}, 0 offen")
            p.raw(f"buffer_load_dword {u[3]}, {u[2]}, {sGA}, 0 offen")
            p.raw(f"v_mov_b32 {u[2]}, 0")
            p.lines.append("Lpi:")
            p.raw(f"buffer_load_dword {u[3]}, {u[2]}, {sDBG}, 0 offen sc1")
            p.raw("s_waitcnt vmcnt(0)")
            p.raw(f"v_readfirstlane_b32 {sT0}, {u[3]}")
            self.spin_guard("Lpix")
            p.salu("s_cmp_lt_u32", sT0, 256)
            p.raw("s_cbranch_scc1 Lpi")
            p.cond_end()
            p.lines.append("Lpix:")

        def flush(t, j):
            s.swap(t, 32, self.SQ[j], self.SQ[j + 1])
            s.valu(t, "v_add_f32", self.SQ[j], self.SQ[j], self.SQ[j + 1])
            s.ds_write(t, "ds_write_b32", self.vS, self.SQ[j], TABO + j * 128 + (3072 - 768) * (j >= 6), rd=['@ring', '@sums'])

        for blk in range(2):
            t0 = blk * (24 + L + o.get('cd', 0.7))
            s.misc(t0 - 0.5, self.conv_addr, rd=[self.vB0, '@dma'], wr=self.vB + [self.tq], cost=90)
            if blk:
                s.misc(t0 - 0.3, lambda: p.wait(vm=self.x_tok), rd=['@dma'], wr=['@rows'])
            self.conv(s, blk, t0, t0 + cl, rd=['@rows'], wr=['@cdone'])
            s.misc(t0 + cl, lambda blk=blk: self.signal(C_F + 8 * blk, True), wr=['@cdone', self.tq], cost=8)
            h = (L - cl) / 2
            self.ln(s, 2 * blk, t0 + cl + 0.02, t0 + cl + h)
            self.ln(s, 2 * blk + 1, t0 + cl + h, t0 + L)
            t0 += L
            if blk == 0:
                s.misc(t0 - 1.0, lambda: self.await_(C_W1A, 4), wr=['@w1', self.tq], cost=40)
                if o.get('stamps'):
                    s.misc(t0, lambda: self.stamp(192), wr=[V(192, 4)])
            if blk:
                Y = [Y[1], Y[2], Y[0], Y[3], Y[4]]
            idk = V((64, 216)[blk], 8)
            if self.keep if blk else self.spi:
                for m in range(8):
                    s.valu(t0, "v_cndmask_b32", idk.sub(m), 0, self.vI, sID[m])
                    s.valu(t0, "v_and_b32", idk.sub(m), 0x3C003C00, idk.sub(m))
            for j in range(12):
                t = t0 + 2 * j
                e = 24 * blk + 2 * j
                held = [(2 * blk + par, j) in self.spi or (blk and par and j in self.keep) for par in range(2)]
                if blk == 0 and j == 4:
                    s.misc(t - 1.2, lambda: self.await_(C_W1B, 4), wr=['@w1', self.tq], cost=40)
                for s6 in range(6):
                    tt = t + m0 + (m1 - m0) * s6 / 6
                    w = self.ring(self.ring1)
                    s.ds_read(tt - o.get('lead', 0.8), "ds_read_b128", w, *self.frag(j * 6 + s6), rd=['@w1'])
                    for par in range(2):
                        y = Y[(e + par + 4) % ny]
                        ab = (self.LN[2 * blk + par].sub(4 * s6, 4), w)
                        s.mfma(tt + par * (m1 - m0) / 12, y, *(ab[::-1] if held[par] else ab), y if s6 else 0)
                if blk == 1 and j == 8:
                    d0 = t0 + o.get('w0', 16.0)
                    s.misc(d0, lambda: (self.await_(C_F + 12, 4, tq=tq2), w2_addr()), rd=[self.vA[0]],
                           wr=[self.vW2, u[1], tq2, '@ring'], cost=60)
                    for k, f in enumerate((0, 1, 2, 3, 4, 6, 7)):
                        s.vmem(d0 + 0.3 + 0.5 * k, lambda f=f: self.w2_fetch(f, self.vW2), rd=[self.vW2], wr=['@w2raw'], lat=0)
                    s.misc(d0 + 4, lambda: setattr(self, 'w2_tok0', self.w2_tok), rd=['@w2raw'], wr=['@w2t0'], cost=0)
                    for k in range(0, 8, 2):
                        flush(d0, k)
                if blk == 1 and j == 11:
                    flush(t + 1, 8)
                for par in ((1, 0) if e == 46 else (0, 1)):
                    tg, y, n = t + m1 + (par ^ (e == 46)) + o.get('g0', 0.1), Y[(e + par + 4) % ny], nl[(e + par) % len(nl)]
                    if not held[par]:
                        self.gelu(s, tg, y, n, acc=self.SQ[j])
                        continue
                    bl = self.blk3[j] if blk else self.ring(tmp)
                    te = self.gelu32(s, tg, y, n, bl, self.SQ[j], idk)
                    for q in range(0 if blk else 2):
                        s.vmem(te + 0.2 + 0.4 * q, lambda q=q, bl=bl, f=self.spi[par, j]: self.ws_frag(f + q, lambda so: p.buf_store(
                            "buffer_store_dwordx4", bl.sub(4 * q, 4), self.vA[0], sWS, so, flags=o.get('ssf', 'sc1'))), rd=[bl.sub(4 * q, 4)], lat=0)
                if blk == 0 and j == o.get('ls', 6):
                    for k in range(6):
                        s.vmem(t + o.get('lg', 1.2) * k, lambda k=k: self.ws_frag(k, lambda so: p.buf_store(
                            "buffer_store_dwordx4", self.LN[0].sub(4 * k, 4), self.vA[0], sWS, so, flags=o.get('ssf', 'sc1'))), rd=[self.LN[0].sub(4 * k, 4)], lat=0)
                if blk == 0 and j == 6 and o.get('dbg'):
                    for k in range(6):
                        s.vmem(t + 0.7 * k, lambda k=k: self.ws_frag(6 + k, lambda so: p.buf_store(
                            "buffer_store_dwordx4", self.LN[1].sub(4 * k, 4), self.vA[0], sWS, so)), rd=[self.LN[1].sub(4 * k, 4)], lat=0)
                if blk == 0 and j == 5:
                    s.misc(t + 1, lambda: (self.skip_round(), self.touch_rows(self.tq.sub(0), self.tq.sub(1))), wr=[self.tq, '@dma'], cost=24)
                if blk == 0 and j == 9:
                    d0 = t0 + o.get('d0', 19.0)
                    s.misc(d0, lambda: self.await_(C_F + 4, 4, True), wr=[self.tq, '@dma'], cost=40)
                    for R in range(2, 10):
                        s.vmem(d0 + o.get('dspan', 2.5) * (R - 2) / 8, lambda R=R: self.row_dma(R), rd=self.vX, wr=['@dma'], lat=0)
                if blk == 1 and j == 5:
                    s.misc(t, init_check, wr=u[2:])
                if blk == 1 and j == 3 and o.get('nt0', 0):
                    s.misc(t, lambda: self.touch_x(u[2], u[3]), wr=u[2:], cost=24)
        end = 48 + 2 * L + m1 + o.get('cd', 0.7)
        self.setprio(s, L + o.get('la', 7), 3)
        s.misc(24 + 2 * L + o.get('cd', 0.7), lambda: self.call_if(True, ["s_setprio 2"], "Lbk"), wr=['@prio'])
        self.setprio(s, end - o.get('q0', 3.0), 1)
        self.code_pf(s, [6, 16, 26, 30, 38, 48, 56])
        self.fine(s, range(0, 60), 'p1')
        self.T1 = end - m1
        flush(end, 10)
        t = [None, V(238), V(239), V(237), V(244), V(245)]
        pv = [V(128, 8), V(136, 8), V(112, 8), V(120, 8), V(216, 8)]

        def pub_addr():
            self.lane(t[3])
            p.valu("v_min_u32", t[3], 47, t[3])
            p.valu("v_lshlrev_b32", t[4], 5, t[3])
            p.valu("v_add_u32", t[4], R2 + TABO, t[4])
            p.valu("v_add_u32", t[5], 3072 - 768, t[4])
            p.valu("v_cmp_gt_u32", "vcc", 24, t[3])
            p.valu("v_cndmask_b32", t[4], t[5], t[4], "vcc")
            p.valu("v_lshlrev_b32", t[3], 13, t[3])
            p.valu("v_add_u32", t[5], 4096, t[3])
        s.misc(end - 4, pub_addr, wr=t[3:], cost=40)

        def publish():
            p.raw("s_setprio 3")
            self.ticket(t, 0, "Lnopub", pv)

            def rd(w, d):
                for k in range(2):
                    p.ds_read("ds_read_b128", d.sub(4 * k, 4), t[4], 9216 * w + 16 * k)

            def add(d, b):
                for i in range(8):
                    p.valu("v_add_f32", d.sub(i), d.sub(i), b.sub(i))
            for w in range(5):
                rd(w, pv[w])
            for w in range(1, 4):
                add(pv[0], pv[w])
                rd(4 + w, pv[w])
            for w in (4, 1, 2, 3):
                add(pv[0], pv[w])
            for i in range(8):
                p.valu("v_min_u32", pv[4].sub(i), -2, pv[0].sub(i))
            p.salu("s_lshl_b32", sT0, S(2), 4)
            p.buf_store("buffer_store_dwordx4", pv[4].sub(0, 4), t[3], sWS, sT0, flags="sc1")
            p.buf_store("buffer_store_dwordx4", pv[4].sub(4, 4), t[5], sWS, sT0, flags="sc1")
            p.ds_write("ds_write_b32", self.vCnt, t[1], C_PUB)
            p.raw("s_waitcnt lgkmcnt(0)")
            p.nop(2)
            p.cond_end()
            p.lines.append("Lnopub:")
            self.stamp(128)
        s.misc(end, publish, wr=t[1:] + pv + ['@sums', '@prio'], cost=60)

    def ticket(self, t, cnt, label, regs):
        p = self.p
        p.valu("v_mov_b32", t[1], 1)
        p.wait_all(vm=False)
        p.raw("s_mov_b64 exec, 1")
        p.raw(f"ds_add_rtn_u32 {t[2]}, {self.vCnt}, {t[1]} offset:{cnt}")
        p.raw("s_mov_b64 exec, -1")
        for v in regs:
            p._mem_issue([], list(v.regs()))
        p.raw("s_waitcnt lgkmcnt(0)")
        p.lgkm_seq += 1
        p.lgkm_done = p.lgkm_seq
        p.valu("v_readfirstlane_b32", sT0, t[2])
        p.salu("s_cmp_lg_u32", sT0, 7)
        p.raw(f"s_cbranch_scc1 {label}")
        p.cond_begin()

    def w2_fetch(self, f, addr):
        p = self.p
        k, T = divmod(f, 3)
        p.salu("s_add_u32", "m0", sPRIV, f * 1024)
        p.salu("s_add_u32", sT0, sW2B, k * 3072 + T * 64)
        self.w2_tok = p.dma(addr, sW2, sT0)

    def touch_x(self, a, b):
        p = self.p
        self.lane(b)
        p.valu("v_and_b32", a, 15, b)
        p.valu("v_min_u32", a, 11, a)
        p.valu("v_lshlrev_b32", a, 7, a)
        p.valu("v_lshrrev_b32", b, 4, b)
        p.valu("v_mul_u32_u24", b, 2 * ROWB, b)
        p.valu("v_add_u32", a, a, b)
        p.salu("s_mov_b32", "m0", LDS_BYTES)
        p.salu("s_cmp_lt_u32", sWAVE, 4)
        p.raw("s_cbranch_scc0 Lnotouch")
        p.cond_begin()
        for ti in range(2):
            p.raw(f"buffer_load_dword {a}, {sX}, {sTILE[ti]} offen lds")
            p.vm_seq += 1
        p.cond_end()
        p.lines.append("Lnotouch:")

    def poll_regs(self):
        rv = [V(128 + 4 * i, 4) for i in range(4)]
        tv = [V(128 + i) for i in range(6)]
        gv = [V(134 + i) for i in range(6)]
        t = [V(240 + i) for i in range(6)]
        return rv, tv, gv, t

    def poll_loads(self, p, reducer):
        rv, tv, gv, t = self.poll_regs()
        if reducer:
            p.salu("s_lshl_b32", sT1, S(2), 12)
            for i in range(4):
                p.buf_load("buffer_load_dwordx4", rv[i], t[5], sWS, sT1, 1024 * i, flags="sc1")
        else:
            p.salu("s_and_b32", sT1, S(2), 7)
            p.salu("s_lshl_b32", sT1, sT1, 11)
            p.salu("s_add_u32", sT1, sT1, WS_TOT)
            for i in range(3):
                p.buf_load("buffer_load_dwordx2", V(tv[2 * i].b, 2), t[0], sWS, sT1, 8 * i, flags="sc1")

    def gamma_loads(self, p):
        rv, tv, gv, t = self.poll_regs()
        p.valu("v_lshrrev_b32", t[1], 1, t[0])
        for i in range(3):
            p.buf_load("buffer_load_dword", gv[2 * i + 1], t[1], sGA, 0, 4 * i)

    def poll_routine(self):
        main, self.p = self.p, Prog()
        p = self.p
        rv, tv, gv, t = self.poll_regs()
        ret = f"s_setpc_b64 {sRET}"
        p.lines.append("Lpolln:")
        p.raw(f"s_getreg_b32 {sT0}, hwreg(HW_REG_IB_STS, 0, 4)")
        p.salu("s_cmp_eq_u32", sT0, 0)
        p.raw("s_cbranch_scc1 Lpoll")
        p.raw(ret)
        p.lines.append("Lpoll:")
        p.raw("s_waitcnt vmcnt(0)")
        p.salu("s_mov_b32", sVM, 1)
        p.salu("s_cmp_eq_u32", sROLE, 2)
        p.raw("s_cbranch_scc1 LpollC")
        allr = [rv[i].sub(k) for i in range(4) for k in range(4)]
        p.valu("v_max_u32", t[1], allr[0], allr[1])
        for i in range(2, 16, 2):
            p.valu("v_max3_u32", t[1], t[1], allr[i], allr[i + 1])
        p.valu("v_cmp_eq_u32", "vcc", -1, t[1])
        p.nop(5)
        p.raw("s_cbranch_vccz LpollR")
        self.poll_loads(p, True)
        p.raw(ret)
        self.p = p2 = Prog()
        p2.lines.append("LpollR:")
        for k in range(4):
            p2.valu("v_add_f32", rv[0].sub(k), rv[0].sub(k), rv[1].sub(k))
            p2.valu("v_add_f32", rv[3].sub(k), rv[2].sub(k), rv[3].sub(k))
            p2.valu("v_add_f32", rv[3].sub(k), rv[0].sub(k), rv[3].sub(k))
        r = [rv[3].sub(k) for k in range(4)]
        p2.swap32(r[0], r[1])
        p2.swap32(r[2], r[3])
        p2.valu("v_add_f32", r[0], r[0], r[1])
        p2.valu("v_add_f32", r[2], r[2], r[3])
        p2.valu("v_bfe_u32", t[1], t[5], 4, 4)
        p2.valu("v_lshlrev_b32", t[1], 11, t[1])
        p2.swap16(r[0], r[2])
        p2.valu("v_add_f32", r[0], r[0], r[2])
        fill = [lambda: p2.valu("v_bfe_u32", t[2], t[5], 8, 1), lambda: p2.valu("v_lshl_add_u32", t[1], t[2], 3, t[1]),
                lambda: p2.valu("v_bfe_u32", t[2], t[5], 9, 1), lambda: p2.valu("v_lshl_add_u32", t[1], t[2], 2, t[1]),
                lambda: p2.salu("s_lshl_b32", sT1, S(2), 4), lambda: p2.salu("s_add_u32", sT1, sT1, WS_TOT),
                lambda: p2.salu("s_mov_b32", sT0, f2u(1.0 / (GA * GA))), lambda: p2.valu("v_mov_b32", t[2], f2u(1e-6))]
        for k in (8, 4, 2, 1):
            fill.pop(0)()
            fill.pop(0)()
            p2.valu("v_add_f32_dpp", r[0], r[0], r[0], mods=f"row_ror:{k} row_mask:0xf bank_mask:0xf")
        p2.valu("v_fma_f32", r[0], r[0], sT0, t[2])
        p2.valu("v_sqrt_f32", r[0], r[0])
        p2.salu("s_mov_b32", "exec_lo", 0x00FF00FF)
        p2.salu("s_mov_b32", "exec_hi", 0x00FF00FF)
        p2.valu("v_min_u32", r[0], -2, r[0])
        p2.buf_store("buffer_store_dword", r[0], t[1], sWS, sT1, flags="sc1")
        p2.raw("s_mov_b64 exec, -1")
        p2.salu("s_mov_b32", sROLE, 2)
        self.poll_loads(p2, False)
        self.gamma_loads(p2)
        p2.raw(ret)
        self.p = p3 = Prog()
        p3.lines.append("LpollC:")
        p3.valu("v_max3_u32", t[1], tv[0], tv[1], tv[2])
        p3.valu("v_max3_u32", t[1], t[1], tv[3], tv[4])
        p3.valu("v_max_u32", t[1], t[1], tv[5])
        p3.valu("v_cmp_eq_u32", "vcc", -1, t[1])
        p3.nop(5)
        p3.raw("s_cbranch_vccz LpollS")
        self.poll_loads(p3, False)
        p3.raw(ret)
        self.p = p4 = Prog()
        p4.lines.append("LpollS:")
        p4.valu("v_add_f32", t[3], tv[0], tv[1])
        for i in range(2, 6):
            p4.valu("v_add_f32", t[3], t[3], tv[i])
        fill = []
        for i in range(0, 6, 2):
            fill += [lambda i=i: p4.valu("v_lshlrev_b32", gv[i], 16, gv[i + 1]), lambda i=i: p4.valu("v_and_b32", gv[i + 1], 0xFFFF0000, gv[i + 1])]
        fill += [lambda i=i: p4.valu("v_mul_f32", tv[i], tv[i], gv[i]) for i in range(6)]
        for k in (8, 4, 2, 1):
            fill.pop(0)()
            fill.pop(0)()
            p4.valu("v_add_f32_dpp", t[3], t[3], t[3], mods=f"row_ror:{k} row_mask:0xf bank_mask:0xf")
        for sw in (p4.swap16, p4.swap32):
            p4.valu("v_mov_b32", t[1], t[3])
            fill.pop(0)()
            fill.pop(0)()
            sw(t[3], t[1])
            p4.valu("v_add_f32", t[3], t[3], t[1])
        ga = GA / (1 + 3.5 / 1024 / (2 * math.log(2))) if self.o.get('tw', 2) == 2 else GA
        p4.valu("v_mov_b32", t[2], f2u(1e-6 * ga))
        p4.salu("s_mov_b32", sT0, f2u(ga / 384))
        p4.valu("v_fma_f32", t[3], t[3], sT0, t[2])
        p4.valu("v_rcp_f32", t[3], t[3])
        p4.salu("s_mov_b32", sT0, f2u(1.0 / ga))
        for i in range(6):
            p4.valu("v_fma_f32", tv[i], tv[i], t[3], sT0)
        for i in range(3):
            p4.valu("v_cvt_pk_f16_f32", tv[i], tv[2 * i], tv[2 * i + 1])
        p4.salu("s_mov_b32", sROLE, 0)
        p4.nop(2)
        p4.raw(ret)
        self.p = main
        for q in (p, p2, p3, p4):
            main.lines += q.lines

    def poll_point(self, k):
        p = self.p
        p.salu("s_cmp_eq_u32", sROLE, 0)
        p.raw(f"s_cbranch_scc1 Lpp{k}")
        p.cond_begin()
        p.raw(f"s_call_b64 {sRET}, {'Lpolln' if self.o.get('nb', 1) else 'Lpoll'}")
        p.cond_end()
        p.lines.append(f"Lpp{k}:")

    def spin_guard(self, exit_label):
        p = self.p
        p.salu("s_cmp_eq_u32", sCNT, 0)
        p.salu("s_cbranch_scc1", exit_label)
        p.salu("s_sub_u32", sCNT, sCNT, 1)

    def gap(self):
        p, o, s = self.p, self.o, self.s
        rv, tv, gv, t = self.poll_regs()
        self.pollr = pollr = [V(128, 16), t[0], t[1], t[2], t[3], t[5], '@poll']
        T1 = self.T1
        g8 = t[4]

        def role():
            p.salu("s_mov_b32", sROLE, 0)
            p.valu("v_bfe_u32", g8, self.vA[0], 8, 2)
            p.valu("v_lshlrev_b32", g8, 3, g8)
            p.salu("s_cmp_lg_u32", sWAVE, 0)
            p.raw("s_cbranch_scc1 Lnorole")
            p.cond_begin()
            p.valu("v_subrev_u32", t[5], W1F, self.vA[0])
            p.valu("v_lshrrev_b32", t[0], 1, t[5])
            p.valu("v_add_u32", t[0], t[0], t[5])
            p.salu("s_cmp_lt_u32", S(2), 96)
            p.salu("s_cselect_b32", sROLE, 1, 2)
            p.raw("s_cbranch_scc1 Lred")
            self.poll_loads(p, False)
            self.gamma_loads(p)
            p.raw("s_branch Lnorole")
            p.lines.append("Lred:")
            self.poll_loads(p, True)
            p.cond_end()
            p.lines.append("Lnorole:")
            for r in range(128, 144):
                p.p_vm[r] = None
            p.raw("s_setprio 0")
        tp = s.misc(T1, role, wr=pollr + [g8, '@prio'], cost=10).t
        nl = self.pattern('nlg', '6')
        Y = self.Y1[3:]
        NG = len(self.todo)
        self.npoll = 0
        for n, j in enumerate(self.todo):
            tg = T1 + 2.1 + n
            self.gemm1(s, tg - (0.6 if n > 1 else 1.1), j, self.LN[3], Y[n % 2], True, self.ring1, span=0.5 if n > 1 else 1.0)
            self.gelu32(s, tg, Y[n % 2], nl[n % len(nl)], self.blk3[j])
        tw = tp + o.get('gb', 1.5)
        ta = T1 + 1.6 + NG
        tq = V(248, 2) if not o.get('fine') else V(238, 2)
        bf = [V(176 + 2 * k, 2) for k in range(3)]

        def beta_loads():
            p.salu("s_mul_i32", sT0, sWAVE, 96)
            for k in range(3):
                p.buf_load("buffer_load_dwordx2", bf[k], g8, sBE, sT0, k * 32)
        s.vmem(tw - 0.1, beta_loads, rd=[g8, '@tab'], wr=bf, lat=800)

        s.misc(tw, lambda: self.await_(C_PUB, 1, tq=tq), rd=['@sums'], wr=['@tab', tq], cost=40)
        for k in (5, 8):
            s.vmem(tw, lambda k=k: (self.w2_fetch(k, self.vW2), p.salu("s_mov_b32", sVM, 0)), rd=['@tab', self.vW2], wr=['@w2raw', '@vm%d' % k],
                   lat=1200 * (k == 8))

        def vm_wait(tok, label):
            if tok <= p.vm_done:
                return
            p.salu("s_cmp_eq_u32", sVM, 1)
            p.raw(f"s_cbranch_scc1 {label}")
            p.wait(vm=tok)
            p.pos -= 1
            p.lines.append(f"{label}:")
        s.misc(ta + 0.25, lambda: vm_wait(p.p_vm[bf[2].b], "Lvw0"), rd=bf + ['@vm5'], wr=['@beta'])
        for ti in (2, 1):
            self.ln16(s, T1 + 2, [self.LN[ti].sub(4 * f, 4) for f in range(6)])
        ta = T1 + 1.6 + NG
        tb = self.TB = ta + o.get('tb', 2.0)
        Yf = Y[NG % 2]
        self.Yr = Y[(NG + 1) % 2]
        fr = self.fr = [V(72 + 4 * k, 4) for k in range(6)] + [Yf.sub(4 * k, 4) for k in range(3)]
        u = self.u = [V(186 + i) for i in range(6)] + [Yf.sub(12 + i) for i in range(4)]
        lane, vWR = u[4], u[7:10]
        self.vH = [V(248), V(249) if not o.get('fine') else V(248)]

        def addr():
            self.lane(lane)
            p.valu("v_lshl_add_u32", u[0], lane, 4, sPRIV)
            for k in range(3):
                p.salu("s_mul_i32", sT0, sWAVE, 3)
                p.salu("s_add_u32", sT0, sT0, k)
                p.salu("s_and_b32", sT1, sT0, 1)
                p.salu("s_mul_i32", sT1, sT1, 3072 - 8)
                p.salu("s_mul_i32", sT0, sT0, 3072)
                p.salu("s_sub_u32", sT0, sT0, sT1)
                p.salu("s_add_u32", sT0, sT0, R2)
                p.valu("v_lshl_add_u32", vWR[k], lane, 4, sT0)
            p.valu("v_lshl_add_u32", u[1], g8, 2, sPRIV)
            p.valu("v_and_b32", u[3], 3, lane)
            for bit, sh in ((2, 3), (3, 2), (4, 6), (5, 5)):
                p.valu("v_bfe_u32", u[5], lane, bit, 1)
                p.valu("v_lshl_add_u32", u[3], u[5], sh, u[3])
            p.valu("v_lshlrev_b32", u[3], 4, u[3])
            for i in range(2):
                p.valu("v_add_u32", self.vH[i], W1F + 36 * 1024 * i, u[3])
            p.valu("v_min_u32", u[3], 11, lane)
            p.salu("s_mul_i32", sT0, sWAVE, 12)
            p.valu("v_add_u32", u[3], sT0, u[3])
            p.valu("v_cmp_gt_u32", "vcc", 64, u[3])
            p.valu("v_lshlrev_b32", u[3], 2, u[3])
            p.valu("v_add_u32", u[6], R2 + SCO + 128, u[3])
            p.valu("v_add_u32", u[5], HOLE[1], u[3])
            p.valu("v_add_u32", u[3], HOLE[0] - 256, u[3])
            p.valu("v_cndmask_b32", u[3], u[3], u[5], "vcc")
            p.valu("v_add_u32", u[2], sPRIV, g8)
            p.valu("v_lshrrev_b32", u[5], 3, lane)
            p.valu("v_mul_u32_u24", u[5], 9216 - 96, u[5])
            p.valu("v_mul_u32_u24", u[4], 12, lane)
            p.valu("v_add_u32", u[5], u[5], u[4])
            p.valu("v_add_u32", u[5], R2 + SCO, u[5])
        s.misc(ta, addr, rd=[g8], wr=u + self.vH, cost=130)
        s.misc(T1 + 1.5, lambda: p.wait(vm=self.w2_tok0), rd=['@w2t0'], wr=['@w2ok0'])
        s.misc(ta + 1.1, lambda: vm_wait(self.w2_tok, "Lvw1"), rd=['@w2raw'], wr=['@w2ok1'])
        for k in (0, 3, 6, 1, 4, 7, 2, 5, 8):
            for y in range(2):
                s.ds_read(ta + 0.3 * (k % 3), "ds_read_b64_tr_b16", fr[k].sub(2 * y, 2), u[0], k * 1024 + y * 8, rd=['@w2ok%d' % (k in (5, 8))])
        bacc = V(120, 8)

        def partial(T):
            p._mem_issue(list(bacc.regs()) + list(fr[3].regs()), [])
            p.salu("s_mov_b32", "exec_lo", 0x00010001)
            p.salu("s_mov_b32", "exec_hi", 0x00010001)
            for y in range(2):
                p.ds_write("ds_write_b128", u[1], bacc.sub(4 * y, 4), SCO + 128 + T * 128 + y * 16)
            p.raw("s_mov_b64 exec, -1")
        for T in range(3):
            tt = ta + 0.3 + 0.5 * T
            for k in range(3):
                for y in range(2):
                    d = bacc.sub(4 * y, 4)
                    s.mfma(tt, d, fr[k * 3 + T].sub(2 * y, 2), bf[k], d if k else 0, rd=['@beta'])
            s.misc(tt + 0.25, lambda T=T: partial(T), rd=[bacc, u[1], fr[3], '@ba'], cost=10)
            for k in range(3):
                f = fr[k * 3 + T]
                for i in range(4):
                    w = V(182 + 2 * (i % 2), 2)
                    tc = tt + 0.05 + 0.04 * (4 * k + i)
                    s.valu(tc, "v_lshlrev_b32", w.sub(0), 16, f.sub(i))
                    s.valu(tc, "v_and_b32", w.sub(1), 0xFFFF0000, f.sub(i))
                    s.valu(tc, "v_cvt_pk_f16_f32", f.sub(i), w.sub(0), w.sub(1), rd=['@ba'])
        def warm():
            a, b = V(184), V(185)
            self.lane(b)
            p.salu("s_mov_b32", "m0", LDS_BYTES)
            if 'l' in o.get('warm', ''):
                p.valu("v_min_u32", b, 47, b)
                p.valu("v_and_b32", a, 7, b)
                p.valu("v_lshlrev_b32", a, 7, a)
                p.valu("v_lshrrev_b32", b, 3, b)
                p.valu("v_lshl_add_u32", a, b, 21, a)
                p.salu("s_add_u32", sT0, sLNB, W1F)
                p.raw(f"buffer_load_dword {a}, {sWS}, {sT0} offen lds")
                p.vm_seq += 1
            if 'x' in o.get('warm', ''):
                self.lane(b)
                p.valu("v_and_b32", a, 15, b)
                p.valu("v_min_u32", a, 11, a)
                p.valu("v_lshlrev_b32", a, 7, a)
                p.valu("v_lshrrev_b32", b, 4, b)
                p.valu("v_mul_u32_u24", b, 2 * ROWB, b)
                p.valu("v_add_u32", a, a, b)
                p.raw(f"buffer_load_dword {a}, {sX}, {sTILE[1]} offen lds")
                p.vm_seq += 1
        if o.get('warm'):
            s.misc(tb + o.get('wt', 0.2), warm, wr=[V(184, 2)], cost=40)
        k = tp + 0.8
        while k < tb:
            self.poll_op(k)
            k += o.get('pi', 0.3)
        self.prio_steps(s, tp + o.get('gp', 2.0), tb)
        self.code_pf(s, [T1 + 2, tb - 1])
        self.fine(s, [T1 - 2 + 0.5 * k for k in range(40)], 'mid')

        def ba():
            self.stamp(120)
            p.wait_all(vm=False)
            p.barrier()
            p.raw("s_setprio 2")
        s.misc(tb, ba, wr=['@ba', '@prio', '@bar'] + ([bacc] if o.get('stamps') else []))
        bs = [V(176 + i) for i in range(8)]
        for k in range(8):
            s.ds_read(tb, "ds_read_b32", bs[k], u[6], 9216 * k, rd=['@ba'])
        for k in range(1, 8):
            s.valu(tb, "v_add_f32", bs[0], bs[0], bs[k])
        s.ds_write(tb, "ds_write_b32", u[3], bs[0], rd=['@b4'])

    def poll_op(self, t):
        self.npoll += 1
        self.s.misc(t, lambda k=self.npoll: self.poll_point(k), wr=self.pollr)

    def fold(self, t):
        p, o, s, u, fr = self.p, self.o, self.s, self.u, self.fr
        rv, tv, gv, _ = self.poll_regs()
        lane, vWR = u[4], u[7:10]
        ad = u[5]

        def b4():
            p.salu("s_cmp_lg_u32", sWAVE, 0)
            p.raw("s_cbranch_scc1 Lspinx")
            p.cond_begin()
            p.raw("s_setprio 3")
            p.lines.append("Lspin:")
            p.salu("s_cmp_eq_u32", sROLE, 0)
            p.raw("s_cbranch_scc1 Lspiny")
            self.spin_guard("Lspiny")
            p.raw(f"s_call_b64 {sRET}, Lpoll")
            p.raw("s_branch Lspin")
            p.lines.append("Lspiny:")
            for i in range(3):
                p.ds_write("ds_write_b32", ad, tv[i], 4 * i)
            p.raw("s_waitcnt lgkmcnt(0)")
            p.cond_end()
            p.lines.append("Lspinx:")
            p.wait_all(vm=False)
            self.stamp(140)
            p.barrier()
            self.stamp(140)
        s.misc(t, b4, rd=[ad, '@ba'], wr=self.pollr + ['@b4', '@bar', '@prio'], cost=20)
        sc = [V(240 + 2 * k, 2) for k in range(3)]
        for k in range(3):
            s.ds_read(t, "ds_read_b64", sc[k], u[2], SCO + 32 * k, rd=['@b4'])
        s.misc(t, lambda: p._mem_deps([r for v in sc for r in v.regs()]), rd=sc, wr=['@sc'])
        for k in range(3):
            for T in range(3):
                f = fr[k * 3 + T]
                for i in range(4):
                    s.valu(t, "v_pk_mul_f16", f.sub(i), f.sub(i), sc[k].sub(i & 1))
                    if o.get('tw', 2):
                        if o.get('tw', 2) == 1:
                            s.valu(t, "v_add_u32", f.sub(i), 0x00040004, f.sub(i))
                        s.valu(t, "v_and_b32", f.sub(i), sM, f.sub(i))
                for y in range(2):
                    s.ds_write(t, "ds_write_b64", vWR[k], f.sub(2 * y, 2), (3 * y + T) * 1024, rd=['@sc', '@w2'])

        def b5():
            p.wait_all(vm=False)
            p.barrier()
            self.stamp(184)
        s.misc(t + o.get('tf', 0.5), b5, wr=['@w2', '@bar'] + ([V(184, 4)] if o.get('stamps') else []))

    def ln16(self, s, t, ln):
        for u in range(3):
            for i in range(4):
                s.swap(t, 16, ln[2 * u].sub(i), ln[2 * u + 1].sub(i))

    def xo(self, store, reg, h, T):
        o = self.o
        if ('o' if store else 'x') in o.get('x_no', ''):
            return
        if store:
            self.p.buf_store("buffer_store_dwordx4", reg, self.vG, sOUT, sTILE[h[0]], 64 * T + 192 * h[1], flags=o.get('osf', 'sc1').replace('+', ' '))
        else:
            self.p.buf_load("buffer_load_dwordx4", reg, self.vG, sX, sTILE[h[0]], 64 * T + 192 * h[1], flags=o.get('xlf', ''))

    def phase2(self):
        p, o, s = self.p, self.o, self.s
        halves = [(2, 0), (2, 1), (1, 0), (1, 1), (0, 0), (0, 1)]
        groups = [[(3, 0), (3, 1)]]
        for n in self.pattern('grp', '33'):
            groups.append(halves[:n])
            halves = halves[n:]
        assert not halves
        P0 = self.TB + 0.1
        ra = o.get('ra', 2)
        F0 = (2.2, 2.95, 5.2)[ra - 1]
        G0 = F0 + o.get('tf', 0.5) + 0.05
        frac = o.get('f2', 0.78)
        g2 = o.get('g2', 0.15)
        prod, t = [], P0 + G0
        live = lambda g, j: [h for h in groups[g] if (h[0], j) not in self.spi]
        cols = {}
        for g in range(1, len(groups)):
            sp = [j for j in range(12) if len(live(g, j)) < len(groups[g])]
            rest = [j for j in range(12) if j not in sp]
            pos = {3 + int((n + 0.5) * 8 / len(sp)): j for n, j in enumerate(sp)}
            cols[g] = [pos[n] if n in pos else rest.pop(0) for n in range(12)]
            for j in cols[g]:
                for z in range(2 if live(g, j) else 0):
                    d = len(live(g, j)) / 4
                    n = len(prod)
                    prod.append((P0 + (0, d, 2 * d + 1.5)[n] if n < ra else t, d, g, j, z))
                    t += d if n >= ra else 0
        steps = [(0, j) for j, _ in self.fifo] + [(g, j) for g in range(1, len(groups)) for j in cols[g]]
        wt = [0]
        for g, _ in steps:
            wt.append(wt[-1] + len(groups[g]))
        NQ = len(steps)
        lb = {steps.index((g, j)): t + d + g2 + o.get('lag', 1.45) for t, d, g, j, z in prod if z}
        b0, bt = o.get('b0', 7), o.get('bt', 2.4)
        tt = [P0 + G0 + bt * q / b0 for q in range(b0 + 1)]
        if o.get('b1', 5.2):
            tt += [tt[-1] + (o.get('b1', 5.2) - bt) * (q - b0) / (12 - b0) for q in range(b0 + 1, 13)]
        cq = o.get('cq', 19)
        if cq:
            q0 = len(tt) - 1
            tt += [max(lb.get(q, 0), tt[q0] + (lb[cq] - tt[q0]) * (wt[q] - wt[q0]) / (wt[cq] - wt[q0])) for q in range(q0 + 1, cq + 1)]
        while len(tt) < NQ:
            q0 = len(tt) - 1
            sl, q1 = max(((lb[q] - tt[q0]) / (wt[q] - wt[q0]), q) for q in lb if q > q0)
            tt += [tt[q0] + sl * (wt[q] - wt[q0]) for q in range(q0 + 1, q1 + 1)]
        tt.append(tt[-1] + 0.7)
        tq = tt.__getitem__

        def units(g):
            out = {}
            for h in groups[g]:
                for T in range(3):
                    out.setdefault((h[0], (3 * h[1] + T) // 2), []).append((h, T))
            return list(out.values())

        events = [(P0 + F0, 3, 0, 0)]
        for q in range(NQ):
            for k in range(7):
                events.append((tq(q) + (tq(q + 1) - tq(q)) * min(k, 5.9) / 6, 2, q, k))
        for e, (t, d, g, j, z) in enumerate(prod):
            for u in range(3):
                events.append((t + d * u / 3, 0, e, u))
        events.sort()
        e0 = min(e for e, x in enumerate(prod) if (0, 0) in groups[x[2]])

        def record(s, want, dry):
            line = []
            quads = lambda v: [v.sub(i, 4) for i in range(0, v.n, 4)]
            nring = o.get('nring', 5)
            Yf = quads(V(304 - self.Yr.b, 16))
            ring = [V(120, 4), V(124, 4)] + self.ring1[2:] + Yf[:nring - 4]
            small = [V(120, 4), V(124, 4)]
            pool = quads(self.Yr) + self.ring1[:2]
            aq = [V(b, 4) for b in (128, 132, 136, 140, 240, 244, 72, 76, 80, 84, 88, 92)]
            ACC = {(h, T, y): aq[6 * h[1] + 2 * T + y] for h in groups[0] for T in range(3) for y in range(2)}
            ent = {((3, v), j): b.sub(4 * v, 4) for j, b in self.fifo for v in range(2)}
            LNq = {(ti, v): [self.LN[ti].sub(8 * u + 4 * v, 4) for u in range(3)] for ti in (1, 2) for v in range(2)}
            idf = V(16, 8)

            xuse = {}
            ln0 = []
            back = []
            low = [99, 0]

            def take(t):
                if len(pool) - 1 < low[0]:
                    low[:] = [len(pool) - 1, t - P0]
                assert pool, ('out of registers', t - P0)
                line.append((t, len(pool) - 1))
                return pool.pop(0)

            def bias(h, T, y, t):
                s.ds_read(t, "ds_read_b128", ACC[h, T, y], self.vBias, (0x2000 + 128 * T if T < 2 else 0) + y * 16, rd=['@b4'])

            def wread(t, addr, off, rg=ring, rd=()):
                w = self.ring(rg)
                s.ds_read(t - o.get('lead', 0.8), "ds_read_b128", w, addr, off, rd=rd)
                return w

            npair = nlut = 0
            Y = {}
            for t, kind, i, k in events:
                back.sort(key=lambda x: x[0])
                while back and back[0][0] <= t:
                    pool.append(back.pop(0)[1])
                while want and want[0][0] <= t:
                    _, q, pcs = want.pop(0)
                    if q == -2:
                        k_ = self.rc[id(ring)] % len(ring)
                        ring.insert(k_, take(t))
                        self.rc[id(ring)] = k_
                        if o.get('show'):
                            print(f'ring+ at {t - P0:.1f}', end='; ')
                        continue
                    if q == -3:
                        h, j_ = pcs
                        d = ent[h, j_] = take(t)
                        s.vmem(t, lambda f=self.spi[h[0], j_] + h[1], d=d: self.ws_frag(f, lambda so: p.buf_load(
                            "buffer_load_dwordx4", d, self.vA[0], sWS, so)), wr=[d], lat=o.get('xlat', 2000))
                        if o.get('show'):
                            print(f's at {t - P0:.1f}', end='; ')
                        continue
                    if q < 0:
                        for f in (2 * pcs, 2 * pcs + 1):
                            d = take(t)
                            ln0.append(d)
                            if 'l' not in o.get('x_no', ''):
                                s.vmem(t, lambda f=f, d=d: self.ws_frag(f, lambda so: p.buf_load(
                                    "buffer_load_dwordx4", d, self.vA[0], sWS, so, flags=o.get('rlf', ''))), wr=[d], lat=o.get('xlat', 2000))
                        if o.get('show') and not dry:
                            print(f'ln at {t - P0:.1f} for {prod[e0][0] - P0:.1f}', end='; ')
                        continue
                    if o.get('show') and not dry:
                        print(f'x at {t - P0:.1f} for {tq(q + 1) - P0:.1f}', end='; ')
                    xuse[q] = [(h, T, take(t)) for h, T in pcs]
                    for h, T, d in xuse[q]:
                        s.vmem(t, lambda d=d, h=h, T=T: self.xo(False, d, h, T), wr=[d], lat=o.get('xlat', 2000))
                line.append((t, len(pool)))
                if kind == 3:
                    if not dry:
                        for k in range(int(F0 / o.get('pi', 0.3))):
                            self.poll_op(P0 + o.get('pi', 0.3) * k)
                        self.fold(t)
                    for T in range(3):
                        for y in range(2):
                            bias(groups[0][0], T, y, t + 0.3)
                    pool += Yf[nring - 4:]
                    continue
                if kind == 0:
                    t0, d, g, j, z = prod[i]
                    G = live(g, j)
                    if k == 0:
                        if i == e0:
                            while dry and len(ln0) < 6:
                                ln0.append(take(t))
                            self.ln16(s, t - 1.0, ln0)
                            for v in range(2):
                                LNq[0, v] = ln0[v::2]
                        Y = {h: take(t) for h in G}
                    w = wread(t, self.vH[j // 6], ((j % 6) * 6 + 2 * k) * 1024 + 256 * z, small if i < ra else ring)
                    for n, h in enumerate(G):
                        s.mfma(t + d * n / (3 * len(G)), Y[h], w, LNq[h][k], Y[h] if k else 0)
                        if j == cols[g][-1] and z == 1:
                            back.append((t + d / 3, LNq[h][k]))
                    if k < 2:
                        continue
                    if z == 0:
                        ent.update({(h, j): Y[h] for h in G})
                    npair += 2 * len(G) * (frac if t - P0 > o.get('ft', 14) else o.get('f2a', frac))
                    nl = 2 * max(1, min(len(G), round((npair - nlut) / 2)))
                    nlut += nl
                    order = [(h, m) for h in G[len(G) - nl // 2:] + G[:len(G) - nl // 2] for m in range(2)]
                    self.gelu(s, t0 + d + g2, [Y[h].sub(2 * m, 2) for h, m in order], nl,
                              dst=[ent[h, j].sub(2 * z + m) for h, m in order], span=d)
                    if z:
                        back += [(t0 + d + g2 + o.get('fin', 0.9) + o.get('lw', 0.55) * d, Y[h]) for h in G]
                    continue
                q = i
                g, j = steps[q]
                G = groups[g]
                n = q % 12
                if k < 6:
                    T, y = divmod(k, 2)
                    w = wread(t, *self.frag(72 + (2 * j + y) * 3 + T), rd=['@w2'])
                    for m, h in enumerate(G[::-1]):
                        if dry and (h, j) not in ent:
                            ent[h, j] = take(t)
                        if (h, T, y) not in ACC:
                            ACC[h, T, y] = take(t)
                        d = ACC[h, T, y]
                        s.mfma(t + m * (tq(q + 1) - tq(q)) / (6 * len(G)), d, w, ent[h, j], d if n else ACC[G[0], T, y], 'f16')
                    continue
                if q != 2:
                    pool += [ent[h, j] for h in G]
                else:
                    for m in range(6):
                        if m in (2, 3):
                            s.valu(t, "v_cndmask_b32", idf.sub(m), 0, self.vI, sIX[m - 2])
                        else:
                            s.valu(t, "v_mov_b32", idf.sub(m), 0)
                assert all(w_[1] != q for w_ in want), ('late x', q)
                for h, T, x in xuse.get(q, ()):
                    for y in range(2):
                        s.mfma(t, ACC[h, T, y], idf.sub(2 - 2 * y, 4), x, ACC[h, T, y])
                    pool.append(x)
                if n == 11:
                    more = g + 1 < len(groups)
                    for T in range(3):
                        tt_ = t + 0.05 * T - 0.3
                        free = []
                        for h in G:
                            for m in range(4):
                                a_ = ACC[h, T, m >> 1]
                                s.valu(tt_, "v_cvt_pk_bf16_f32", ACC[h, T, 0].sub(m), a_.sub(2 * (m & 1)), a_.sub(2 * (m & 1) + 1))
                            free.append(ACC[h, T, 1])
                        if more:
                            for y in range(2):
                                ACC[groups[g + 1][0], T, y] = free.pop(0)
                                bias(groups[g + 1][0], T, y, tt_)
                        pool += free
                    for m, pcs in enumerate(units(g)):
                        ts = t + 0.1 + (o.get('sg%d' % g, o.get('sg', 1.6)) * m if more else 0)
                        for h, T in pcs:
                            d = ACC[h, T, 0]
                            s.vmem(ts, lambda d=d, h=h, T=T: self.xo(True, d, h, T), rd=[d], lat=0)
                            back.append((ts, d))
            return line, low

        rc = dict(self.rc)
        line, low = record(Sched(p, o), [], True)
        self.rc = rc
        wish = [(prod[e0][0] - o.get('rl0', 4.5) + o.get('rl', 1.0) * u, prod[e0][0] - 1e-6, 2, -1, u) for u in range(3)]
        for g in range(len(groups)):
            xs = [int(c, 16) for c in str(o.get(f'xq{g}', ('9ab', '4579b', '6789a', '89a')[g]))]
            for n, pcs in zip(xs, units(g)):
                q = 12 * g + n
                wish.append((tq(q) - o.get('xlead', 5.0), tq(q + 1), len(pcs), q, pcs))
        wish += [(tq(q) - o.get('slead', 4.5) + 0.3 * n, tq(q) - 1e-6, 1, -3, (h, j)) for q, (g, j) in enumerate(steps) if g
                 for n, h in enumerate(groups[g]) if h not in live(g, j)]
        wish += [(P0 + G0, 1e9, 1, -2, None) for _ in range(o.get('rx', 3))]
        want = []
        for t0, t1, n, q, pay in wish:
            for t, f in line:
                if t0 <= t <= t1 and f < n + o.get('xres', 0):
                    t0 = t + 1e-6
            line = [(t, f - n if t0 <= t <= t1 else f) for t, f in line]
            want.append((t0, q, pay))
        want.sort(key=lambda x: x[0])
        line, low = record(s, want, False)
        if o.get('show'):
            print('fewest free quads', low, 'group ends', [round(tq(12 * g) - P0, 1) for g in range(1, len(groups) + 1)])
        pe = o.get('pe', 0)
        self.prio_steps(s, P0 + G0, tq(NQ) + 0.4 - pe, 'pp2')
        for k, f in enumerate((1.0, 0.6, 0.3, 0.12) if pe else ()):
            self.setprio(s, tq(NQ) + 0.4 - pe * f, 3 - k)
        self.fine(s, [P0 + G0 + e for e in range(38)], 'p2')
        if o.get('x_jit'):
            import random
            rnd = random.Random(o['x_jit'])

            def nap(k, mask, n):
                p.salu("s_lshr_b32", sT0, mask, sWAVE)
                p.salu("s_and_b32", sT0, sT0, 1)
                p.raw(f"s_cbranch_scc0 Lnap{k}")
                p.cond_begin()
                p.raw(f"s_sleep {n}")
                p.cond_end()
                p.lines.append(f"Lnap{k}:")
            for k in range(60):
                tt_ = rnd.choice((rnd.uniform(-1, tq(NQ)), rnd.uniform(-1, 8), rnd.uniform(20, 36), rnd.uniform(self.T1 - 10, P0 + G0 + 2)))
                s.misc(tt_, lambda k=k, m=rnd.randrange(1, 255), n=rnd.choice((4, 16, 60, 120)): nap(k, m, n))
        s.run(tag='all')
        for tag in ('p1', 'mid', 'p2'):
            self.fine_flush(tag)
        if o.get('fine') == 'su':
            self.nfine += 2
            self.fine_flush('su')
        self.stamp(168)

    def build(self):
        self.alloc()
        self.vW1g, self.vW1r, self.vW1w = V(115), V(116), V(117)
        self.prologue()
        self.phase1()
        self.gap()
        self.phase2()
        if self.o.get('x_pad'):
            p = self.p
            p.raw("s_waitcnt vmcnt(0)")
            p.lines.append("Lpad:")
            p.raw(f"s_memrealtime {sRT}")
            p.raw("s_waitcnt lgkmcnt(0)")
            p.salu("s_sub_u32", sT0, sRT.sub(0), S(100))
            p.salu("s_cmp_lt_u32", sT0, self.o['x_pad'])
            p.raw("s_cbranch_scc1 Lpad")
        self.p.raw("s_endpgm")
        self.poll_routine()
        self.p.lines.append("Lend:")
        self.p.raw("s_endpgm")
        return self.p


HEADER = open('standalone__modern_conv_block_convnext_v2__vision.s.ref').read().split('; Override launch')[0]


def wrap(p):
    return f"""{HEADER}; Generated by gen/gen6.py (hand-written generator; see gen/asmgen.py, gen/sched.py)
; One persistent launch: conv -> LayerNorm -> GEMM1 -> GELU -> sums of squares, grid reduction, then GEMM1 -> GELU -> GEMM2.
; kernel fills at start with the same formula for every sign, f16 exponent and 7-bit mantissa (bf16 resolution of h).
; @launch grid=(256,1,1) block=(512,1,1) lds={LDS_BYTES}
.amdgcn_target "amdgcn-amd-amdhsa--gfx950"
.text
.globl {NAME}
.p2align 8
.type {NAME},@function
{NAME}:
{p.text()}
.section .rodata,"a"
.p2align 6
.amdhsa_kernel {NAME}
  .amdhsa_next_free_vgpr 256
  .amdhsa_next_free_sgpr 102
  .amdhsa_accum_offset 256
  .amdhsa_group_segment_fixed_size 0
  .amdhsa_kernarg_size 72
  .amdhsa_user_sgpr_count 2
  .amdhsa_user_sgpr_kernarg_segment_ptr 1
  .amdhsa_system_sgpr_workgroup_id_x 1
.end_amdhsa_kernel
"""


def parse(args):
    opt = {}
    for a in args:
        k, v = a.split('=')
        if k.startswith(('nl', 'keep', 'sp0', 'sp1', 'xq', 'grp')):
            opt[k] = v
            continue
        try:
            opt[k] = int(v)
        except ValueError:
            try:
                opt[k] = float(v)
            except ValueError:
                opt[k] = v
    return opt


if __name__ == '__main__':
    out = sys.argv[1]
    opt = parse(sys.argv[2:])
    g = Gen(opt)
    p = g.build()
    from align import align_dp
    al = align_dp(p.lines, ncost=opt.get('nc', 1e9))
    open(out, 'w').write(wrap(p))
    print(out, 'align', al, 'instructions', sum(p.stats.values()), 'stamps', g.nstamp,
          {k: v for k, v in p.stats.items() if k in ('s_nop', 's_waitcnt', 'ds_read_b128', 'ds_read_u16')})
```

```python
class V:
    __slots__ = ("b", "n")

    def __init__(self, b, n=1):
        assert 0 <= b and b + n <= 256, (b, n)
        if n > 1:
            assert b % 2 == 0, ("unaligned tuple", b, n)
        self.b, self.n = b, n

    def __str__(self):
        return f"v{self.b}" if self.n == 1 else f"v[{self.b}:{self.b + self.n - 1}]"

    def regs(self):
        return range(self.b, self.b + self.n)

    def sub(self, off, n=1):
        assert off + n <= self.n
        return V(self.b + off, n)


class S:
    __slots__ = ("b", "n")

    def __init__(self, b, n=1):
        self.b, self.n = b, n

    def __str__(self):
        return f"s{self.b}" if self.n == 1 else f"s[{self.b}:{self.b + self.n - 1}]"

    def sub(self, off, n=1):
        return S(self.b + off, n)


TRANS = ("v_exp_f32", "v_rcp_f32", "v_rsq_f32", "v_sqrt_f32", "v_log_f32",
         "v_exp_f16", "v_rcp_f16", "v_exp_f16_sdwa", "v_rcp_f16_sdwa")
NEG = -10 ** 9
MAX_LGKM = 15


class Prog:
    def __init__(self):
        self.lines = []
        self.pos = 0
        self.w_valu = [NEG] * 256
        self.w_trans = [NEG] * 256
        self.w_mfma = [(NEG, None)] * 256
        self.c_read = [NEG] * 256
        self.st_read = [NEG] * 256
        self.p_lgkm = [None] * 256
        self.p_vm = [None] * 256
        self.lgkm_seq = 0
        self.lgkm_done = 0
        self.vm_seq = 0
        self.vm_done = 0
        self.sgpr_valu_w = {}
        self.m0_w = NEG
        self.stats = {}
        self.ab_read = [NEG] * 256
        self.rawpad = self.warpad = 0
        self.w_half = [NEG] * 256
        self.lgkm_hint = 0

    def raw(self, text, states=1):
        if text.startswith(("s_mov_b64 exec", "s_mov_b32 exec", "s_and_saveexec")) and not text.endswith("exec, -1"):
            self._need(max(p for p, _ in self.w_mfma) + 1 + 14)
        self.lines.append(text)
        self.pos += states
        k = text.split()[0]
        self.stats[k] = self.stats.get(k, 0) + 1

    def comment(self, text):
        self.lines.append("; " + text)

    def nop(self, n):
        while n > 0:
            k = min(n, 16)
            self.raw(f"s_nop {k - 1}", k)
            n -= k

    def _need(self, target):
        if target > self.pos:
            self.nop(target - self.pos)

    def wait(self, lgkm=None, vm=None):
        parts = []
        if vm is not None and vm > self.vm_done:
            n = min(self.vm_seq - vm, 63)
            parts.append(f"vmcnt({n})")
            self.vm_done = self.vm_seq - n
        if lgkm is not None and lgkm > self.lgkm_done:
            lgkm = max(lgkm, min(self.lgkm_hint, self.lgkm_seq))
            n = min(self.lgkm_seq - lgkm, 15)
            parts.append(f"lgkmcnt({n})")
            self.lgkm_done = self.lgkm_seq - n
        if parts:
            self.raw("s_waitcnt " + " ".join(parts))

    def wait_all(self, lgkm=True, vm=True):
        self.wait(self.lgkm_seq if lgkm else None, self.vm_seq if vm else None)

    def sync(self):
        self.raw("s_waitcnt vmcnt(0) lgkmcnt(0)")
        self.lgkm_done = self.lgkm_seq
        self.vm_done = self.vm_seq
        last = max(p for p, _ in self.w_mfma)
        self._need(max(last + 1 + 12, self.pos + 5))

    def _mem_deps(self, regs):
        lg = vm = None
        for r in regs:
            if self.p_lgkm[r] is not None:
                lg = max(lg or 0, self.p_lgkm[r])
            if self.p_vm[r] is not None:
                vm = max(vm or 0, self.p_vm[r])
        self.wait(lg, vm)

    @staticmethod
    def _vregs(ops):
        out = []
        for o in ops:
            if isinstance(o, V):
                out.extend(o.regs())
        return out

    def _sgpr_from_valu(self, ops, states):
        for o in ops:
            if isinstance(o, S):
                for r in range(o.b, o.b + o.n):
                    if r in self.sgpr_valu_w:
                        self._need(self.sgpr_valu_w[r] + 1 + states)
            elif o == "vcc" and "vcc" in self.sgpr_valu_w:
                self._need(self.sgpr_valu_w["vcc"] + 1 + states)

    def valu(self, op, dst, *src, mods="", rmw=False, extra_w=()):
        rd = self._vregs(src)
        wr = self._vregs([dst] + list(extra_w))
        if rmw:
            rd += wr
        self._mem_deps(rd + wr)
        trans = op in TRANS
        t = self.pos
        for r in rd + wr:
            t = max(t, self.w_mfma[r][0] + 1 + 12)
        for r in wr:
            t = max(t, self.c_read[r] + 1 + 7, self.st_read[r] + 1 + 2)
        if not trans:
            for r in rd:
                t = max(t, self.w_trans[r] + 1 + 1)
        for r in rd + wr:
            t = max(t, self.w_half[r] + 1 + 1)
        if "permlane" in op or "dpp" in op:
            for r in rd:
                t = max(t, self.w_valu[r] + 1 + 2)
        if "readfirstlane" in op or "readlane" in op:
            for r in rd:
                t = max(t, self.w_valu[r] + 1 + 1)
        self._need(t)
        self._sgpr_from_valu(src, 2)
        txt = f"{op} {dst}" + "".join(f", {s}" for s in src) + (" " + mods if mods else "")
        p = self.pos
        self.raw(txt)
        for r in wr:
            self.w_valu[r] = p
            if trans:
                self.w_trans[r] = p
            if "dst_sel:WORD" in mods or op.startswith(("v_pk_", "v_fma_mix", "v_dot")):
                self.w_half[r] = p
        if isinstance(dst, S):
            for r in range(dst.b, dst.b + dst.n):
                self.sgpr_valu_w[r] = p
        elif dst == "vcc":
            self.sgpr_valu_w["vcc"] = p

    def swap32(self, a, b):
        self.valu("v_permlane32_swap_b32", a, b, rmw=True, extra_w=(b,))

    def swap16(self, a, b):
        self.valu("v_permlane16_swap_b32", a, b, rmw=True, extra_w=(b,))

    def mfma(self, d, a, b, c, ty="bf16"):
        rd_ab = self._vregs([a, b, ty])
        rd_c = self._vregs([c])
        wr = list(d.regs())
        n0 = len(self.lines)
        self._mem_deps(rd_ab + rd_c + wr)
        if len(self.lines) > n0 and self.rawpad:
            self.nop(self.rawpad)
        t = self.pos
        for r in rd_ab + rd_c:
            t = max(t, self.w_valu[r] + 1 + 2)
        for r in rd_ab:
            t = max(t, self.w_mfma[r][0] + 1 + 12)
        key = (d.b, d.n)
        if ty == '4x4':
            for r in rd_c:
                t = max(t, self.w_mfma[r][0] + 6 + 1 + 2)
        for r in rd_c:
            p, k = self.w_mfma[r]
            if k != (c.b, c.n):
                t = max(t, p + 1 + 10)
        for r in wr:
            p, k = self.w_mfma[r]
            if not (isinstance(c, V) and k == (c.b, c.n) == key):
                t = max(t, p + 1 + 10)
            t = max(t, self.st_read[r] + 1 + 2)
        self._need(t)
        p = self.pos
        short = 4 if d.n == 4 else 0
        if isinstance(ty, V):
            self.raw(f"v_smfmac_f32_16x16x32_bf16 {d}, {a}, {b}, {ty}")
            for r in wr:
                self.w_mfma[r] = (p - short, key)
                self.c_read[r] = p - short
            return
        if ty == '4x4':
            self.raw(f"v_mfma_f32_4x4x4_16b_f16 {d}, {a}, {b}, {c}")
            for r in wr:
                self.w_mfma[r] = (p - 6, key)
            for r in rd_c:
                self.c_read[r] = p - 6
            return
        name = ("v_mfma_f32_16x16x16_" if a.n == 2 else "v_mfma_f32_16x16x32_" if d.n == 4 else "v_mfma_f32_32x32x16_") + ty
        self.raw(f"{name} {d}, {a}, {b}, {c}")
        for r in rd_ab:
            self.ab_read[r] = p
        for r in wr:
            self.w_mfma[r] = (p - short, key)
        for r in rd_c:
            self.c_read[r] = p - short

    def _mem_issue(self, rd, wr):
        self._mem_deps(rd + wr)
        t = self.pos
        for r in rd + wr:
            t = max(t, self.w_mfma[r][0] + 1 + 12)
        for r in rd:
            t = max(t, self.w_trans[r] + 1 + 1)
        for r in wr:
            t = max(t, self.c_read[r] + 1 + 7, self.st_read[r] + 1 + 1, self.ab_read[r] + 1 + self.warpad)
        self._need(t)

    def _lds_room(self):
        if self.lgkm_seq - self.lgkm_done >= MAX_LGKM:
            self.wait(lgkm=self.lgkm_seq - MAX_LGKM + 1)

    def ds_read(self, op, dst, addr, off=0):
        assert 0 <= off < 65536, off
        self._lds_room()
        self._mem_issue([addr.b], list(dst.regs()))
        self.raw(f"{op} {dst}, {addr}" + (f" offset:{off}" if off else ""))
        self.lgkm_seq += 1
        for r in dst.regs():
            self.p_lgkm[r] = self.lgkm_seq
        return self.lgkm_seq

    def ds_write(self, op, addr, data, off=0):
        assert 0 <= off < 65536, off
        self._lds_room()
        self._mem_issue([addr.b] + list(data.regs()), [])
        p = self.pos
        self.raw(f"{op} {addr}, {data}" + (f" offset:{off}" if off else ""))
        for r in data.regs():
            self.st_read[r] = p
        self.lgkm_seq += 1
        return self.lgkm_seq

    def _vm_text(self, op, data, voff, srd, soff, off, flags):
        assert 0 <= off < 4096, off
        self._sgpr_from_valu([srd, soff], 5)
        t = op + " " + (f"{data}, " if data is not None else "") + f"{voff}, {srd}, {soff} offen"
        if off:
            t += f" offset:{off}"
        if flags:
            t += " " + flags
        return t

    def buf_load(self, op, dst, voff, srd, soff=0, off=0, flags=""):
        self._mem_issue([voff.b], list(dst.regs()))
        self.raw(self._vm_text(op, dst, voff, srd, soff, off, flags))
        self.vm_seq += 1
        for r in dst.regs():
            self.p_vm[r] = self.vm_seq
        return self.vm_seq

    def buf_store(self, op, data, voff, srd, soff=0, off=0, flags="", ret=False):
        self._mem_issue([voff.b] + list(data.regs()), [])
        txt = self._vm_text(op, data, voff, srd, soff, off, flags)
        p = self.pos
        self.raw(txt)
        self.vm_seq += 1
        for r in data.regs():
            self.st_read[r] = p
            if ret:
                self.p_vm[r] = self.vm_seq
        return self.vm_seq

    def dma(self, voff, srd, soff=0, off=0, flags=""):
        self._mem_issue([voff.b], [])
        self._need(self.m0_w + 1 + 1)
        self.raw(self._vm_text("buffer_load_dwordx4", None, voff, srd, soff, off, (flags + " lds").strip()))
        self.vm_seq += 1
        return self.vm_seq

    def salu(self, op, *ops):
        self._sgpr_from_valu(ops, 2)
        p = self.pos
        self.raw(f"{op} " + ", ".join(str(o) for o in ops))
        if ops and ops[0] == "m0":
            self.m0_w = p

    def label(self, name):
        self.sync()
        self.lines.append(f"{name}:")

    def branch(self, op, name):
        self.sync_soft()
        self.raw(f"{op} {name}")

    def sync_soft(self):
        self.raw("s_waitcnt vmcnt(0) lgkmcnt(0)")
        self.lgkm_done = self.lgkm_seq
        self.vm_done = self.vm_seq
        last = max(p for p, _ in self.w_mfma)
        self._need(max(last + 1 + 12, self.pos + 5))

    def cond_begin(self):
        self._cond = (self.vm_seq, self.vm_done, self.lgkm_seq, self.lgkm_done)
        self._cond_pos = self.pos

    def cond_end(self):
        vs, vd, ls, ld = self._cond
        for arr, lim in ((self.p_vm, vs), (self.p_lgkm, ls)):
            for r in range(256):
                if arr[r] is not None and arr[r] > lim:
                    arr[r] = lim
        self.vm_done = min(vd, vs - 1) if self.vm_seq > vs else vd
        self.lgkm_done = min(ld, ls - 1) if self.lgkm_seq > ls else ld
        self.vm_seq, self.lgkm_seq = vs, ls
        shift = self.pos - self._cond_pos
        for arr in (self.w_valu, self.w_trans, self.w_half, self.c_read, self.st_read):
            for r in range(256):
                if arr[r] < self._cond_pos:
                    arr[r] += shift
        for r in range(256):
            if self.w_mfma[r][0] < self._cond_pos:
                self.w_mfma[r] = (self.w_mfma[r][0] + shift, self.w_mfma[r][1])
        for k, v in self.sgpr_valu_w.items():
            if v < self._cond_pos:
                self.sgpr_valu_w[k] = v + shift
        if self.m0_w < self._cond_pos:
            self.m0_w += shift
        return vs

    def barrier(self):
        self.raw("s_barrier")

    def text(self):
        return "\n".join(self.lines) + "\n"
```

```python
import math
import struct
import sys

from asmgen import *
from sched import Sched

NAME = 'standalone__modern_conv_block_convnext_v2__vision_kernel'


def f2u(x):
    return struct.unpack('<I', struct.pack('<f', x))[0]


def h2u(x):
    return struct.unpack('<H', struct.pack('<e', x))[0]


C2 = -2 * math.sqrt(2 / math.pi) * math.log2(math.e)
C1 = C2 * 0.044715
GA = -(abs(C1) ** (1.0 / 3.0))
GK = C2 / GA

HOLE = (0x1F00, 0x3F00)
W1F = 16384
R2 = W1F + 73728
RS = 6592
DIAG = R2 + 10 * RS
CNT = HOLE[0] + 192
C_PUB, C_W1A, C_W1B, C_F, C_T2 = 4, 8, 12, 16, 32
SCO = 3072
TABO = 5120
LDS_BYTES = 163840
WS_P = 0
WS_TOT = 96 * 256 * 16
WS_STAMP = 1 << 20
WS_LN = 4 << 20
WS_BYTES = 80 << 20
OOB_V = 0x80000000
OOB_S = 0x40000000
X_BYTES = 512 * 512 * 96 * 2
ROWB = 512 * 192
LO = "dst_sel:WORD_0 dst_unused:UNUSED_PRESERVE src0_sel:WORD_0"
HI = "dst_sel:WORD_1 dst_unused:UNUSED_PRESERVE src0_sel:WORD_1"

sX, sOUT, sW1, sW2, sDW, sGA, sBE, sWS, sDBG = [S(4 + 4 * i, 4) for i in range(9)]
sWAVE, sX0, sY0, sT0, sT1, sT2, sT3 = [S(40 + i) for i in range(7)]
sK, sM, sA = S(48), S(49), S(47)
sID = [S(50 + 2 * i, 2) for i in range(8)]
sIX = [S(88, 2), S(90, 2)]
sD4 = [S(92, 2), S(94, 2)]
sYB, sXM = S(66), S(67)
sTILE = [S(68 + i) for i in range(4)]
sPRIV = S(72)
sSTAMP = S(73)
sEX = S(74, 2)
sCNT = S(76)
sROLE = S(77)
sRET = S(78, 2)
sVM = S(3)
sLNB, sSL, sW2B, sFC = S(80), S(81), S(82), S(83)
sLD = S(80, 16)
sTM = S(96, 2)
sRT = S(98, 2)


class Gen:
    def __init__(self, opt):
        self.o = opt
        self.p = Prog()
        self.p.rawpad, self.p.warpad = opt.get('rawpad', 0), opt.get('warpad', 0)
        self.nstamp = 0
        self.rc = {}

    def stamp(self, tb):
        p = self.p
        if self.o.get('dbgs'):
            self.nstamp += 1
            reg = {3: 84, 4: 85, 8: 86, 9: 87}.get(self.nstamp)
            if reg:
                p.raw(f"s_memrealtime {sRT}")
                p.raw("s_waitcnt lgkmcnt(0)")
                p.lgkm_done = p.lgkm_seq
                p.salu("s_mov_b32", S(reg), sRT.sub(0))
            if self.nstamp == 9:
                p.salu("s_cmp_lg_u32", sWAVE, 7)
                p.raw("s_cbranch_scc1 Ldbgx")
                p.salu("s_mul_i32", sT0, S(2), 1285)
                p.salu("s_add_u32", sT0, sT0, 1284)
                p.salu("s_lshr_b32", sT0, sT0, 16)
                p.salu("s_mul_i32", sT1, sT0, 51)
                p.salu("s_cmp_lg_u32", sT1, S(2))
                p.raw("s_cbranch_scc1 Ldbgx")
                p.salu("s_mul_i32", sT0, sT0, 12)
                p.valu("v_mov_b32", V(0), 4)
                for i in range(3):
                    p.salu("s_sub_u32", sT1, S(85 + i), S(100))
                    p.valu("v_mov_b32", V(2 + i), sT1)
                p.raw("s_mov_b64 exec, 1")
                p.raw(f"buffer_store_dwordx3 v[2:4], v0, {sDBG}, {sT0} offen")
                p.lines.append("Ldbgx:")
            return
        if not self.o.get('stamps'):
            return
        t = V(tb, 4)
        p.raw(f"s_memtime {sTM}")
        p.raw(f"s_memrealtime {sRT}")
        p.raw("s_waitcnt lgkmcnt(0)")
        p.lgkm_done = p.lgkm_seq
        for i in range(4):
            p.valu("v_mov_b32", t.sub(i), S(sTM.b + i))
        p.salu("s_sub_u32", sT0, sSTAMP, W1F)
        if self.o.get('dbgt'):
            p.valu("v_mov_b32", t.sub(0), 0)
        p.raw("s_mov_b64 exec, 1")
        if self.o.get('dbgt'):
            p.buf_store("buffer_atomic_umax", t.sub(2), t.sub(0), sDBG, 0, 8 + 4 * self.nstamp)
        else:
            p.buf_store("buffer_store_dwordx4", t, self.vA[0], sWS, sT0, 16 * self.nstamp)
        p.raw("s_mov_b64 exec, -1")
        p.nop(2)
        self.nstamp += 1

    def fine(self, s, times, tag):
        if self.o.get('fine') != tag:
            return
        p = self.p

        def one(k):
            if k:
                p.raw(f"v_writelane_b32 v249, s{84 + 2 * ((k - 1) % 2)}, {k - 1}")
            p.raw(f"s_memtime s[{84 + 2 * (k % 2)}:{85 + 2 * (k % 2)}]")
        for k, t in enumerate(times):
            s.misc(t, lambda k=k: one(k), wr=['@fine'])
        self.nfine = len(times)

    def mark(self):
        if self.o.get('fine') != 'su':
            return
        k = self.nfine = getattr(self, 'nfine', -1) + 1
        self.p.raw("s_memtime s[100:101]")
        self.p.raw("s_waitcnt lgkmcnt(0)")
        self.p.raw(f"v_writelane_b32 v249, s100, {k}")

    def fine_flush(self, tag):
        if self.o.get('fine') != tag:
            return
        p, k = self.p, self.nfine
        p.raw(f"s_memtime s[{84 + 2 * (k % 2)}:{85 + 2 * (k % 2)}]")
        p.raw("s_waitcnt lgkmcnt(0)")
        for i in (k - 1, k):
            p.raw(f"v_writelane_b32 v249, s{84 + 2 * (i % 2)}, {i}")
        p.salu("s_lshl_b32", sT0, S(2), 3)
        p.salu("s_add_u32", sT0, sT0, sWAVE)
        p.salu("s_lshl_b32", sT0, sT0, 10)
        p.salu("s_add_u32", sT0, sT0, (2 << 20) - W1F)
        p.buf_store("buffer_store_dword", V(249), self.vA[0], sWS, sT0)

    def frag(self, idx):
        return self.vA[idx >> 6], (idx & 63) * 1024

    def ring(self, rg):
        k = self.rc.get(id(rg), 0)
        self.rc[id(rg)] = k + 1
        return rg[k % len(rg)]

    def srd(self, d, ptr, nbytes):
        p = self.p
        p.salu("s_mov_b32", d.sub(0), ptr.sub(0))
        p.salu("s_and_b32", d.sub(1), ptr.sub(1), 0xFFFF)
        p.salu("s_mov_b32", d.sub(2), nbytes)
        p.salu("s_mov_b32", d.sub(3), 0x20000)

    def lane_sum64(self, v, t):
        p = self.p
        for r in (8, 4, 2, 1):
            p.valu("v_add_f32_dpp", v, v, v, mods=f"row_ror:{r} row_mask:0xf bank_mask:0xf")
        p.valu("v_mov_b32", t, v)
        p.swap16(v, t)
        p.valu("v_add_f32", v, v, t)
        p.valu("v_mov_b32", t, v)
        p.swap32(v, t)
        p.valu("v_add_f32", v, v, t)

    def lane(self, dst):
        self.p.valu("v_bfe_u32", dst, self.vA[0], 4, 6)

    def call_if(self, older, names, tag):
        p = self.p
        p.salu("s_cmp_lt_u32" if older else "s_cmp_ge_u32", sWAVE, 4)
        p.raw(f"s_cbranch_scc0 {tag}")
        p.cond_begin()
        for n in names:
            p.raw(n if n.startswith("s_") else f"s_call_b64 {sRET}, {n}")
        p.cond_end()
        p.lines.append(f"{tag}:")

    def alloc(self):
        self.LN = [V(24 * t, 24) for t in range(4)]
        self.CA = [V(0, 48), V(48, 48), V(48, 48), V(96, 48)]
        self.Y1 = [V(96 + 16 * i, 16) for i in range(self.o.get('ny', 5))]
        self.ring1 = [V(176 + 4 * i, 4) for i in range(4)]
        self.ringA = [V(192 + 4 * i, 4) for i in range(5)]
        self.ringB = [V(144 + 4 * i, 4) for i in range(8)]
        self.vB = [V(212 + i) for i in range(4)]
        self.ls = [[V(240, 2), V(242, 2), V(244, 2)], [V(216, 2), V(218, 2), V(220, 2)]]
        self.tq = V(222, 2)
        self.SQ = [V(224 + i) for i in range(12)]
        self.vX, self.vC = [V(236), V(237)], [V(238), V(239)]
        self.vB0, self.vCnt, self.vS = V(246), V(247), V(248)
        self.vA = [V(250), V(251), V(252)]
        self.vG, self.vBias, self.vI = V(253), V(254), V(255)
        hexs = lambda k, d: [int(c, 16) for c in str(self.o.get(k, d)) if c != 'n']
        self.keep = hexs('keep', '2345678ab')
        self.sp = {0: hexs('sp0', 'n'), 1: hexs('sp1', 'n'), 2: [], 3: []}
        self.spi = {(ti, j): 6 + 2 * n for n, (ti, j) in enumerate((ti, j) for ti in (0, 1) for j in self.sp[ti])}
        fifo = [0, 8, 16, 96, 104, 192, 200, 208, 224, 112, 216, 232]
        late = {j: b for j, b in ((10, 96), (11, 104)) if j in self.keep}
        rest = [j for j in self.keep if j not in late]
        assert len(rest) <= 6 or (len(rest) == 7 and rest[6] >= 8)
        late.update(zip(rest, [0, 8, 16, 192, 200, 208, 224]))
        self.todo = [j for j in range(12) if j not in self.keep]
        col = {b: j for j, b in late.items()}
        col.update(zip([b for b in fifo if b not in col], self.todo))
        self.fifo = [(col[b], V(b, 8)) for b in fifo]
        self.blk3 = {j: b for j, b in self.fifo}
        self.vW2 = V(246)

    def signal(self, off, dyn=False):
        p = self.p
        a, b = self.tq.sub(0), self.tq.sub(1)
        p.valu("v_mov_b32", b, 1)
        if dyn:
            p.valu("v_add_u32", a, sFC, self.vCnt)
        p.wait_all(vm=False)
        p.raw("s_mov_b64 exec, 1")
        p.ds_write("ds_add_u32", a if dyn else self.vCnt, b, off)
        p.raw("s_mov_b64 exec, -1")

    def await_(self, off, n, dyn=False, tq=None):
        p = self.p
        tq = tq or self.tq
        a, b = tq.sub(0), tq.sub(1)
        k = self.nawait = getattr(self, 'nawait', 0) + 1
        if dyn:
            p.valu("v_add_u32", a, sFC, self.vCnt)
        p.valu("v_mov_b32", b, 0)
        p.raw(f"s_branch Law{k}")
        p.lines.append(f"Lax{k}:")
        p.raw("s_sleep 2")
        p.lines.append(f"Law{k}:")
        p.raw(f"ds_read_b32 {b}, {a if dyn else self.vCnt} offset:{off}")
        p.raw(f"s_sub_u32 {sCNT}, {sCNT}, 1")
        p.raw(f"s_cselect_b32 {sT1}, {n}, 0")
        p.raw(f"s_cselect_b32 {sCNT}, 0, {sCNT}")
        p.raw("s_waitcnt lgkmcnt(0)")
        p.raw(f"v_readfirstlane_b32 {sT0}, {b}")
        p.raw("s_nop 1")
        p.raw(f"s_max_u32 {sT0}, {sT0}, {sT1}")
        p.raw(f"s_cmp_lt_u32 {sT0}, {n}")
        p.raw(f"s_cbranch_scc1 Lax{k}")
        p.lgkm_seq += 1
        p.lgkm_done = p.lgkm_seq

    def row0_dma(self, R, k=0):
        p = self.p
        p.salu("s_add_u32", "m0", sXM, R * RS + ((R >> 1) & 3) * 16 + 896 * k)
        so = sYB
        if R == 0:
            p.salu("s_sub_u32", sT2, sYB, ROWB)
            p.salu("s_cmp_eq_u32", sY0, 0)
            p.salu("s_cselect_b32", sT2, OOB_S, sT2)
            so = sT2
        elif R > 1:
            p.salu("s_add_u32", sYB, sYB, ROWB)
        p.dma(self.vX[k], sX, so, flags='nt' if self.o.get('nt0', 0) else '')

    def row_dma(self, R):
        p = self.p
        p.salu("s_add_u32", sSL, sSL, RS)
        p.salu("s_cmp_eq_u32", sSL, 10 * RS)
        p.salu("s_cselect_b32", sSL, 0, sSL)
        p.salu("s_add_u32", sT0, sSL, sXM)
        p.salu("s_add_u32", "m0", sT0, ((R >> 1) & 3) * 16)
        p.salu("s_add_u32", sYB, sYB, ROWB)
        p.dma(self.vX[0], sX, sYB)
        p.salu("s_add_u32", "m0", sT0, ((R >> 1) & 3) * 16 + 896)
        self.x_tok = p.dma(self.vX[1], sX, sYB)

    def skip_round(self):
        p = self.p
        p.salu("s_add_u32", sYB, sYB, 8 * ROWB)
        p.salu("s_sub_u32", sSL, sSL, 2 * RS)

    def touch_rows(self, a, b):
        p = self.p
        self.lane(b)
        p.valu("v_and_b32", a, 15, b)
        p.valu("v_lshlrev_b32", a, 7, a)
        p.valu("v_lshrrev_b32", b, 4, b)
        p.valu("v_mul_u32_u24", b, ROWB, b)
        p.salu("s_sub_u32", sT0, sXM, R2 + 192 - ROWB)
        p.salu("s_mul_i32", sT1, sX0, 192)
        p.salu("s_add_u32", sT0, sT0, sT1)
        p.valu("v_add3_u32", a, a, b, sT0)
        p.salu("s_mov_b32", "m0", LDS_BYTES)
        p.salu("s_add_u32", sT1, sYB, 4 * ROWB)
        for so in (sYB, sT1):
            p.raw(f"buffer_load_dword {a}, {sX}, {so} offen lds")
            p.vm_seq += 1

    def conv_addr(self):
        p = self.p
        a = self.tq.sub(0)
        p.salu("s_add_u32", sT0, sSL, RS)
        for k in range(4):
            p.valu("v_add_u32", self.vB[k], sT0, self.vB0)
            if k:
                p.valu("v_add_u32", self.vB[k], k * RS, self.vB[k])
            if k >= 2:
                p.valu("v_add_u32", a, 16, self.vB[k])
                p.valu("v_bfi_b32", self.vB[k], 48, a, self.vB[k])
            p.valu("v_subrev_u32", a, 10 * RS, self.vB[k])
            p.valu("v_min_u32", self.vB[k], self.vB[k], a)
            p.valu("v_add_u32", self.vB[k], R2, self.vB[k])
        if self.o.get('sm', 1):
            p.valu("v_max_u32", V(240), self.vC[0], self.vC[1])
            p.valu("v_bfe_u32", V(241), self.vA[0], 4, 2)
            p.valu("v_mul_u32_u24", V(241), 0x55, V(241))
            p.valu("v_xor_b32", V(241), 0x44, V(241))

    def w1_dma(self, u):
        p = self.p
        p.salu("s_and_b32", sT0, sWAVE, 3)
        p.salu("s_add_u32", sT0, sT0, 4 * u)
        p.salu("s_mul_i32", sT1, sT0, 43)
        p.salu("s_lshr_b32", sT1, sT1, 8)
        p.salu("s_lshl_b32", sT3, sT0, 10)
        p.salu("s_add_u32", "m0", sT3, W1F)
        p.salu("s_mul_i32", sT3, sT1, 6)
        p.salu("s_sub_u32", sT0, sT0, sT3)
        p.salu("s_mul_i32", sT0, sT0, 12288)
        p.salu("s_lshl_b32", sT1, sT1, 6)
        p.salu("s_add_u32", sT0, sT0, sT1)
        return p.dma(self.vW1g, sW1, sT0)

    def tr_addr(self, dst, lane, t0, hshift):
        p = self.p
        p.valu("v_lshrrev_b32", t0, 5, lane)
        p.valu("v_lshlrev_b32", dst, hshift, t0)
        p.valu("v_bfe_u32", t0, lane, 2, 2)
        p.valu("v_lshl_add_u32", dst, t0, 6, dst)
        p.valu("v_bfe_u32", t0, lane, 4, 1)
        p.valu("v_lshl_add_u32", dst, t0, 5, dst)
        p.valu("v_and_b32", t0, 1, lane)
        p.valu("v_lshl_add_u32", dst, t0, 4, dst)
        p.valu("v_bfe_u32", t0, lane, 1, 1)
        p.valu("v_lshl_add_u32", dst, t0, 3, dst)

    def prologue(self):
        p, o = self.p, self.o
        p.salu("s_cmp_ge_u32", S(2), 256)
        p.raw("s_cbranch_scc1 Lend")
        p.raw(f"s_load_dwordx16 {sLD}, s[0:1], 0")
        p.raw(f"s_load_dwordx2 {sTM}, s[0:1], 64")
        if o.get('stamps'):
            p.raw("s_memtime s[68:69]")
            p.raw("s_memrealtime s[70:71]")
        if o.get('dbgs') or o.get('x_pad'):
            p.raw("s_memrealtime s[100:101]")
        self.mark()
        tid, lane = V(119), V(118)
        t = [V(120 + i) for i in range(48)]
        p.valu("v_mov_b32", tid, V(0))
        p.valu("v_and_b32", lane, 63, V(0))
        p.valu("v_lshrrev_b32", t[0], 6, V(0))
        p.valu("v_readfirstlane_b32", sWAVE, t[0])
        p.raw(f"s_getpc_b64 {sEX}")
        p.lines.append("Lpc:")
        p.salu("s_lshr_b32", sT0, S(2), 3)
        p.salu("s_and_b32", sT0, sT0, 15)
        p.salu("s_lshl_b32", sT0, sT0, 13)
        p.valu("v_lshrrev_b32", t[2], 3, V(0))
        p.valu("v_lshl_add_u32", t[2], t[2], 7, sT0)
        p.valu("v_min_u32", t[2], "Lend-Lpc", t[2])
        if o.get('pf', 1):
            p.raw(f"global_load_dword v112, {t[2]}, {sEX}")
            p.vm_seq += 1
        p.salu("s_and_b32", sT0, S(2), 7)
        p.salu("s_lshr_b32", sT1, S(2), 3)
        p.salu("s_and_b32", sX0, sT0, 3)
        p.salu("s_lshl_b32", sX0, sX0, 2)
        p.salu("s_and_b32", sT2, sT1, 3)
        p.salu("s_add_u32", sX0, sX0, sT2)
        p.salu("s_lshr_b32", sY0, sT0, 2)
        p.salu("s_lshl_b32", sY0, sY0, 3)
        p.salu("s_lshr_b32", sT2, sT1, 2)
        p.salu("s_add_u32", sY0, sY0, sT2)
        p.salu("s_lshl_b32", sX0, sX0, 5)
        p.salu("s_lshl_b32", sY0, sY0, 5)
        p.salu("s_and_b32", sT0, sWAVE, 3)
        p.salu("s_mul_i32", sT0, sT0, 1536)
        p.salu("s_add_u32", sXM, sT0, R2)
        p.salu("s_mul_i32", sT1, sX0, 192)
        p.salu("s_add_u32", sT0, sT0, sT1)
        p.salu("s_sub_u32", sT0, sT0, 192)
        p.valu("v_lshl_add_u32", t[1], lane, 4, sT0)
        p.valu("v_add_u32", t[3], 896, t[1])
        p.valu("v_mov_b32", t[2], OOB_V)
        p.salu("s_mov_b32", sT1, ROWB)
        p.valu("v_cmp_gt_u32", "vcc", sT1, t[1])
        p.valu("v_cndmask_b32", self.vX[0], t[2], t[1], "vcc")
        p.valu("v_cmp_gt_u32", "vcc", sT1, t[3])
        p.valu("v_cndmask_b32", self.vX[1], t[2], t[3], "vcc")
        p.salu("s_mul_i32", sYB, sY0, ROWB)
        dv, di = V(126, 2), t[8]
        p.valu("v_min_u32", di, 215, tid)
        p.valu("v_lshlrev_b32", t[10], 3, di)
        p.valu("v_lshlrev_b32", self.vA[0], 4, lane)
        p.raw("s_waitcnt lgkmcnt(0)")
        self.srd(sX, sLD.sub(0, 2), X_BYTES)
        self.mark()
        p.salu("s_cmp_ge_u32", sWAVE, 4)
        p.raw("s_cbranch_scc1 Lrowb")
        p.cond_begin()
        self.srd(sDW, sLD.sub(2, 2), 1728)
        p.buf_load("buffer_load_dwordx2", dv, t[10], sDW)
        for R in range(10):
            self.row0_dma(R)
        p.raw("s_branch Lsetup")
        p.cond_end()
        p.lines.append("Lrowb:")
        p.cond_begin()
        if o.get('t0', 0):
            p.valu("v_and_b32", t[20], 7, lane)
            p.valu("v_lshlrev_b32", t[20], 7, t[20])
            p.valu("v_lshrrev_b32", t[21], 3, lane)
            p.valu("v_mul_u32_u24", t[21], ROWB, t[21])
            p.salu("s_add_u32", sT0, sT0, 896 + 64 + ROWB)
            p.valu("v_add3_u32", t[20], t[20], t[21], sT0)
            p.salu("s_mov_b32", "m0", LDS_BYTES)
            p.nop(1)
            p.raw(f"buffer_load_dword {t[20]}, {sX}, {sYB} offen lds")
        for R in range(10):
            self.row0_dma(R, 1)
        self.mark()
        self.srd(sW1, sLD.sub(4, 2), 73728)
        p.valu("v_lshrrev_b32", self.vW1g, 2, lane)
        p.valu("v_mul_u32_u24", self.vW1g, 768, self.vW1g)
        p.valu("v_and_b32", t[5], 3, lane)
        p.valu("v_lshl_add_u32", self.vW1g, t[5], 4, self.vW1g)
        tp = o.get('tp', 6)
        for u in range(6):
            self.w1_dma(u)
        if tp == 6:
            self.touch_rows(t[20], t[21])
        self.mark()
        p.raw(f"s_waitcnt vmcnt({8 if tp == 6 else 6})")
        self.mark()
        p.barrier()
        p.raw("s_setprio %d" % o.get('bp', 0))
        for u in range(6, 18):
            self.w1_dma(u)
            if u + 1 == tp:
                self.touch_rows(t[20], t[21])
        p.cond_end()
        p.lines.append("Lsetup:")
        self.mark()
        self.srd(sW2, sLD.sub(6, 2), 73728)
        self.srd(sGA, sLD.sub(8, 2), 768)
        self.srd(sBE, sLD.sub(10, 2), 768)
        self.srd(sOUT, sLD.sub(12, 2), X_BYTES)
        self.srd(sDBG, sLD.sub(14, 2), 256)
        self.srd(sWS, sTM, WS_BYTES)
        for i in range(3):
            p.valu("v_lshlrev_b32", self.vA[i], 4, lane)
            p.valu("v_add_u32", self.vA[i], W1F + 65536 * i, self.vA[i])
        p.salu("s_lshl_b32", sSTAMP, S(2), 3)
        p.salu("s_add_u32", sSTAMP, sSTAMP, sWAVE)
        p.salu("s_lshl_b32", sLNB, sSTAMP, 10)
        p.salu("s_add_u32", sLNB, sLNB, WS_LN - W1F)
        p.salu("s_mul_i32", sSTAMP, sSTAMP, 16 * o.get('stamps', 1))
        p.salu("s_add_u32", sSTAMP, sSTAMP, WS_STAMP)
        if o.get('stamps'):
            for i in range(4):
                p.valu("v_mov_b32", V(188 + i), S(68 + i))
            p.salu("s_sub_u32", sT0, sSTAMP, W1F)
            p.raw("s_mov_b64 exec, 1")
            if o.get('dbgt'):
                p.valu("v_mov_b32", V(188), 0)
                p.valu("v_not_b32", V(189), V(190))
                p.buf_store("buffer_atomic_umax", V(189), V(188), sDBG, 0, 4)
                p.buf_store("buffer_atomic_umax", V(190), V(188), sDBG, 0, 8)
            else:
                p.buf_store("buffer_store_dwordx4", V(188, 4), self.vA[0], sWS, sT0, 0)
            p.raw("s_mov_b64 exec, -1")
            self.nstamp += 1
        p.salu("s_mov_b32", sK, h2u(GK) * 0x10001)
        p.salu("s_mov_b32", sM, 0xFFF8FFF8)
        p.salu("s_mov_b32", sA, 0x3FFE)
        m, g = t[11], t[12]
        p.valu("v_and_b32", m, 15, lane)
        p.valu("v_lshrrev_b32", g, 4, lane)
        p.valu("v_and_b32", t[13], 3, m)
        p.valu("v_mul_u32_u24", t[14], 2 * RS + 16, t[13])
        p.valu("v_lshrrev_b32", t[13], 2, m)
        p.valu("v_lshl_add_u32", t[13], t[13], 1, g)
        p.valu("v_mul_u32_u24", t[13], 192, t[13])
        p.salu("s_sub_u32", sT0, sXM, R2)
        p.valu("v_add3_u32", self.vB0, t[13], t[14], sT0)
        p.valu("v_bfe_u32", t[13], m, 2, 1)
        p.valu("v_sub_u32", t[13], g, t[13])
        p.valu("v_lshrrev_b32", t[14], 3, m)
        p.valu("v_and_b32", t[15], 3, m)
        p.valu("v_lshl_add_u32", t[15], t[14], 2, t[15])
        p.valu("v_lshlrev_b32", t[16], 6, t[13])
        p.valu("v_lshl_add_u32", t[16], t[15], 3, t[16])
        p.valu("v_add_u32", t[16], DIAG + 8, t[16])
        p.valu("v_mov_b32", t[17], DIAG)
        p.valu("v_cmp_gt_u32", "vcc", 3, t[13])
        p.valu("v_cndmask_b32", t[16], t[17], t[16], "vcc")
        p.valu("v_cmp_eq_u32", "vcc", 0, t[14])
        p.valu("v_cndmask_b32", self.vC[0], t[17], t[16], "vcc")
        p.valu("v_cndmask_b32", self.vC[1], t[16], t[17], "vcc")
        p.valu("v_lshrrev_b32", t[13], 2, m)
        p.valu("v_bfe_u32", t[15], m, 1, 1)
        p.valu("v_cmp_eq_u32", "vcc", t[13], g)
        p.valu("v_cndmask_b32", t[15], 8, t[15], "vcc")
        for i in range(2):
            p.valu("v_cmp_eq_u32", sIX[i], i, t[15])
        p.valu("v_lshlrev_b32", self.vBias, 5, g)
        p.valu("v_add_u32", self.vBias, HOLE[0], self.vBias)
        p.valu("v_lshlrev_b32", self.vG, 4, g)
        n, h = t[11], t[12]
        p.valu("v_and_b32", n, 31, lane)
        p.valu("v_lshrrev_b32", h, 5, lane)
        p.valu("v_bfe_u32", t[13], n, 2, 1)
        p.valu("v_bfe_u32", t[14], n, 3, 1)
        p.valu("v_bfe_u32", t[15], n, 1, 1)
        p.valu("v_lshrrev_b32", t[16], 4, n)
        p.valu("v_lshl_add_u32", t[15], t[16], 1, t[15])
        p.valu("v_lshl_add_u32", t[15], t[14], 2, t[15])
        p.valu("v_cmp_eq_u32", "vcc", t[13], h)
        p.valu("v_cndmask_b32", t[15], 8, t[15], "vcc")
        for i in range(8):
            p.valu("v_cmp_eq_u32", sID[i], i, t[15])
        p.valu("v_and_b32", t[16], 1, n)
        p.valu("v_lshlrev_b32", t[16], 4, t[16])
        p.valu("v_mov_b32", self.vI, 0x3F80)
        p.valu("v_lshlrev_b32", self.vI, t[16], self.vI)
        p.valu("v_and_b32", t[17], 19, n)
        p.valu("v_lshl_add_u32", t[17], t[13], 3, t[17])
        p.valu("v_lshl_add_u32", t[17], t[14], 2, t[17])
        p.valu("v_lshlrev_b32", t[17], 2, t[17])
        p.valu("v_lshl_add_u32", t[17], h, 7, t[17])
        p.salu("s_mul_i32", sW2B, sWAVE, 9216)
        p.salu("s_add_u32", sPRIV, sW2B, R2)
        p.valu("v_add_u32", self.vS, sPRIV, t[17])
        p.valu("v_and_b32", t[13], 3, lane)
        p.valu("v_mul_u32_u24", t[14], 2 * ROWB, t[13])
        p.valu("v_bfe_u32", t[13], lane, 2, 2)
        p.valu("v_mul_u32_u24", t[13], 384, t[13])
        p.valu("v_add3_u32", self.vG, self.vG, t[13], t[14])
        p.salu("s_mul_i32", sT3, sX0, 192)
        p.salu("s_add_u32", sT3, sT3, sXM)
        p.salu("s_sub_u32", sT3, sT3, R2)
        p.salu("s_and_b32", sFC, sWAVE, 4)
        p.salu("s_lshl_b32", sT1, sFC, 1)
        p.salu("s_add_u32", sT1, sT1, sY0)
        for ti in range(4):
            p.salu("s_add_u32", sT0, sT1, 16 * (ti >> 1) + (ti & 1))
            p.salu("s_mul_i32", sT0, sT0, ROWB)
            p.salu("s_add_u32", sTILE[ti], sT0, sT3)
        for i in range(2):
            p.salu("s_mov_b32", sD4[0].sub(i), 0xAAAAAAAA)
            p.salu("s_mov_b32", sD4[1].sub(i), 0xCCCCCCCC)
        p.salu("s_mov_b32", sSL, 9 * RS)
        p.salu("s_mov_b32", sCNT, 200000)
        p.valu("v_mov_b32", self.vCnt, CNT)
        self.tr_addr(self.vW1r, lane, t[28], 8)
        p.salu("s_and_b32", sT0, sWAVE, 3)
        p.salu("s_lshl_b32", sT0, sT0, 10)
        p.valu("v_add_u32", self.vW1w, sT0, self.vA[0])
        p.salu("s_add_u32", sT0, sT0, W1F)
        p.valu("v_add_u32", self.vW1r, sT0, self.vW1r)
        for r in self.SQ:
            p.valu("v_mov_b32", r, 0)
        self.mark()
        p.salu("s_cmp_ge_u32", sWAVE, 4)
        p.raw("s_cbranch_scc1 Lwa")
        p.cond_begin()
        ch = [V(64 + 2 * k, 2) for k in range(5)]
        for r in (ch[0].sub(1), ch[1].sub(1), ch[2].sub(0), ch[3].sub(0), ch[4].sub(0), ch[4].sub(1)):
            p.valu("v_mov_b32", r, 0)
        p.valu("v_min_u32", t[20], 35, tid)
        p.valu("v_mul_u32_u24", t[20], 200, t[20])
        p.valu("v_add_u32", t[20], DIAG, t[20])
        p.valu("v_and_b32", t[21], 31, tid)
        p.valu("v_lshlrev_b32", t[21], 3, t[21])
        p.valu("v_bfe_u32", t[22], tid, 5, 1)
        p.valu("v_lshl_add_u32", t[21], t[22], 13, t[21])
        p.valu("v_add_u32", t[21], HOLE[0], t[21])
        p.valu("v_cmp_gt_u32", "vcc", 64, tid)
        p.valu("v_cndmask_b32", t[20], t[21], t[20], "vcc")
        p.ds_write("ds_write_b64", t[20], ch[4])
        p.valu("v_lshrrev_b32", t[20], 1, di)
        p.valu("v_mul_u32_u24", t[21], 57, t[20])
        p.valu("v_lshrrev_b32", t[21], 11, t[21])
        p.valu("v_mul_u32_u24", t[22], 171, t[20])
        p.valu("v_lshrrev_b32", t[22], 11, t[22])
        p.valu("v_mul_u32_u24", t[20], 200, t[20])
        p.valu("v_mul_u32_u24", t[22], 2400 - 64, t[22])
        p.valu("v_mul_u32_u24", t[21], 2400 - 192, t[21])
        p.valu("v_sub_u32", t[20], t[20], t[22])
        p.valu("v_add_u32", t[20], t[20], t[21])
        p.valu("v_and_b32", t[21], 1, di)
        p.valu("v_lshl_add_u32", t[20], t[21], 5, t[20])
        p.valu("v_add_u32", t[20], DIAG + 8, t[20])
        self.gelu_table()
        p.raw("s_waitcnt vmcnt(10)")
        for r in dv.regs():
            p.p_vm[r] = None
        for k in range(4):
            p.valu("v_and_b32", ch[k].sub(k >> 1), (0xFFFF, 0xFFFF0000)[k & 1], dv.sub(k >> 1))
        if o.get('sm', 1):
            p.valu("v_and_b32", t[21], 1, di)
            p.valu("v_cmp_gt_u32", "vcc", 72, di)
            p.valu("v_mov_b32", t[22], 2)
            p.valu("v_cndmask_b32", t[21], t[21], t[22], "vcc")
            for k in range(4):
                w = t[23]
                if k & 1:
                    p.valu("v_lshrrev_b32", w, 16, dv.sub(k >> 1))
                else:
                    p.valu("v_and_b32", w, 0xFFFF, dv.sub(k >> 1))
                for d_ in range(2):
                    p.valu("v_cmp_eq_u32", "vcc", d_, t[21])
                    p.valu("v_cndmask_b32", ch[k].sub(d_), ch[k].sub(d_), w, "vcc")
                    p.valu("v_cmp_ne_u32", "vcc", 1 - d_, t[21])
                    p.valu("v_cndmask_b32", ch[k].sub(d_), 0, ch[k].sub(d_), "vcc")
        for k in range(4):
            p.ds_write("ds_write_b64", t[20], ch[k], 8 * k)
        self.mark()
        p.raw("s_waitcnt vmcnt(0) lgkmcnt(0)")
        self.mark()
        p.barrier()
        p.cond_end()
        p.lines.append("Lwa:")
        p.vm_done, p.lgkm_done = p.vm_seq, p.lgkm_seq
        self.mark()
        self.stamp(188)
        self.stamp(188)

    def gelu_table(self):
        p = self.p
        tid, t = V(119), [V(120 + i) for i in range(4)]
        y = [V(i) for i in range(32)]
        e = [V(32 + i) for i in range(32)]
        p.valu("v_and_b32", t[0], 255, tid)
        p.valu("v_lshlrev_b32", t[1], 8, t[0])
        for i in range(32):
            p.valu("v_add_u32", y[i], 8 * i + 4, t[1])
            p.valu("v_cvt_f32_f16", y[i], y[i])
        for i in range(32):
            p.valu("v_fmaak_f32", e[i], y[i], y[i], hex(f2u(GK)))
            p.valu("v_mul_f32", e[i], y[i], e[i])
        for i in range(32):
            p.valu("v_exp_f32", e[i], e[i])
        for i in range(32):
            p.valu("v_add_f32", e[i], "1.0", e[i])
        for i in range(32):
            p.valu("v_rcp_f32", e[i], e[i])
        for i in range(32):
            p.valu("v_mul_f32", y[i], y[i], e[i])
        for i in range(16):
            p.valu("v_cvt_pk_f16_f32", e[i], y[2 * i], y[2 * i + 1])
        tl = self.o.get('tl', 2)
        if tl:
            for i in range(16):
                p.valu("v_add_u32", e[i], (1 << tl >> 1) * 0x10001, e[i])
                p.valu("v_and_b32", e[i], (0xFFFF >> tl << tl) * 0x10001, e[i])
        p.valu("v_lshlrev_b32", t[1], 6, t[0])
        p.valu("v_bfe_u32", t[0], t[0], 2, 5)
        p.valu("v_cmp_ne_u32", "vcc", 31, t[0])
        p.raw(f"s_and_saveexec_b64 {sEX}, vcc")
        for i in range(4):
            p.ds_write("ds_write_b128", t[1], V(32 + 4 * i, 4), 16 * i)
        p.raw(f"s_mov_b64 exec, {sEX}")

    def sentinels(self):
        p = self.p
        t = [V(100 + i) for i in range(6)]
        sv = V(108, 4)
        p.salu("s_cmp_lg_u32", sWAVE, 7)
        p.raw("s_cbranch_scc1 Lnosent")
        p.cond_begin()
        lane = t[4]
        self.lane(lane)
        for i in range(4):
            p.valu("v_mov_b32", sv.sub(i), -1)
        p.valu("v_lshlrev_b32", t[0], 12, lane)
        p.valu("v_add_u32", t[1], 64 * 4096, t[0])
        p.valu("v_cmp_gt_u32", "vcc", 32, lane)
        p.valu("v_mov_b32", t[5], OOB_V)
        p.valu("v_cndmask_b32", t[1], t[5], t[1], "vcc")
        p.salu("s_lshl_b32", sT0, S(2), 4)
        p.raw(f"buffer_store_dwordx4 {sv}, {t[0]}, {sWS}, {sT0} offen sc1")
        p.raw(f"buffer_store_dwordx4 {sv}, {t[1]}, {sWS}, {sT0} offen sc1")
        p.salu("s_add_u32", sT0, sT0, WS_TOT)
        p.salu("s_cmp_lt_u32", S(2), 96)
        p.salu("s_cselect_b32", sT0, sT0, OOB_S)
        p.valu("v_lshlrev_b32", t[3], 11, lane)
        p.raw("s_mov_b64 exec, 0xff")
        p.raw(f"buffer_store_dwordx4 {sv}, {t[3]}, {sWS}, {sT0} offen sc1")
        p.raw("s_mov_b64 exec, -1")
        p.nop(2)
        p.cond_end()
        p.lines.append("Lnosent:")

    def init_counter(self):
        p = self.p
        p.salu("s_cmp_lg_u32", sWAVE, 7)
        p.raw("s_cbranch_scc1 Lnoinit")
        p.cond_begin()
        p.raw("s_waitcnt vmcnt(0)")
        p.raw(f"v_mov_b32 {self.tq.sub(0)}, 1")
        p.raw(f"v_mov_b32 {self.tq.sub(1)}, 0")
        p.raw("s_mov_b64 exec, 1")
        p.raw(f"buffer_atomic_add {self.tq.sub(0)}, {self.tq.sub(1)}, {sDBG}, 0 offen")
        p.raw("s_mov_b64 exec, -1")
        p.nop(2)
        p.cond_end()
        p.lines.append("Lnoinit:")

    def stats(self, s, t, ti, cb):
        acc = self.CA[ti].sub(4 * cb, 4)
        s2, q2 = self.ls[ti & 1][:2]
        if self.o.get('lnpk', 1):
            for k in range(2):
                c2 = acc.sub(2 * k, 2)
                if cb == 0 and k == 0:
                    last = [self.CA[ti | 1].sub(44, 4)]
                    s.valu(t, "v_pk_mul_f32", q2, c2, c2, rd=last)
                    s.valu(t, "v_pk_add_f32", s2, c2, acc.sub(2, 2), rd=last)
                else:
                    s.valu(t, "v_pk_fma_f32", q2, c2, c2, q2)
                    if cb:
                        s.valu(t, "v_pk_add_f32", s2, s2, c2)
            return
        for k in range(4):
            c, sa, qa = acc.sub(k), s2.sub(k & 1), q2.sub(k & 1)
            if cb == 0 and k < 2:
                s.valu(t, "v_mul_f32", qa, c, c)
                s.valu(t, "v_add_f32", sa, c, acc.sub(k + 2))
            else:
                s.valu(t, "v_fmac_f32", qa, c, c, rmw=True)
                if cb:
                    s.valu(t, "v_add_f32", sa, sa, c)

    def conv(self, s, blk, t0, t1, rd=(), wr=()):
        dt = (t1 - t0) / 72
        mode, s.mode = s.mode, self.o.get('dsc', 1)
        late = self.o.get('late', 1)
        for cb in range(12):
            t = t0 + 6 * cb * dt
            F = []
            for k in range(4):
                F.append(self.ring(self.ringB))
                s.ds_read(t + (k - 7) * dt, "ds_read_b128", F[k], self.vB[k], cb * 16, rd=rd)
            for dy in range(3):
                a = self.ring(self.ringA)
                sparse = dy and self.o.get('sm', 1)
                if sparse:
                    s.ds_read(t + (2 * dy - 7) * dt, "ds_read_b64", a.sub(0, 2), V(240), (dy * 12 + cb) * 200)
                for k in range(0 if sparse else 2):
                    s.ds_read(t + (2 * dy - 7) * dt, "ds_read_b64", a.sub(2 * k, 2), self.vC[k], (dy * 12 + cb) * 200)
                for par in range(2):
                    acc = self.CA[2 * blk + par].sub(4 * cb, 4)
                    if sparse:
                        s.mfma(t + (2 * dy + par) * dt, acc, a.sub(0, 2), F[dy + par], acc, V(241), rd=wr)
                    else:
                        s.mfma(t + (2 * dy + par) * dt, acc, a, F[dy + par], acc if dy else 0, rd=wr)
            if not late:
                for par in range(2):
                    self.stats(s, t + (9 + 3 * par) * dt, 2 * blk + par, cb)
        s.mode = mode
        if late:
            for cb in range(12):
                for par in range(2):
                    self.stats(s, t1 + 0.01, 2 * blk + par, cb)

    def ln(self, s, ti, t0, t1):
        C, D, ls, pk = self.CA[ti], self.LN[ti], self.ls[ti & 1], self.o.get('lnpk', 1)
        a, a1, q, q1, rs, off = [ls[i // 2].sub(i % 2) for i in range(6)]
        ts = t0 - (t1 - t0) * (ti & 1)
        s.valu(ts, "v_add_f32", a, a, a1)
        s.valu(ts, "v_add_f32", q, q, q1)
        s.swap(ts, 32, a, q)
        s.valu(ts, "v_add_f32", a, a, q)
        s.valu(ts, "v_mul_f32", a, f2u(1.0 / 96), a)
        s.valu(ts, "v_mov_b32", q, a)
        s.swap(ts, 32, a, q)
        s.valu(ts, "v_fma_f32", q, f"-{a}", a, q, rd=[a])
        s.valu(ts, "v_max_f32", q, 0, q)
        s.valu(ts, "v_add_f32", q, f2u(1e-5), q)
        s.valu(ts, "v_rsq_f32", q, q)
        s.valu(ts, "v_mul_f32", rs, f2u(GA), q)
        if pk:
            s.valu(ts, "v_mul_f32", off, f2u(GA), q)
            s.valu(ts, "v_mul_f32", q, a, rs)
            s.valu(ts, "v_mul_f32", q1, a, rs)
        else:
            s.valu(ts, "v_mul_f32", off, a, rs)
        for i in range(24):
            t = t0 + (t1 - t0) * i / 24
            if pk:
                s.valu(t, "v_pk_fma_f32", C.sub(2 * i, 2), C.sub(2 * i, 2), ls[2], ls[1], mods="neg_lo:[0,0,1] neg_hi:[0,0,1]")
            else:
                for k in range(2):
                    s.valu(t, "v_fma_f32", C.sub(2 * i + k), C.sub(2 * i + k), rs, f"-{off}", rd=[off])
            s.valu(t, "v_cvt_pk_bf16_f32", D.sub(i), C.sub(2 * i), C.sub(2 * i + 1))

    def gemm1(self, s, t0, j, ln, y, pixel_lane, ringW, span=1.0, rd=()):
        for s6 in range(6):
            t = t0 + span * s6 / 6
            w = self.ring(ringW)
            a, off = self.frag(j * 6 + s6)
            s.ds_read(t - self.o.get('lead', 0.8), "ds_read_b128", w, a, off, rd=rd)
            b = ln.sub(4 * s6, 4)
            if pixel_lane:
                s.mfma(t, y, w, b, y if s6 else 0)
            else:
                s.mfma(t, y, b, w, y if s6 else 0)

    def gelu32(self, s, t0, y, nl, blk, acc=None, idk=None):
        self.gelu(s, t0, y, nl, dst=[blk.sub(i) for i in (0, 1, 4, 5, 2, 3, 6, 7)])
        t = t0 + self.o.get('fin', 0.9) + self.o.get('lw', 0.55)
        if acc is not None:
            for q in range(2):
                s.mfma(t + 0.1 * q, y, blk.sub(4 * q, 4), idk.sub(4 * q, 4), y if q else 0, 'f16')
            for i in range(16):
                s.valu(t + 0.35 + 0.02 * i, "v_fmac_f32", acc, y.sub(i), y.sub(i), rmw=True)
            t += 0.15
        for i in range(4):
            s.swap(t, 16, blk.sub(i), blk.sub(4 + i))
        return t

    def gelu(self, s, t0, y, nl, acc=None, dst=None, span=1.0):
        o = self.o
        if isinstance(y, V):
            y = [y.sub(2 * i, 2) for i in range(8)]
        lw, fin = o.get('lw', 0.55) * span, o.get('fin', 0.9)
        mixlo, mixhi = "op_sel_hi:[1,1,0]", "op_sel:[1,1,0] op_sel_hi:[1,1,0]"
        assert nl % 2 == 0
        for i in range(0, nl, 2):
            assert y[i + 1].b == y[i].b + 2
            q = V(y[i].b, 4)
            t = t0 + lw * i / nl
            for k in range(2):
                s.valu(t, "v_cvt_pkrtz_f16_f32", q.sub(k), q.sub(2 * k), q.sub(2 * k + 1))
            s.valu(t, "v_lshrrev_b64", q.sub(0, 2), 2, q.sub(0, 2))
            for k in range(2):
                s.valu(t, "v_and_b32_sdwa", q.sub(2 + k), sA, q.sub(k), mods="dst_sel:DWORD dst_unused:UNUSED_PAD src0_sel:DWORD src1_sel:WORD_1")
                s.valu(t, "v_and_b32", q.sub(k), sA, q.sub(k))
                s.ds_read(t, "ds_read_u16" if dst is None else "ds_read_u16_d16_hi", q.sub(2 + k), q.sub(2 + k))
                s.ds_read(t, "ds_read_u16", q.sub(k), q.sub(k))
                t += lw / nl
        nt = len(y) - nl
        w = [4, 4, 4, 8, 8, 4, 8, 8, 4] + ([4, 4] if dst is None else [])
        cum = [sum(w[:k]) / sum(w) for k in range(len(w) + 1)]
        for k in range(len(w)):
            for i in range(nl, len(y)):
                u, e = y[i].sub(0), y[i].sub(1)
                t = t0 + cum[k] + (cum[k + 1] - cum[k]) * (i - nl) / nt
                if k == 0:
                    s.valu(t, "v_cvt_pk_f16_f32", u, u, e)
                elif k == 1:
                    s.valu(t, "v_pk_fma_f16", e, u, u, sK)
                elif k == 2:
                    s.valu(t, "v_pk_mul_f16", e, u, e)
                elif k in (3, 4):
                    s.valu(t, "v_exp_f16_sdwa", e, e, mods=(LO, HI)[k - 3])
                elif k == 5:
                    s.valu(t, "v_pk_add_f16", e, e, "1.0", mods="op_sel_hi:[1,0]")
                elif k in (6, 7):
                    s.valu(t, "v_rcp_f16_sdwa", e, e, mods=(LO, HI)[k - 6])
                elif k == 8:
                    s.valu(t, "v_pk_mul_f16", u if dst is None else dst[i], u, e)
                else:
                    s.valu(t, "v_fma_mix_f32", acc, u, u, acc, mods=(mixlo, mixhi)[k - 9])
        for i in range(nl):
            a0, a1 = y[i].sub(0), y[i].sub(1)
            t = t0 + fin + lw * i / nl
            if dst is None:
                for a in (a0, a1):
                    s.valu(t, "v_fma_mix_f32", acc, a, a, acc, mods=mixlo)
            elif i % 2:
                assert dst[i].b == dst[i - 1].b + 1
                s.valu(t, "v_lshl_add_u64", V(dst[i - 1].b, 2), y[i - 1], 0, y[i])

    def pattern(self, key, default):
        return [int(c) for c in str(self.o.get(key, default))]

    def ws_frag(self, f, fn):
        p = self.p
        if f == 0:
            return fn(sLNB)
        p.salu("s_add_u32", sT3, sLNB, f * self.o.get('fst', 1 << 21))
        return fn(sT3)

    def prio_steps(self, s, t0, t1, key='pp'):
        n = 4 * max(1, round((t1 - t0) / self.o.get(key, self.o.get('pp', 2.0))))
        for k in range(n):
            s.misc(t0 + (t1 - t0) * k / n, lambda k=k: self.p.raw(f"s_setprio {3 - k % 4}"), rd=['@bar'] if k == 0 else [], wr=['@prio'])

    def w1_transform(self, us, fr):
        p = self.p
        a, b = V(113), V(114)
        p.valu("v_add_u32", a, 65536, self.vW1r)
        p.valu("v_add_u32", b, 65536, self.vW1w)
        for k, u in enumerate(us):
            for i in range(2):
                p.ds_read("ds_read_b64_tr_b16", fr[k].sub(2 * i, 2), self.vW1r if u < 16 else a, (u % 16) * 4096 + i * 512)
        for k, u in enumerate(us):
            p.ds_write("ds_write_b128", self.vW1w if u < 16 else b, fr[k], (u % 16) * 4096)

    def code_pf(self, s, times):
        p = self.p

        def one():
            k = self.ncpf = getattr(self, 'ncpf', 0) + 1
            p.raw(f"s_getpc_b64 {sEX}")
            p.lines.append(f"Lcq{k}:")
            p.salu("s_lshl_b32", sT0, sWAVE, 10)
            p.salu("s_add_u32", sT0, sT0, self.o.get('cpd', 6144))
            p.salu("s_min_u32", sT0, sT0, f"Lend-Lcq{k}-1024")
            p.salu("s_add_u32", sEX.sub(0), sEX.sub(0), sT0)
            p.salu("s_addc_u32", sEX.sub(1), sEX.sub(1), 0)
            p.salu("s_sub_u32", sEX.sub(0), sEX.sub(0), W1F)
            p.salu("s_subb_u32", sEX.sub(1), sEX.sub(1), 0)
            p.salu("s_mov_b32", "m0", LDS_BYTES)
            p.nop(1)
            p.raw(f"global_load_lds_dword {self.vA[0]}, {sEX}")
            p.vm_seq += 1
        if self.o.get('cpf', 0):
            for t in times:
                s.misc(t, one)

    def setprio(self, s, t, lv):
        s.misc(t, lambda: self.p.raw(f"s_setprio {lv}"), wr=['@prio'])

    def phase1(self):
        p, o = self.p, self.o
        p.salu("s_cmp_lt_u32", sWAVE, 4)
        p.raw("s_cbranch_scc1 Lsu1")
        p.cond_begin()
        p.raw("s_waitcnt vmcnt(%d)" % (14 if o.get('tp', 6) <= 18 else 12))
        self.mark()
        self.w1_transform(range(6), [V(4 * u, 4) for u in range(6)])
        self.signal(C_W1A)
        self.mark()
        if o.get('x_fast'):
            self.skip_round()
            p.raw("s_waitcnt vmcnt(0)")
        else:
            self.await_(C_F, 4)
            self.mark()
            for R in range(2, 10):
                self.row_dma(R)
        self.mark()
        p.raw("s_waitcnt vmcnt(16)")
        self.mark()
        self.w1_transform(range(6, 18), [V(4 * u, 4) for u in range(12)])
        self.signal(C_W1B)
        self.mark()
        p.cond_end()
        self.sentinels()
        p.raw("s_setprio 3")
        p.raw("s_waitcnt vmcnt(0)")
        self.init_counter()
        self.mark()
        p.lines.append("Lsu1:")
        p.vm_done, p.lgkm_done = p.vm_seq, p.lgkm_seq
        self.stamp(188)
        s = self.s = Sched(p, o)
        nl = self.pattern('nl1', '6')
        L, cl = o.get('cl', 4.0), o.get('cc', 2.6)
        Y, ny = self.Y1, len(self.Y1)
        u = [None, V(237), V(244), V(245)]
        tq2 = V(238, 2)
        tmp = [V(48, 8), V(56, 8)]
        m0, m1 = o.get('m0', 0.0), o.get('m1', 2.0)

        def w2_addr():
            self.lane(u[1])
            p.valu("v_lshrrev_b32", self.vW2, 2, u[1])
            p.valu("v_mul_u32_u24", self.vW2, 192, self.vW2)
            p.valu("v_and_b32", u[1], 3, u[1])
            p.valu("v_lshl_add_u32", self.vW2, u[1], 4, self.vW2)

        def init_check():
            p.salu("s_cmp_lg_u32", sWAVE, 0)
            p.raw("s_cbranch_scc1 Lpix")
            p.cond_begin()
            p.raw(f"v_and_b32 {u[2]}, 0x3ff, {self.vA[0]}")
            p.raw(f"buffer_load_dword {u[3]}, {u[2]}, {sBE}, 0 offen")
            p.raw(f"buffer_load_dword {u[3]}, {u[2]}, {sGA}, 0 offen")
            p.raw(f"v_mov_b32 {u[2]}, 0")
            p.lines.append("Lpi:")
            p.raw(f"buffer_load_dword {u[3]}, {u[2]}, {sDBG}, 0 offen sc1")
            p.raw("s_waitcnt vmcnt(0)")
            p.raw(f"v_readfirstlane_b32 {sT0}, {u[3]}")
            self.spin_guard("Lpix")
            p.salu("s_cmp_lt_u32", sT0, 256)
            p.raw("s_cbranch_scc1 Lpi")
            p.cond_end()
            p.lines.append("Lpix:")

        def flush(t, j):
            s.swap(t, 32, self.SQ[j], self.SQ[j + 1])
            s.valu(t, "v_add_f32", self.SQ[j], self.SQ[j], self.SQ[j + 1])
            s.ds_write(t, "ds_write_b32", self.vS, self.SQ[j], TABO + j * 128 + (3072 - 768) * (j >= 6), rd=['@ring', '@sums'])

        for blk in range(2):
            t0 = blk * (24 + L + o.get('cd', 0.7))
            s.misc(t0 - 0.5, self.conv_addr, rd=[self.vB0, '@dma'], wr=self.vB + [self.tq, V(240, 2)], cost=100)
            if blk:
                s.misc(t0 - 0.3, lambda: p.wait(vm=self.x_tok), rd=['@dma'], wr=['@rows'])
            self.conv(s, blk, t0, t0 + cl, rd=['@rows'], wr=['@cdone'])
            s.misc(t0 + cl, lambda blk=blk: self.signal(C_F + 8 * blk, True), wr=['@cdone', self.tq], cost=8)
            h = (L - cl) / 2
            self.ln(s, 2 * blk, t0 + cl + 0.02, t0 + cl + h)
            self.ln(s, 2 * blk + 1, t0 + cl + h, t0 + L)
            t0 += L
            if blk == 0:
                s.misc(t0 - 1.0, lambda: self.await_(C_W1A, 4), wr=['@w1', self.tq], cost=40)
                if o.get('stamps'):
                    s.misc(t0, lambda: self.stamp(192), wr=[V(192, 4)])
            if blk:
                Y = [Y[1], Y[2], Y[0], Y[3], Y[4]]
            idk = V((64, 216)[blk], 8)
            if self.keep if blk else self.spi:
                for m in range(8):
                    s.valu(t0, "v_cndmask_b32", idk.sub(m), 0, self.vI, sID[m])
                    s.valu(t0, "v_and_b32", idk.sub(m), 0x3C003C00, idk.sub(m))
            for j in range(12):
                t = t0 + 2 * j
                e = 24 * blk + 2 * j
                held = [(2 * blk + par, j) in self.spi or (blk and par and j in self.keep) for par in range(2)]
                if blk == 0 and j == 4:
                    s.misc(t - 1.2, lambda: self.await_(C_W1B, 4), wr=['@w1', self.tq], cost=40)
                for s6 in range(6):
                    tt = t + m0 + (m1 - m0) * s6 / 6
                    w = self.ring(self.ring1)
                    s.ds_read(tt - o.get('lead', 0.8), "ds_read_b128", w, *self.frag(j * 6 + s6), rd=['@w1'])
                    for par in range(2):
                        y = Y[(e + par + 4) % ny]
                        ab = (self.LN[2 * blk + par].sub(4 * s6, 4), w)
                        s.mfma(tt + par * (m1 - m0) / 12, y, *(ab[::-1] if held[par] else ab), y if s6 else 0)
                if blk == 1 and j == 8:
                    d0 = t0 + o.get('w0', 16.0)
                    s.misc(d0, lambda: (self.await_(C_F + 12, 4, tq=tq2), w2_addr()), rd=[self.vA[0]],
                           wr=[self.vW2, u[1], tq2, '@ring'], cost=60)
                    for k, f in enumerate((0, 1, 2, 3, 4, 6, 7)):
                        s.vmem(d0 + 0.3 + 0.5 * k, lambda f=f: self.w2_fetch(f, self.vW2), rd=[self.vW2], wr=['@w2raw'], lat=0)
                    s.misc(d0 + 4, lambda: setattr(self, 'w2_tok0', self.w2_tok), rd=['@w2raw'], wr=['@w2t0'], cost=0)
                    for k in range(0, 8, 2):
                        flush(d0, k)
                if blk == 1 and j == 11:
                    flush(t + 1, 8)
                for par in ((1, 0) if e == 46 else (0, 1)):
                    tg, y, n = t + m1 + (par ^ (e == 46)) + o.get('g0', 0.1), Y[(e + par + 4) % ny], nl[(e + par) % len(nl)]
                    if not held[par]:
                        self.gelu(s, tg, y, n, acc=self.SQ[j])
                        continue
                    bl = self.blk3[j] if blk else self.ring(tmp)
                    te = self.gelu32(s, tg, y, n, bl, self.SQ[j], idk)
                    for q in range(0 if blk else 2):
                        s.vmem(te + 0.2 + 0.4 * q, lambda q=q, bl=bl, f=self.spi[par, j]: self.ws_frag(f + q, lambda so: p.buf_store(
                            "buffer_store_dwordx4", bl.sub(4 * q, 4), self.vA[0], sWS, so, flags=o.get('ssf', 'sc1'))), rd=[bl.sub(4 * q, 4)], lat=0)
                if blk == 0 and j == o.get('ls', 6):
                    for k in range(6):
                        s.vmem(t + o.get('lg', 1.2) * k, lambda k=k: self.ws_frag(k, lambda so: p.buf_store(
                            "buffer_store_dwordx4", self.LN[0].sub(4 * k, 4), self.vA[0], sWS, so, flags=o.get('ssf', 'sc1'))), rd=[self.LN[0].sub(4 * k, 4)], lat=0)
                if blk == 0 and j == 6 and o.get('dbg'):
                    for k in range(6):
                        s.vmem(t + 0.7 * k, lambda k=k: self.ws_frag(6 + k, lambda so: p.buf_store(
                            "buffer_store_dwordx4", self.LN[1].sub(4 * k, 4), self.vA[0], sWS, so)), rd=[self.LN[1].sub(4 * k, 4)], lat=0)
                if blk == 0 and j == 5:
                    s.misc(t + 1, lambda: (self.skip_round(), self.touch_rows(self.tq.sub(0), self.tq.sub(1))), wr=[self.tq, '@dma'], cost=24)
                if blk == 0 and j == 9:
                    d0 = t0 + o.get('d0', 19.0)
                    s.misc(d0, lambda: self.await_(C_F + 4, 4, True), wr=[self.tq, '@dma'], cost=40)
                    for R in range(2, 10):
                        s.vmem(d0 + o.get('dspan', 2.5) * (R - 2) / 8, lambda R=R: self.row_dma(R), rd=self.vX, wr=['@dma'], lat=0)
                if blk == 1 and j == 5:
                    s.misc(t, init_check, wr=u[2:])
                if blk == 1 and j == 3 and o.get('nt0', 0):
                    s.misc(t, lambda: self.touch_x(u[2], u[3]), wr=u[2:], cost=24)
        end = 48 + 2 * L + m1 + o.get('cd', 0.7)
        self.setprio(s, L + o.get('la', 7), 3)
        s.misc(24 + 2 * L + o.get('cd', 0.7), lambda: self.call_if(True, ["s_setprio 2"], "Lbk"), wr=['@prio'])
        self.setprio(s, end - o.get('q0', 3.0), 1)
        self.code_pf(s, [6, 16, 26, 30, 38, 48, 56])
        self.fine(s, range(0, 60), 'p1')
        self.T1 = end - m1
        flush(end, 10)
        t = [None, V(238), V(239), V(237), V(244), V(245)]
        pv = [V(128, 8), V(136, 8), V(112, 8), V(120, 8), V(216, 8)]

        def pub_addr():
            self.lane(t[3])
            p.valu("v_min_u32", t[3], 47, t[3])
            p.valu("v_lshlrev_b32", t[4], 5, t[3])
            p.valu("v_add_u32", t[4], R2 + TABO, t[4])
            p.valu("v_add_u32", t[5], 3072 - 768, t[4])
            p.valu("v_cmp_gt_u32", "vcc", 24, t[3])
            p.valu("v_cndmask_b32", t[4], t[5], t[4], "vcc")
            p.valu("v_lshlrev_b32", t[3], 13, t[3])
            p.valu("v_add_u32", t[5], 4096, t[3])
        s.misc(end - 4, pub_addr, wr=t[3:], cost=40)

        def publish():
            p.raw("s_setprio 3")
            self.ticket(t, 0, "Lnopub", pv)

            def rd(w, d):
                for k in range(2):
                    p.ds_read("ds_read_b128", d.sub(4 * k, 4), t[4], 9216 * w + 16 * k)

            def add(d, b):
                for i in range(8):
                    p.valu("v_add_f32", d.sub(i), d.sub(i), b.sub(i))
            for w in range(5):
                rd(w, pv[w])
            for w in range(1, 4):
                add(pv[0], pv[w])
                rd(4 + w, pv[w])
            for w in (4, 1, 2, 3):
                add(pv[0], pv[w])
            for i in range(8):
                p.valu("v_min_u32", pv[4].sub(i), -2, pv[0].sub(i))
            p.salu("s_lshl_b32", sT0, S(2), 4)
            p.buf_store("buffer_store_dwordx4", pv[4].sub(0, 4), t[3], sWS, sT0, flags="sc1")
            p.buf_store("buffer_store_dwordx4", pv[4].sub(4, 4), t[5], sWS, sT0, flags="sc1")
            p.ds_write("ds_write_b32", self.vCnt, t[1], C_PUB)
            p.raw("s_waitcnt lgkmcnt(0)")
            p.nop(2)
            p.cond_end()
            p.lines.append("Lnopub:")
            self.stamp(128)
        s.misc(end, publish, wr=t[1:] + pv + ['@sums', '@prio'], cost=60)

    def ticket(self, t, cnt, label, regs):
        p = self.p
        p.valu("v_mov_b32", t[1], 1)
        p.wait_all(vm=False)
        p.raw("s_mov_b64 exec, 1")
        p.raw(f"ds_add_rtn_u32 {t[2]}, {self.vCnt}, {t[1]} offset:{cnt}")
        p.raw("s_mov_b64 exec, -1")
        for v in regs:
            p._mem_issue([], list(v.regs()))
        p.raw("s_waitcnt lgkmcnt(0)")
        p.lgkm_seq += 1
        p.lgkm_done = p.lgkm_seq
        p.valu("v_readfirstlane_b32", sT0, t[2])
        p.salu("s_cmp_lg_u32", sT0, 7)
        p.raw(f"s_cbranch_scc1 {label}")
        p.cond_begin()

    def w2_fetch(self, f, addr):
        p = self.p
        k, T = divmod(f, 3)
        p.salu("s_add_u32", "m0", sPRIV, f * 1024)
        p.salu("s_add_u32", sT0, sW2B, k * 3072 + T * 64)
        self.w2_tok = p.dma(addr, sW2, sT0)

    def touch_x(self, a, b):
        p = self.p
        self.lane(b)
        p.valu("v_and_b32", a, 15, b)
        p.valu("v_min_u32", a, 11, a)
        p.valu("v_lshlrev_b32", a, 7, a)
        p.valu("v_lshrrev_b32", b, 4, b)
        p.valu("v_mul_u32_u24", b, 2 * ROWB, b)
        p.valu("v_add_u32", a, a, b)
        p.salu("s_mov_b32", "m0", LDS_BYTES)
        p.salu("s_cmp_lt_u32", sWAVE, 4)
        p.raw("s_cbranch_scc0 Lnotouch")
        p.cond_begin()
        for ti in range(2):
            p.raw(f"buffer_load_dword {a}, {sX}, {sTILE[ti]} offen lds")
            p.vm_seq += 1
        p.cond_end()
        p.lines.append("Lnotouch:")

    def poll_regs(self):
        rv = [V(128 + 4 * i, 4) for i in range(4)]
        tv = [V(128 + i) for i in range(6)]
        gv = [V(134 + i) for i in range(6)]
        t = [V(240 + i) for i in range(6)]
        return rv, tv, gv, t

    def poll_loads(self, p, reducer):
        rv, tv, gv, t = self.poll_regs()
        if reducer:
            p.salu("s_lshl_b32", sT1, S(2), 12)
            for i in range(4):
                p.buf_load("buffer_load_dwordx4", rv[i], t[5], sWS, sT1, 1024 * i, flags="sc1")
        else:
            p.salu("s_and_b32", sT1, S(2), 7)
            p.salu("s_lshl_b32", sT1, sT1, 11)
            p.salu("s_add_u32", sT1, sT1, WS_TOT)
            for i in range(3):
                p.buf_load("buffer_load_dwordx2", V(tv[2 * i].b, 2), t[0], sWS, sT1, 8 * i, flags="sc1")

    def gamma_loads(self, p):
        rv, tv, gv, t = self.poll_regs()
        p.valu("v_lshrrev_b32", t[1], 1, t[0])
        for i in range(3):
            p.buf_load("buffer_load_dword", gv[2 * i + 1], t[1], sGA, 0, 4 * i)

    def poll_routine(self):
        main, self.p = self.p, Prog()
        p = self.p
        rv, tv, gv, t = self.poll_regs()
        ret = f"s_setpc_b64 {sRET}"
        p.lines.append("Lpolln:")
        p.raw(f"s_getreg_b32 {sT0}, hwreg(HW_REG_IB_STS, 0, 4)")
        p.salu("s_cmp_eq_u32", sT0, 0)
        p.raw("s_cbranch_scc1 Lpoll")
        p.raw(ret)
        p.lines.append("Lpoll:")
        p.raw("s_waitcnt vmcnt(0)")
        p.salu("s_mov_b32", sVM, 1)
        p.salu("s_cmp_eq_u32", sROLE, 2)
        p.raw("s_cbranch_scc1 LpollC")
        allr = [rv[i].sub(k) for i in range(4) for k in range(4)]
        p.valu("v_max_u32", t[1], allr[0], allr[1])
        for i in range(2, 16, 2):
            p.valu("v_max3_u32", t[1], t[1], allr[i], allr[i + 1])
        p.valu("v_cmp_eq_u32", "vcc", -1, t[1])
        p.nop(5)
        p.raw("s_cbranch_vccz LpollR")
        self.poll_loads(p, True)
        p.raw(ret)
        self.p = p2 = Prog()
        p2.lines.append("LpollR:")
        for k in range(4):
            p2.valu("v_add_f32", rv[0].sub(k), rv[0].sub(k), rv[1].sub(k))
            p2.valu("v_add_f32", rv[3].sub(k), rv[2].sub(k), rv[3].sub(k))
            p2.valu("v_add_f32", rv[3].sub(k), rv[0].sub(k), rv[3].sub(k))
        r = [rv[3].sub(k) for k in range(4)]
        p2.swap32(r[0], r[1])
        p2.swap32(r[2], r[3])
        p2.valu("v_add_f32", r[0], r[0], r[1])
        p2.valu("v_add_f32", r[2], r[2], r[3])
        p2.valu("v_bfe_u32", t[1], t[5], 4, 4)
        p2.valu("v_lshlrev_b32", t[1], 11, t[1])
        p2.swap16(r[0], r[2])
        p2.valu("v_add_f32", r[0], r[0], r[2])
        fill = [lambda: p2.valu("v_bfe_u32", t[2], t[5], 8, 1), lambda: p2.valu("v_lshl_add_u32", t[1], t[2], 3, t[1]),
                lambda: p2.valu("v_bfe_u32", t[2], t[5], 9, 1), lambda: p2.valu("v_lshl_add_u32", t[1], t[2], 2, t[1]),
                lambda: p2.salu("s_lshl_b32", sT1, S(2), 4), lambda: p2.salu("s_add_u32", sT1, sT1, WS_TOT),
                lambda: p2.salu("s_mov_b32", sT0, f2u(1.0 / (GA * GA))), lambda: p2.valu("v_mov_b32", t[2], f2u(1e-6))]
        for k in (8, 4, 2, 1):
            fill.pop(0)()
            fill.pop(0)()
            p2.valu("v_add_f32_dpp", r[0], r[0], r[0], mods=f"row_ror:{k} row_mask:0xf bank_mask:0xf")
        p2.valu("v_fma_f32", r[0], r[0], sT0, t[2])
        p2.valu("v_sqrt_f32", r[0], r[0])
        p2.salu("s_mov_b32", "exec_lo", 0x00FF00FF)
        p2.salu("s_mov_b32", "exec_hi", 0x00FF00FF)
        p2.valu("v_min_u32", r[0], -2, r[0])
        p2.buf_store("buffer_store_dword", r[0], t[1], sWS, sT1, flags="sc1")
        p2.raw("s_mov_b64 exec, -1")
        p2.salu("s_mov_b32", sROLE, 2)
        self.poll_loads(p2, False)
        self.gamma_loads(p2)
        p2.raw(ret)
        self.p = p3 = Prog()
        p3.lines.append("LpollC:")
        p3.valu("v_max3_u32", t[1], tv[0], tv[1], tv[2])
        p3.valu("v_max3_u32", t[1], t[1], tv[3], tv[4])
        p3.valu("v_max_u32", t[1], t[1], tv[5])
        p3.valu("v_cmp_eq_u32", "vcc", -1, t[1])
        p3.nop(5)
        p3.raw("s_cbranch_vccz LpollS")
        self.poll_loads(p3, False)
        p3.raw(ret)
        self.p = p4 = Prog()
        p4.lines.append("LpollS:")
        p4.valu("v_add_f32", t[3], tv[0], tv[1])
        for i in range(2, 6):
            p4.valu("v_add_f32", t[3], t[3], tv[i])
        fill = []
        for i in range(0, 6, 2):
            fill += [lambda i=i: p4.valu("v_lshlrev_b32", gv[i], 16, gv[i + 1]), lambda i=i: p4.valu("v_and_b32", gv[i + 1], 0xFFFF0000, gv[i + 1])]
        fill += [lambda i=i: p4.valu("v_mul_f32", tv[i], tv[i], gv[i]) for i in range(6)]
        for k in (8, 4, 2, 1):
            fill.pop(0)()
            fill.pop(0)()
            p4.valu("v_add_f32_dpp", t[3], t[3], t[3], mods=f"row_ror:{k} row_mask:0xf bank_mask:0xf")
        for sw in (p4.swap16, p4.swap32):
            p4.valu("v_mov_b32", t[1], t[3])
            fill.pop(0)()
            fill.pop(0)()
            sw(t[3], t[1])
            p4.valu("v_add_f32", t[3], t[3], t[1])
        ga = GA / (1 + 3.5 / 1024 / (2 * math.log(2))) if self.o.get('tw', 2) == 2 else GA
        p4.valu("v_mov_b32", t[2], f2u(1e-6 * ga))
        p4.salu("s_mov_b32", sT0, f2u(ga / 384))
        p4.valu("v_fma_f32", t[3], t[3], sT0, t[2])
        p4.valu("v_rcp_f32", t[3], t[3])
        p4.salu("s_mov_b32", sT0, f2u(1.0 / ga))
        for i in range(6):
            p4.valu("v_fma_f32", tv[i], tv[i], t[3], sT0)
        for i in range(3):
            p4.valu("v_cvt_pk_f16_f32", tv[i], tv[2 * i], tv[2 * i + 1])
        p4.salu("s_mov_b32", sROLE, 0)
        p4.nop(2)
        p4.raw(ret)
        self.p = main
        for q in (p, p2, p3, p4):
            main.lines += q.lines

    def poll_point(self, k):
        p = self.p
        p.salu("s_cmp_eq_u32", sROLE, 0)
        p.raw(f"s_cbranch_scc1 Lpp{k}")
        p.cond_begin()
        p.raw(f"s_call_b64 {sRET}, {'Lpolln' if self.o.get('nb', 1) else 'Lpoll'}")
        p.cond_end()
        p.lines.append(f"Lpp{k}:")

    def spin_guard(self, exit_label):
        p = self.p
        p.salu("s_cmp_eq_u32", sCNT, 0)
        p.salu("s_cbranch_scc1", exit_label)
        p.salu("s_sub_u32", sCNT, sCNT, 1)

    def gap(self):
        p, o, s = self.p, self.o, self.s
        rv, tv, gv, t = self.poll_regs()
        self.pollr = pollr = [V(128, 16), t[0], t[1], t[2], t[3], t[5], '@poll']
        T1 = self.T1
        g8 = t[4]

        def role():
            p.salu("s_mov_b32", sROLE, 0)
            p.valu("v_bfe_u32", g8, self.vA[0], 8, 2)
            p.valu("v_lshlrev_b32", g8, 3, g8)
            p.salu("s_cmp_lg_u32", sWAVE, 0)
            p.raw("s_cbranch_scc1 Lnorole")
            p.cond_begin()
            p.valu("v_subrev_u32", t[5], W1F, self.vA[0])
            p.valu("v_lshrrev_b32", t[0], 1, t[5])
            p.valu("v_add_u32", t[0], t[0], t[5])
            p.salu("s_cmp_lt_u32", S(2), 96)
            p.salu("s_cselect_b32", sROLE, 1, 2)
            p.raw("s_cbranch_scc1 Lred")
            self.poll_loads(p, False)
            self.gamma_loads(p)
            p.raw("s_branch Lnorole")
            p.lines.append("Lred:")
            self.poll_loads(p, True)
            p.cond_end()
            p.lines.append("Lnorole:")
            for r in range(128, 144):
                p.p_vm[r] = None
            p.raw("s_setprio 0")
        tp = s.misc(T1, role, wr=pollr + [g8, '@prio'], cost=10).t
        nl = self.pattern('nlg', '6')
        Y = self.Y1[3:]
        NG = len(self.todo)
        self.npoll = 0
        for n, j in enumerate(self.todo):
            tg = T1 + 2.1 + n
            self.gemm1(s, tg - (0.6 if n > 1 else 1.1), j, self.LN[3], Y[n % 2], True, self.ring1, span=0.5 if n > 1 else 1.0)
            self.gelu32(s, tg, Y[n % 2], nl[n % len(nl)], self.blk3[j])
        tw = tp + o.get('gb', 1.5)
        ta = T1 + 1.6 + NG
        tq = V(248, 2) if not o.get('fine') else V(238, 2)
        bf = [V(176 + 2 * k, 2) for k in range(3)]

        def beta_loads():
            p.salu("s_mul_i32", sT0, sWAVE, 96)
            for k in range(3):
                p.buf_load("buffer_load_dwordx2", bf[k], g8, sBE, sT0, k * 32)
        s.vmem(tw - 0.1, beta_loads, rd=[g8, '@tab'], wr=bf, lat=800)

        s.misc(tw, lambda: self.await_(C_PUB, 1, tq=tq), rd=['@sums'], wr=['@tab', tq], cost=40)
        for k in (5, 8):
            s.vmem(tw, lambda k=k: (self.w2_fetch(k, self.vW2), p.salu("s_mov_b32", sVM, 0)), rd=['@tab', self.vW2], wr=['@w2raw', '@vm%d' % k],
                   lat=1200 * (k == 8))

        def vm_wait(tok, label):
            if tok <= p.vm_done:
                return
            p.salu("s_cmp_eq_u32", sVM, 1)
            p.raw(f"s_cbranch_scc1 {label}")
            p.wait(vm=tok)
            p.pos -= 1
            p.lines.append(f"{label}:")
        s.misc(ta + 0.25, lambda: vm_wait(p.p_vm[bf[2].b], "Lvw0"), rd=bf + ['@vm5'], wr=['@beta'])
        for ti in (2, 1):
            self.ln16(s, T1 + 2, [self.LN[ti].sub(4 * f, 4) for f in range(6)])
        ta = T1 + 1.6 + NG
        tb = self.TB = ta + o.get('tb', 2.0)
        Yf = Y[NG % 2]
        self.Yr = Y[(NG + 1) % 2]
        fr = self.fr = [V(72 + 4 * k, 4) for k in range(6)] + [Yf.sub(4 * k, 4) for k in range(3)]
        u = self.u = [V(186 + i) for i in range(6)] + [Yf.sub(12 + i) for i in range(4)]
        lane, vWR = u[4], u[7:10]
        self.vH = [V(248), V(249) if not o.get('fine') else V(248)]

        def addr():
            self.lane(lane)
            p.valu("v_lshl_add_u32", u[0], lane, 4, sPRIV)
            for k in range(3):
                p.salu("s_mul_i32", sT0, sWAVE, 3)
                p.salu("s_add_u32", sT0, sT0, k)
                p.salu("s_and_b32", sT1, sT0, 1)
                p.salu("s_mul_i32", sT1, sT1, 3072 - 8)
                p.salu("s_mul_i32", sT0, sT0, 3072)
                p.salu("s_sub_u32", sT0, sT0, sT1)
                p.salu("s_add_u32", sT0, sT0, R2)
                p.valu("v_lshl_add_u32", vWR[k], lane, 4, sT0)
            p.valu("v_lshl_add_u32", u[1], g8, 2, sPRIV)
            p.valu("v_and_b32", u[3], 3, lane)
            for bit, sh in ((2, 3), (3, 2), (4, 6), (5, 5)):
                p.valu("v_bfe_u32", u[5], lane, bit, 1)
                p.valu("v_lshl_add_u32", u[3], u[5], sh, u[3])
            p.valu("v_lshlrev_b32", u[3], 4, u[3])
            for i in range(2):
                p.valu("v_add_u32", self.vH[i], W1F + 36 * 1024 * i, u[3])
            p.valu("v_min_u32", u[3], 11, lane)
            p.salu("s_mul_i32", sT0, sWAVE, 12)
            p.valu("v_add_u32", u[3], sT0, u[3])
            p.valu("v_cmp_gt_u32", "vcc", 64, u[3])
            p.valu("v_lshlrev_b32", u[3], 2, u[3])
            p.valu("v_add_u32", u[6], R2 + SCO + 128, u[3])
            p.valu("v_add_u32", u[5], HOLE[1], u[3])
            p.valu("v_add_u32", u[3], HOLE[0] - 256, u[3])
            p.valu("v_cndmask_b32", u[3], u[3], u[5], "vcc")
            p.valu("v_add_u32", u[2], sPRIV, g8)
            p.valu("v_lshrrev_b32", u[5], 3, lane)
            p.valu("v_mul_u32_u24", u[5], 9216 - 96, u[5])
            p.valu("v_mul_u32_u24", u[4], 12, lane)
            p.valu("v_add_u32", u[5], u[5], u[4])
            p.valu("v_add_u32", u[5], R2 + SCO, u[5])
        s.misc(ta, addr, rd=[g8], wr=u + self.vH, cost=130)
        s.misc(T1 + 1.5, lambda: p.wait(vm=self.w2_tok0), rd=['@w2t0'], wr=['@w2ok0'])
        s.misc(ta + 1.1, lambda: vm_wait(self.w2_tok, "Lvw1"), rd=['@w2raw'], wr=['@w2ok1'])
        for k in (0, 3, 6, 1, 4, 7, 2, 5, 8):
            for y in range(2):
                s.ds_read(ta + 0.3 * (k % 3), "ds_read_b64_tr_b16", fr[k].sub(2 * y, 2), u[0], k * 1024 + y * 8, rd=['@w2ok%d' % (k in (5, 8))])
        bacc = V(120, 8)

        def partial(T):
            p._mem_issue(list(bacc.regs()) + list(fr[3].regs()), [])
            p.salu("s_mov_b32", "exec_lo", 0x00010001)
            p.salu("s_mov_b32", "exec_hi", 0x00010001)
            for y in range(2):
                p.ds_write("ds_write_b128", u[1], bacc.sub(4 * y, 4), SCO + 128 + T * 128 + y * 16)
            p.raw("s_mov_b64 exec, -1")
        for T in range(3):
            tt = ta + 0.3 + 0.5 * T
            for k in range(3):
                for y in range(2):
                    d = bacc.sub(4 * y, 4)
                    s.mfma(tt, d, fr[k * 3 + T].sub(2 * y, 2), bf[k], d if k else 0, rd=['@beta'])
            s.misc(tt + 0.25, lambda T=T: partial(T), rd=[bacc, u[1], fr[3], '@ba'], cost=10)
            for k in range(3):
                f = fr[k * 3 + T]
                for i in range(4):
                    w = V(182 + 2 * (i % 2), 2)
                    tc = tt + 0.05 + 0.04 * (4 * k + i)
                    s.valu(tc, "v_lshlrev_b32", w.sub(0), 16, f.sub(i))
                    s.valu(tc, "v_and_b32", w.sub(1), 0xFFFF0000, f.sub(i))
                    s.valu(tc, "v_cvt_pk_f16_f32", f.sub(i), w.sub(0), w.sub(1), rd=['@ba'])
        def warm():
            a, b = V(184), V(185)
            self.lane(b)
            p.salu("s_mov_b32", "m0", LDS_BYTES)
            if 'l' in o.get('warm', ''):
                p.valu("v_min_u32", b, 47, b)
                p.valu("v_and_b32", a, 7, b)
                p.valu("v_lshlrev_b32", a, 7, a)
                p.valu("v_lshrrev_b32", b, 3, b)
                p.valu("v_lshl_add_u32", a, b, 21, a)
                p.salu("s_add_u32", sT0, sLNB, W1F)
                p.raw(f"buffer_load_dword {a}, {sWS}, {sT0} offen lds")
                p.vm_seq += 1
            if 'x' in o.get('warm', ''):
                self.lane(b)
                p.valu("v_and_b32", a, 15, b)
                p.valu("v_min_u32", a, 11, a)
                p.valu("v_lshlrev_b32", a, 7, a)
                p.valu("v_lshrrev_b32", b, 4, b)
                p.valu("v_mul_u32_u24", b, 2 * ROWB, b)
                p.valu("v_add_u32", a, a, b)
                p.raw(f"buffer_load_dword {a}, {sX}, {sTILE[1]} offen lds")
                p.vm_seq += 1
        if o.get('warm'):
            s.misc(tb + o.get('wt', 0.2), warm, wr=[V(184, 2)], cost=40)
        k = tp + 0.8
        while k < tb:
            self.poll_op(k)
            k += o.get('pi', 0.3)
        self.prio_steps(s, tp + o.get('gp', 2.0), tb)
        self.code_pf(s, [T1 + 2, tb - 1])
        self.fine(s, [T1 - 2 + 0.5 * k for k in range(40)], 'mid')

        def ba():
            self.stamp(120)
            p.wait_all(vm=False)
            p.barrier()
            p.raw("s_setprio 2")
        s.misc(tb, ba, wr=['@ba', '@prio', '@bar'] + ([bacc] if o.get('stamps') else []))
        bs = [V(176 + i) for i in range(8)]
        for k in range(8):
            s.ds_read(tb, "ds_read_b32", bs[k], u[6], 9216 * k, rd=['@ba'])
        for k in range(1, 8):
            s.valu(tb, "v_add_f32", bs[0], bs[0], bs[k])
        s.ds_write(tb, "ds_write_b32", u[3], bs[0], rd=['@b4'])

    def poll_op(self, t):
        self.npoll += 1
        self.s.misc(t, lambda k=self.npoll: self.poll_point(k), wr=self.pollr)

    def fold(self, t):
        p, o, s, u, fr = self.p, self.o, self.s, self.u, self.fr
        rv, tv, gv, _ = self.poll_regs()
        lane, vWR = u[4], u[7:10]
        ad = u[5]

        def b4():
            p.salu("s_cmp_lg_u32", sWAVE, 0)
            p.raw("s_cbranch_scc1 Lspinx")
            p.cond_begin()
            p.raw("s_setprio 3")
            p.lines.append("Lspin:")
            p.salu("s_cmp_eq_u32", sROLE, 0)
            p.raw("s_cbranch_scc1 Lspiny")
            self.spin_guard("Lspiny")
            p.raw(f"s_call_b64 {sRET}, Lpoll")
            p.raw("s_branch Lspin")
            p.lines.append("Lspiny:")
            for i in range(3):
                p.ds_write("ds_write_b32", ad, tv[i], 4 * i)
            p.raw("s_waitcnt lgkmcnt(0)")
            p.cond_end()
            p.lines.append("Lspinx:")
            p.wait_all(vm=False)
            self.stamp(140)
            p.barrier()
            self.stamp(140)
        s.misc(t, b4, rd=[ad, '@ba'], wr=self.pollr + ['@b4', '@bar', '@prio'], cost=20)
        sc = [V(240 + 2 * k, 2) for k in range(3)]
        for k in range(3):
            s.ds_read(t, "ds_read_b64", sc[k], u[2], SCO + 32 * k, rd=['@b4'])
        s.misc(t, lambda: p._mem_deps([r for v in sc for r in v.regs()]), rd=sc, wr=['@sc'])
        for k in range(3):
            for T in range(3):
                f = fr[k * 3 + T]
                for i in range(4):
                    s.valu(t, "v_pk_mul_f16", f.sub(i), f.sub(i), sc[k].sub(i & 1))
                    if o.get('tw', 2):
                        if o.get('tw', 2) == 1:
                            s.valu(t, "v_add_u32", f.sub(i), 0x00040004, f.sub(i))
                        s.valu(t, "v_and_b32", f.sub(i), sM, f.sub(i))
                for y in range(2):
                    s.ds_write(t, "ds_write_b64", vWR[k], f.sub(2 * y, 2), (3 * y + T) * 1024, rd=['@sc', '@w2'])

        def b5():
            p.wait_all(vm=False)
            p.barrier()
            self.stamp(184)
        s.misc(t + o.get('tf', 0.5), b5, wr=['@w2', '@bar'] + ([V(184, 4)] if o.get('stamps') else []))

    def ln16(self, s, t, ln):
        for u in range(3):
            for i in range(4):
                s.swap(t, 16, ln[2 * u].sub(i), ln[2 * u + 1].sub(i))

    def xo(self, store, reg, h, T):
        o = self.o
        if ('o' if store else 'x') in o.get('x_no', ''):
            return
        if store and 'e' in o.get('x_no', '') and h in ((1, 1), (0, 0), (0, 1))[:o.get('x_n', 3)]:
            return
        if store:
            self.p.buf_store("buffer_store_dwordx4", reg, self.vG, sOUT, sTILE[h[0]], 64 * T + 192 * h[1], flags=o.get('osf', 'sc1').replace('+', ' '))
        else:
            self.p.buf_load("buffer_load_dwordx4", reg, self.vG, sX, sTILE[h[0]], 64 * T + 192 * h[1], flags=o.get('xlf', ''))

    def phase2(self):
        p, o, s = self.p, self.o, self.s
        halves = [(2, 0), (2, 1), (1, 0), (1, 1), (0, 0), (0, 1)]
        groups = [[(3, 0), (3, 1)]]
        for n in self.pattern('grp', '33'):
            groups.append(halves[:n])
            halves = halves[n:]
        assert not halves
        P0 = self.TB + 0.1
        ra = o.get('ra', 2)
        F0 = (2.2, 2.95, 5.2)[ra - 1]
        G0 = F0 + o.get('tf', 0.5) + 0.05
        frac = o.get('f2', 0.78)
        g2 = o.get('g2', 0.15)
        prod, t = [], P0 + G0
        live = lambda g, j: [h for h in groups[g] if (h[0], j) not in self.spi]
        cols = {}
        for g in range(1, len(groups)):
            sp = [j for j in range(12) if len(live(g, j)) < len(groups[g])]
            rest = [j for j in range(12) if j not in sp]
            pos = {3 + int((n + 0.5) * 8 / len(sp)): j for n, j in enumerate(sp)}
            cols[g] = [pos[n] if n in pos else rest.pop(0) for n in range(12)]
            for j in cols[g]:
                for z in range(2 if live(g, j) else 0):
                    d = len(live(g, j)) / 4
                    n = len(prod)
                    prod.append((P0 + (0, d, 2 * d + 1.5)[n] if n < ra else t, d, g, j, z))
                    t += d if n >= ra else 0
        steps = [(0, j) for j, _ in self.fifo] + [(g, j) for g in range(1, len(groups)) for j in cols[g]]
        wt = [0]
        for g, _ in steps:
            wt.append(wt[-1] + len(groups[g]))
        NQ = len(steps)
        lb = {steps.index((g, j)): t + d + g2 + o.get('lag', 1.45) for t, d, g, j, z in prod if z}
        b0, bt = o.get('b0', 7), o.get('bt', 2.4)
        tt = [P0 + G0 + bt * q / b0 for q in range(b0 + 1)]
        if o.get('b1', 5.2):
            tt += [tt[-1] + (o.get('b1', 5.2) - bt) * (q - b0) / (12 - b0) for q in range(b0 + 1, 13)]
        cq = o.get('cq', 19)
        if cq:
            q0 = len(tt) - 1
            tt += [max(lb.get(q, 0), tt[q0] + (lb[cq] - tt[q0]) * (wt[q] - wt[q0]) / (wt[cq] - wt[q0])) for q in range(q0 + 1, cq + 1)]
        while len(tt) < NQ:
            q0 = len(tt) - 1
            sl, q1 = max(((lb[q] - tt[q0]) / (wt[q] - wt[q0]), q) for q in lb if q > q0)
            tt += [tt[q0] + sl * (wt[q] - wt[q0]) for q in range(q0 + 1, q1 + 1)]
        tt.append(tt[-1] + 0.7)
        tq = tt.__getitem__

        def units(g):
            out = {}
            for h in groups[g]:
                for T in range(3):
                    out.setdefault((h[0], (3 * h[1] + T) // 2), []).append((h, T))
            return list(out.values())

        events = [(P0 + F0, 3, 0, 0)]
        for q in range(NQ):
            for k in range(7):
                events.append((tq(q) + (tq(q + 1) - tq(q)) * min(k, 5.9) / 6, 2, q, k))
        for e, (t, d, g, j, z) in enumerate(prod):
            for u in range(3):
                events.append((t + d * u / 3, 0, e, u))
        events.sort()
        e0 = min(e for e, x in enumerate(prod) if (0, 0) in groups[x[2]])

        def record(s, want, dry):
            line = []
            quads = lambda v: [v.sub(i, 4) for i in range(0, v.n, 4)]
            nring = o.get('nring', 5)
            Yf = quads(V(304 - self.Yr.b, 16))
            ring = [V(120, 4), V(124, 4)] + self.ring1[2:] + Yf[:nring - 4]
            small = [V(120, 4), V(124, 4)]
            pool = quads(self.Yr) + self.ring1[:2]
            aq = [V(b, 4) for b in (128, 132, 136, 140, 240, 244, 72, 76, 80, 84, 88, 92)]
            ACC = {(h, T, y): aq[6 * h[1] + 2 * T + y] for h in groups[0] for T in range(3) for y in range(2)}
            ent = {((3, v), j): b.sub(4 * v, 4) for j, b in self.fifo for v in range(2)}
            LNq = {(ti, v): [self.LN[ti].sub(8 * u + 4 * v, 4) for u in range(3)] for ti in (1, 2) for v in range(2)}
            idf = V(16, 8)

            xuse = {}
            ln0 = []
            back = []
            low = [99, 0]

            def take(t):
                if len(pool) - 1 < low[0]:
                    low[:] = [len(pool) - 1, t - P0]
                assert pool, ('out of registers', t - P0)
                line.append((t, len(pool) - 1))
                return pool.pop(0)

            def bias(h, T, y, t):
                s.ds_read(t, "ds_read_b128", ACC[h, T, y], self.vBias, (0x2000 + 128 * T if T < 2 else 0) + y * 16, rd=['@b4'])

            def wread(t, addr, off, rg=ring, rd=()):
                w = self.ring(rg)
                s.ds_read(t - o.get('lead', 0.8), "ds_read_b128", w, addr, off, rd=rd)
                return w

            npair = nlut = 0
            Y = {}
            for t, kind, i, k in events:
                back.sort(key=lambda x: x[0])
                while back and back[0][0] <= t:
                    pool.append(back.pop(0)[1])
                while want and want[0][0] <= t:
                    _, q, pcs = want.pop(0)
                    if q == -2:
                        k_ = self.rc[id(ring)] % len(ring)
                        ring.insert(k_, take(t))
                        self.rc[id(ring)] = k_
                        if o.get('show'):
                            print(f'ring+ at {t - P0:.1f}', end='; ')
                        continue
                    if q == -3:
                        h, j_ = pcs
                        d = ent[h, j_] = take(t)
                        s.vmem(t, lambda f=self.spi[h[0], j_] + h[1], d=d: self.ws_frag(f, lambda so: p.buf_load(
                            "buffer_load_dwordx4", d, self.vA[0], sWS, so)), wr=[d], lat=o.get('xlat', 2000))
                        if o.get('show'):
                            print(f's at {t - P0:.1f}', end='; ')
                        continue
                    if q < 0:
                        for f in (2 * pcs, 2 * pcs + 1):
                            d = take(t)
                            ln0.append(d)
                            if 'l' not in o.get('x_no', ''):
                                s.vmem(t, lambda f=f, d=d: self.ws_frag(f, lambda so: p.buf_load(
                                    "buffer_load_dwordx4", d, self.vA[0], sWS, so, flags=o.get('rlf', ''))), wr=[d], lat=o.get('xlat', 2000))
                        if o.get('show') and not dry:
                            print(f'ln at {t - P0:.1f} for {prod[e0][0] - P0:.1f}', end='; ')
                        continue
                    if o.get('show') and not dry:
                        print(f'x at {t - P0:.1f} for {tq(q + 1) - P0:.1f}', end='; ')
                    xuse[q] = [(h, T, take(t)) for h, T in pcs]
                    for h, T, d in xuse[q]:
                        s.vmem(t, lambda d=d, h=h, T=T: self.xo(False, d, h, T), wr=[d], lat=o.get('xlat', 2000))
                line.append((t, len(pool)))
                if kind == 3:
                    if not dry:
                        for k in range(int(F0 / o.get('pi', 0.3))):
                            self.poll_op(P0 + o.get('pi', 0.3) * k)
                        self.fold(t)
                    for T in range(3):
                        for y in range(2):
                            bias(groups[0][0], T, y, t + 0.3)
                    pool += Yf[nring - 4:]
                    continue
                if kind == 0:
                    t0, d, g, j, z = prod[i]
                    G = live(g, j)
                    if k == 0:
                        if i == e0:
                            while dry and len(ln0) < 6:
                                ln0.append(take(t))
                            self.ln16(s, t - 1.0, ln0)
                            for v in range(2):
                                LNq[0, v] = ln0[v::2]
                        Y = {h: take(t) for h in G}
                    w = wread(t, self.vH[j // 6], ((j % 6) * 6 + 2 * k) * 1024 + 256 * z, small if i < ra else ring)
                    for n, h in enumerate(G):
                        s.mfma(t + d * n / (3 * len(G)), Y[h], w, LNq[h][k], Y[h] if k else 0)
                        if j == cols[g][-1] and z == 1:
                            back.append((t + d / 3, LNq[h][k]))
                    if k < 2:
                        continue
                    if z == 0:
                        ent.update({(h, j): Y[h] for h in G})
                    npair += 2 * len(G) * (frac if t - P0 > o.get('ft', 14) else o.get('f2a', frac))
                    nl = 2 * max(1, min(len(G), round((npair - nlut) / 2)))
                    nlut += nl
                    order = [(h, m) for h in G[len(G) - nl // 2:] + G[:len(G) - nl // 2] for m in range(2)]
                    self.gelu(s, t0 + d + g2, [Y[h].sub(2 * m, 2) for h, m in order], nl,
                              dst=[ent[h, j].sub(2 * z + m) for h, m in order], span=d)
                    if z:
                        back += [(t0 + d + g2 + o.get('fin', 0.9) + o.get('lw', 0.55) * d, Y[h]) for h in G]
                    continue
                q = i
                g, j = steps[q]
                G = groups[g]
                n = q % 12
                if k < 6:
                    T, y = divmod(k, 2)
                    w = wread(t, *self.frag(72 + (2 * j + y) * 3 + T), rd=['@w2'])
                    for m, h in enumerate(G[::-1]):
                        if dry and (h, j) not in ent:
                            ent[h, j] = take(t)
                        if (h, T, y) not in ACC:
                            ACC[h, T, y] = take(t)
                        d = ACC[h, T, y]
                        s.mfma(t + m * (tq(q + 1) - tq(q)) / (6 * len(G)), d, w, ent[h, j], d if n else ACC[G[0], T, y], 'f16')
                    continue
                if q != 2:
                    pool += [ent[h, j] for h in G]
                else:
                    for m in range(6):
                        if m in (2, 3):
                            s.valu(t, "v_cndmask_b32", idf.sub(m), 0, self.vI, sIX[m - 2])
                        else:
                            s.valu(t, "v_mov_b32", idf.sub(m), 0)
                assert all(w_[1] != q for w_ in want), ('late x', q)
                for h, T, x in xuse.get(q, ()):
                    for y in range(2):
                        s.mfma(t, ACC[h, T, y], idf.sub(2 - 2 * y, 4), x, ACC[h, T, y])
                    pool.append(x)
                if n == 11:
                    more = g + 1 < len(groups)
                    for T in range(3):
                        tt_ = t + 0.05 * T - 0.3
                        free = []
                        for h in G:
                            for m in range(4):
                                a_ = ACC[h, T, m >> 1]
                                s.valu(tt_, "v_cvt_pk_bf16_f32", ACC[h, T, 0].sub(m), a_.sub(2 * (m & 1)), a_.sub(2 * (m & 1) + 1))
                            free.append(ACC[h, T, 1])
                        if more:
                            for y in range(2):
                                ACC[groups[g + 1][0], T, y] = free.pop(0)
                                bias(groups[g + 1][0], T, y, tt_)
                        pool += free
                    for m, pcs in enumerate(units(g)):
                        ts = t + 0.1 + (o.get('sg%d' % g, o.get('sg', 1.6)) * m if more else 0)
                        for h, T in pcs:
                            d = ACC[h, T, 0]
                            s.vmem(ts, lambda d=d, h=h, T=T: self.xo(True, d, h, T), rd=[d], lat=0)
                            back.append((ts, d))
            return line, low

        rc = dict(self.rc)
        line, low = record(Sched(p, o), [], True)
        self.rc = rc
        wish = [(prod[e0][0] - o.get('rl0', 4.5) + o.get('rl', 1.0) * u, prod[e0][0] - 1e-6, 2, -1, u) for u in range(3)]
        for g in range(len(groups)):
            xs = [int(c, 16) for c in str(o.get(f'xq{g}', ('9ab', '4579b', '6789a', '89a')[g]))]
            for n, pcs in zip(xs, units(g)):
                q = 12 * g + n
                wish.append((tq(q) - o.get('xlead', 5.0), tq(q + 1), len(pcs), q, pcs))
        wish += [(tq(q) - o.get('slead', 4.5) + 0.3 * n, tq(q) - 1e-6, 1, -3, (h, j)) for q, (g, j) in enumerate(steps) if g
                 for n, h in enumerate(groups[g]) if h not in live(g, j)]
        wish += [(P0 + G0, 1e9, 1, -2, None) for _ in range(o.get('rx', 3))]
        want = []
        for t0, t1, n, q, pay in wish:
            for t, f in line:
                if t0 <= t <= t1 and f < n + o.get('xres', 0):
                    t0 = t + 1e-6
            line = [(t, f - n if t0 <= t <= t1 else f) for t, f in line]
            want.append((t0, q, pay))
        want.sort(key=lambda x: x[0])
        line, low = record(s, want, False)
        if o.get('show'):
            print('fewest free quads', low, 'group ends', [round(tq(12 * g) - P0, 1) for g in range(1, len(groups) + 1)])
        pe = o.get('pe', 0)
        self.prio_steps(s, P0 + G0, tq(NQ) + 0.4 - pe - o.get('pz', 0), 'pp2')
        if o.get('pz'):
            self.setprio(s, tq(NQ) + 0.4 - o['pz'], 3)
        for k, f in enumerate((1.0, 0.6, 0.3, 0.12) if pe else ()):
            self.setprio(s, tq(NQ) + 0.4 - pe * f, 3 - k)
        self.fine(s, [P0 + G0 + e for e in range(38)], 'p2')
        if o.get('x_jit'):
            import random
            rnd = random.Random(o['x_jit'])

            def nap(k, mask, n):
                p.salu("s_lshr_b32", sT0, mask, sWAVE)
                p.salu("s_and_b32", sT0, sT0, 1)
                p.raw(f"s_cbranch_scc0 Lnap{k}")
                p.cond_begin()
                p.raw(f"s_sleep {n}")
                p.cond_end()
                p.lines.append(f"Lnap{k}:")
            for k in range(60):
                tt_ = rnd.choice((rnd.uniform(-1, tq(NQ)), rnd.uniform(-1, 8), rnd.uniform(20, 36), rnd.uniform(self.T1 - 10, P0 + G0 + 2)))
                s.misc(tt_, lambda k=k, m=rnd.randrange(1, 255), n=rnd.choice((4, 16, 60, 120)): nap(k, m, n))
        s.run(tag='all')
        for tag in ('p1', 'mid', 'p2'):
            self.fine_flush(tag)
        if o.get('fine') == 'su':
            self.nfine += 2
            self.fine_flush('su')
        if o.get('endw', 1) and o.get('stamps'):
            p.raw("s_waitcnt vmcnt(0)")
        self.stamp(168)

    def build(self):
        self.alloc()
        self.vW1g, self.vW1r, self.vW1w = V(115), V(116), V(117)
        self.prologue()
        self.phase1()
        self.gap()
        self.phase2()
        if self.o.get('x_pad'):
            p = self.p
            p.raw("s_waitcnt vmcnt(0)")
            p.lines.append("Lpad:")
            p.raw(f"s_memrealtime {sRT}")
            p.raw("s_waitcnt lgkmcnt(0)")
            p.salu("s_sub_u32", sT0, sRT.sub(0), S(100))
            p.salu("s_cmp_lt_u32", sT0, self.o['x_pad'])
            p.raw("s_cbranch_scc1 Lpad")
        self.p.raw("s_endpgm")
        self.poll_routine()
        self.p.lines.append("Lend:")
        self.p.raw("s_endpgm")
        return self.p


HEADER = open('standalone__modern_conv_block_convnext_v2__vision.s.ref').read().split('; Override launch')[0]


def wrap(p):
    return f"""{HEADER}; Generated by gen/gen6.py (hand-written generator; see gen/asmgen.py, gen/sched.py)
; One persistent launch: conv -> LayerNorm -> GEMM1 -> GELU -> sums of squares, grid reduction, then GEMM1 -> GELU -> GEMM2.
; kernel fills at start with the same formula for every sign, f16 exponent and 7-bit mantissa (bf16 resolution of h).
; @launch grid=(256,1,1) block=(512,1,1) lds={LDS_BYTES}
.amdgcn_target "amdgcn-amd-amdhsa--gfx950"
.text
.globl {NAME}
.p2align 8
.type {NAME},@function
{NAME}:
{p.text()}
.section .rodata,"a"
.p2align 6
.amdhsa_kernel {NAME}
  .amdhsa_next_free_vgpr 256
  .amdhsa_next_free_sgpr 102
  .amdhsa_accum_offset 256
  .amdhsa_group_segment_fixed_size 0
  .amdhsa_kernarg_size 72
  .amdhsa_user_sgpr_count 2
  .amdhsa_user_sgpr_kernarg_segment_ptr 1
  .amdhsa_system_sgpr_workgroup_id_x 1
.end_amdhsa_kernel
"""


def parse(args):
    opt = {}
    for a in args:
        k, v = a.split('=')
        if k.startswith(('nl', 'keep', 'sp0', 'sp1', 'xq', 'grp')):
            opt[k] = v
            continue
        try:
            opt[k] = int(v)
        except ValueError:
            try:
                opt[k] = float(v)
            except ValueError:
                opt[k] = v
    return opt


if __name__ == '__main__':
    out = sys.argv[1]
    opt = parse(sys.argv[2:])
    g = Gen(opt)
    p = g.build()
    from align import align_dp
    al = align_dp(p.lines, ncost=opt.get('nc', 1e9))
    open(out, 'w').write(wrap(p))
    print(out, 'align', al, 'instructions', sum(p.stats.values()), 'stamps', g.nstamp,
          {k: v for k, v in p.stats.items() if k in ('s_nop', 's_waitcnt', 'ds_read_b128', 'ds_read_u16')})
```
